```python
import torch

def _softmax(x, axis=-1):
    return torch.softmax(x, dim=axis)
def _gelu(x):
    return torch.nn.functional.gelu(x, approximate="tanh")
def _silu(x):
    return torch.nn.functional.silu(x)
def _sigmoid(x):
    return torch.sigmoid(x)
def _layernorm(x, axis=-1, eps=1e-5):
    m = x.mean(dim=axis, keepdim=True)
    v = x.var(dim=axis, keepdim=True, unbiased=False)
    return (x - m) / torch.sqrt(v + eps)
def _scatter_add(tgt, idx, src, axis=0):
    return tgt.clone().index_add_(axis, idx, src)
def _segment_sum(src, seg, n):
    out = torch.zeros((n,) + src.shape[1:], dtype=src.dtype)
    return out.index_add_(0, seg, src)
def _pad(x, pw):
    flat = tuple(v for pair in reversed(pw) for v in pair)
    return torch.nn.functional.pad(x, flat)

kernel_name = 'concat_heads__ssm_conv_h3__ssm_conv_s4__prompt'

def setup_inputs():

    _w = (lambda a: (lambda t: t.to(torch.bfloat16) if t.is_floating_point() else t)(torch.as_tensor(a)))
    def _A_setup():
        B, S, D = 1, 2048, 640
        ks = 4
        return {
            "q": _w((lambda *s: torch.randn(*s, dtype=torch.bfloat16) * 0.05)(B, S, D)),
            "k": _w((lambda *s: torch.randn(*s, dtype=torch.bfloat16) * 0.2)(B, S, D)),
            "v": _w((lambda *s: torch.randn(*s, dtype=torch.bfloat16) * 0.2)(B, S, D)),
            "shift_k": _w((lambda *s: torch.randn(*s, dtype=torch.bfloat16) * 0.2)(D, ks) * 0.5),
            "ssm_k": _w((lambda *s: torch.randn(*s, dtype=torch.bfloat16) * 0.8)(D, S) * (1.0 / S ** 0.5)),
            "ssm_D": _w((lambda *s: torch.randn(*s, dtype=torch.bfloat16) * 0.2)(D)),
        }
    _A_in = _A_setup()

    def _B_setup():
        B, L, D, N = 1, 2048, 640, 128
        A_re = -(lambda _x: torch.exp(torch.as_tensor(_x)))((lambda *s: torch.randn(*s, dtype=torch.bfloat16) * 3.2)(D, N))
        A_im = torch.pi * (lambda *s: torch.randn(*s, dtype=torch.bfloat16) * 0.05)(D, N)
        B_re = (lambda *s: torch.randn(*s, dtype=torch.bfloat16) * 0.1)(D, N)
        B_im = (lambda *s: torch.randn(*s, dtype=torch.bfloat16) * 0.1)(D, N)
        C_re = (lambda *s: torch.randn(*s, dtype=torch.bfloat16) * 0.1)(D, N)
        C_im = (lambda *s: torch.randn(*s, dtype=torch.bfloat16) * 0.1)(D, N)
        log_dt = (lambda *s: torch.randn(*s, dtype=torch.bfloat16) * 0.05)(D) * 0.5 - 4.0
        Dskip = (lambda *s: torch.randn(*s, dtype=torch.bfloat16) * 0.05)(D)
        return {
            "u": _w((lambda *s: torch.randn(*s, dtype=torch.bfloat16) * 0.05)(B, L, D)),
            "A_re": _w(A_re),
            "A_im": _w(A_im),
            "B_re": _w(B_re),
            "B_im": _w(B_im),
            "C_re": _w(C_re),
            "C_im": _w(C_im),
            "log_dt": _w(log_dt),
            "Dskip": _w(Dskip),
        }
    _B_in = _B_setup()

    return {
        "A_q": _A_in["q"],
        "A_k": _A_in["k"],
        "A_v": _A_in["v"],
        "A_shift_k": _A_in["shift_k"],
        "A_ssm_k": _A_in["ssm_k"],
        "A_ssm_D": _A_in["ssm_D"],
        "B_u": _B_in["u"],
        "B_A_re": _B_in["A_re"],
        "B_A_im": _B_in["A_im"],
        "B_B_re": _B_in["B_re"],
        "B_B_im": _B_in["B_im"],
        "B_C_re": _B_in["C_re"],
        "B_C_im": _B_in["C_im"],
        "B_log_dt": _B_in["log_dt"],
        "B_Dskip": _B_in["Dskip"],
    }

def reference(A_q, A_k, A_v, A_shift_k, A_ssm_k, A_ssm_D, B_u, B_A_re, B_A_im, B_B_re, B_B_im, B_C_re, B_C_im, B_log_dt, B_Dskip):
    def _A_ref(q, k, v, shift_k, ssm_k, ssm_D):
        B, S, D = q.shape
        ks = shift_k.shape[-1]
        k_pad = _pad(k, ((0, 0), (ks - 1, 0), (0, 0)))
        k_shift = torch.zeros_like(k)
        for t in range(ks):
            k_shift = k_shift + k_pad[:, t:t + S, :] * shift_k[:, ks - 1 - t][None, None, :]
        kv = k_shift * v
        L = 2 * S
        kv_pad = _pad(kv, ((0, 0), (0, S), (0, 0)))
        kf_pad = _pad(ssm_k, ((0, 0), (0, S)))
        kv_f = (lambda x, axes=(-2,-1): torch.fft.rfft2(x.float(), dim=axes))(kv_pad[:, None, :, :], axes=(1, 2))
        kf_f = (lambda x, axes=(-2,-1): torch.fft.rfft2(x.float(), dim=axes))(kf_pad[:, None, :], axes=(1, 2))
        kf_f = (lambda x, *d: x.permute(*d))(kf_f, 1, 2, 0)
        y_f = kv_f * kf_f[None, :, :, :]
        y = (lambda x, s, axes=(-2,-1): torch.fft.irfft2(x, s=s, dim=axes).to(torch.bfloat16))(y_f, (1, L), axes=(1, 2))[:, 0, :S, :]
        y = y + kv * ssm_D[None, None, :]
        return q * y

    def _B_ref(u, A_re, A_im, B_re, B_im, C_re, C_im, log_dt, Dskip):
        Bsz, L, D = u.shape
        dt = torch.exp(log_dt)[:, None]
        A = A_re + 1j * A_im
        Bc = B_re + 1j * B_im
        Cc = C_re + 1j * C_im
        logdA = dt * A
        dB = dt * Bc
        l = (lambda x, dt: x.to(dt))(torch.arange(L), A_re.dtype)
        P = torch.exp(logdA[:, :, None] * l[None, None, :])
        K = torch.einsum("dn,dnl,dn->dl", Cc, P, dB).real
        L2 = 2 * L
        Kp = _pad(K, ((0, 0), (0, L)))
        up = (lambda x, *d: x.permute(*d))(u, 0, 2, 1)
        up = _pad(up, ((0, 0), (0, 0), (0, L)))
        Kf = (lambda x, axes=(-2,-1): torch.fft.rfft2(x.float(), dim=axes))(Kp[:, None, :], axes=(-2, -1))
        Uf = (lambda x, axes=(-2,-1): torch.fft.rfft2(x.float(), dim=axes))(up[:, :, None, :], axes=(-2, -1))
        Yf = Uf * Kf[None, :, :, :]
        y = (lambda x, s, axes=(-2,-1): torch.fft.irfft2(x, s=s, dim=axes).to(torch.bfloat16))(Yf, (1, L2), axes=(-2, -1))[:, :, 0, :L]
        y = (lambda x, *d: x.permute(*d))(y, 0, 2, 1) + u * Dskip[None, None, :]
        return y

    a = _A_ref(A_q, A_k, A_v, A_shift_k, A_ssm_k, A_ssm_D)
    b = _B_ref(B_u, B_A_re, B_A_im, B_B_re, B_B_im, B_C_re, B_C_im, B_log_dt, B_Dskip)
    return torch.concatenate([a, b], axis=-1)
```

```python
import sys

NAME = "concat_heads__ssm_conv_h3__ssm_conv_s4__prompt_kernel"

TCOPY = 4160
TSZ = 4 * TCOPY
P0 = 8 * TSZ
PCH = 1536
PBUF = 8 * PCH
LDS_TOTAL = P0 + 2 * PBUF
LROW = 272
RBASE = 41 * LROW


class A:
    def __init__(self):
        self.l = []

    def __call__(self, s):
        self.l.append("    " + s)

    def lab(self, s):
        self.l.append(s + ":")

    def c(self, s):
        self.l.append("    ; " + s)

    def text(self):
        return "\n".join(self.l) + "\n"


def vr(b, n=1):
    return "v%d" % b if n == 1 else "v[%d:%d]" % (b, b + n - 1)


def sr(b, n=1):
    return "s%d" % b if n == 1 else "s[%d:%d]" % (b, b + n - 1)


a = A()

S_WG = 2
S_TYPE = 3
S_PTR = 4
def PTR(i): return S_PTR + 2 * i
S_WAVE = 40
S_COL = 41
S_I = 42
S_CH0 = 43
SRD_X = 44
SRD_V = 48
SRD_Q = 52
SRD_T = 56
SRD_O = 60
S_W = 64
S_D = 4
S_ONES = 96
S_SEL0 = 97
S_SEL1 = 98
S_T0 = 99
S_T1 = 100
S_T2 = 101
S_EX = 20
S_PERMLO = 22
S_PERMHI = 23
S_SC0 = 24
S_SC1 = 25
S_HIMASK = 26

V_TID = 0
V_LANE = 1
V_T = 2
V_P = 3
V_O = 4
V_WM = 5
V_WP = 6
V_OR = 7
V_GO = 8
V_TMP = 9
V_X = 16
V_Q = 32
V_ACC = 48
V_TF = 80
V_PF = 144
V_S = 160
NVGPR = 256


def header():
    a.l.append("; fused H3 (shift-SSM * v -> long conv -> gate) and S4D (kernel generation + long conv), one launch")
    a.l.append("; @launch grid=(192,1,1) block=(512,1,1) lds=%d" % LDS_TOTAL)
    a.l.append('.amdgcn_target "amdgcn-amd-amdhsa--gfx950"')
    a.l.append(".text")
    a.l.append(".globl " + NAME)
    a.l.append(".p2align 8")
    a.l.append(".type %s,@function" % NAME)
    a.lab(NAME)


def footer():
    a.lab("L_end")
    a("s_endpgm")
    a.l.append('.section .rodata,"a"')
    a.l.append(".p2align 6")
    a.l.append(".amdhsa_kernel " + NAME)
    a.l.append("  .amdhsa_next_free_vgpr %d" % NVGPR)
    a.l.append("  .amdhsa_next_free_sgpr 102")
    a.l.append("  .amdhsa_accum_offset %d" % NVGPR)
    a.l.append("  .amdhsa_group_segment_fixed_size 0")
    a.l.append("  .amdhsa_kernarg_size 144")
    a.l.append("  .amdhsa_user_sgpr_count 2")
    a.l.append("  .amdhsa_user_sgpr_kernarg_segment_ptr 1")
    a.l.append("  .amdhsa_system_sgpr_workgroup_id_x 1")
    a.l.append(".end_amdhsa_kernel")


def srd(d, plo, nbytes):
    a("s_mov_b32 %s, %s" % (sr(d), sr(plo)))
    a("s_and_b32 %s, %s, 0xffff" % (sr(d + 1), sr(plo + 1)))
    a("s_mov_b32 %s, 0x%x" % (sr(d + 2), nbytes))
    a("s_mov_b32 %s, 0x00020000" % sr(d + 3))


def prologue_common():
    a.c("---- decode workgroup -> (type, column, index) ----")
    a("s_cmp_ge_u32 s2, 192")
    a("s_cbranch_scc1 L_end")
    a("s_load_dwordx16 %s, s[0:1], 0" % sr(S_PTR, 16))
    a("s_load_dwordx16 %s, s[0:1], 64" % sr(S_PTR + 16, 16))
    a("s_load_dwordx4 %s, s[0:1], 128" % sr(S_PTR + 32, 4))
    a("s_and_b32 %s, s2, 7" % sr(S_T0))
    a("s_lshr_b32 %s, s2, 3" % sr(S_T1))
    a("s_and_b32 %s, %s, 7" % (sr(S_I), sr(S_T1)))
    a("s_lshr_b32 %s, %s, 3" % (sr(S_T1), sr(S_T1)))
    s0 = [0x00, 0x02, 0x10, 0x12, 0x14, 0x16, 0x18, 0x09]
    s1 = [0x01, 0x03, 0x11, 0x13, 0x15, 0x17, 0x19, 0xff]
    s2 = [0xff, 0xff, 0x04, 0x05, 0x06, 0x07, 0x08, 0xff]
    def pk(t, lo): return sum(t[lo + i] << (8 * i) for i in range(4))
    a("s_mov_b32 %s, 0x%x" % (sr(S_COL), pk(s0, 0)))
    a("s_mov_b32 %s, 0x%x" % (sr(S_T2), pk(s0, 4)))
    a("s_cmp_eq_u32 %s, 1" % sr(S_T1))
    a("s_cselect_b32 %s, 0x%x, %s" % (sr(S_COL), pk(s1, 0), sr(S_COL)))
    a("s_cselect_b32 %s, 0x%x, %s" % (sr(S_T2), pk(s1, 4), sr(S_T2)))
    a("s_cmp_eq_u32 %s, 2" % sr(S_T1))
    a("s_cselect_b32 %s, 0x%x, %s" % (sr(S_COL), pk(s2, 0), sr(S_COL)))
    a("s_cselect_b32 %s, 0x%x, %s" % (sr(S_T2), pk(s2, 4), sr(S_T2)))
    a("s_cmp_ge_u32 %s, 4" % sr(S_T0))
    a("s_cselect_b32 %s, %s, %s" % (sr(S_COL), sr(S_T2), sr(S_COL)))
    a("s_and_b32 %s, %s, 3" % (sr(S_T0), sr(S_T0)))
    a("s_lshl_b32 %s, %s, 3" % (sr(S_T0), sr(S_T0)))
    a("s_lshr_b32 %s, %s, %s" % (sr(S_COL), sr(S_COL), sr(S_T0)))
    a("s_and_b32 %s, %s, 0xff" % (sr(S_COL), sr(S_COL)))
    a("s_cmp_eq_u32 %s, 0xff" % sr(S_COL))
    a("s_cbranch_scc1 L_end")
    a("s_lshr_b32 %s, %s, 4" % (sr(S_TYPE), sr(S_COL)))
    a("s_and_b32 %s, %s, 15" % (sr(S_COL), sr(S_COL)))
    a("s_lshl_b32 %s, %s, 6" % (sr(S_CH0), sr(S_COL)))
    a("s_lshl_b32 %s, %s, 3" % (sr(S_T0), sr(S_I)))
    a("s_add_u32 %s, %s, %s" % (sr(S_CH0), sr(S_CH0), sr(S_T0)))
    a("v_lshrrev_b32 %s, 6, v0" % vr(V_TMP))
    a("v_and_b32 %s, 63, v0" % vr(V_LANE))
    a("s_mov_b32 %s, 0x3f803f80" % sr(S_ONES))
    a("v_readfirstlane_b32 %s, %s" % (sr(S_WAVE), vr(V_TMP)))
    a("s_mov_b32 %s, 0x00003f80" % sr(S_SEL0))
    a("s_mov_b32 %s, 0x3f800000" % sr(S_SEL1))
    a.c("---- per-lane LDS addresses ----")
    t0, t1, t2, t3 = V_TMP, V_TMP + 1, V_TMP + 2, V_TMP + 3
    a("v_and_b32 %s, 15, %s" % (vr(t0), vr(V_LANE)))
    a("v_lshrrev_b32 %s, 4, %s" % (vr(t1), vr(V_LANE)))
    a("v_add_u32 %s, 1, %s" % (vr(t2), vr(t0)))
    a("v_and_b32 %s, 3, %s" % (vr(t3), vr(t2)))
    a("v_sub_u32 %s, %s, %s" % (vr(t2), vr(t2), vr(t3)))
    a("v_lshlrev_b32 %s, 1, %s" % (vr(t2), vr(t2)))
    a("v_mul_u32_u24 %s, %d, %s" % (vr(t3), TCOPY, vr(t3)))
    a("v_add_u32 %s, %s, %s" % (vr(t2), vr(t2), vr(t3)))
    a("v_lshl_add_u32 %s, %s, 4, %s" % (vr(t2), vr(t1), vr(t2)))
    a("s_mul_i32 %s, %s, %d" % (sr(S_T0), sr(S_WAVE), TSZ))
    a("v_add_u32 %s, %s, %s" % (vr(V_T), sr(S_T0), vr(t2)))
    a("s_mul_i32 %s, %s, %d" % (sr(S_T0), sr(S_WAVE), PCH))
    a("s_add_u32 %s, %s, %d" % (sr(S_T0), sr(S_T0), P0))
    a("v_lshlrev_b32 %s, 5, %s" % (vr(t2), vr(t0)))
    a("v_lshl_add_u32 %s, %s, 3, %s" % (vr(t3), vr(t1), vr(t2)))
    a("v_add_u32 %s, %s, %s" % (vr(V_O), sr(S_T0), vr(t3)))
    a("v_lshlrev_b32 %s, 4, %s" % (vr(t3), vr(t1)))
    a("v_sub_u32 %s, %s, %s" % (vr(t3), vr(t3), vr(t2)))
    a("s_add_u32 %s, %s, 480" % (sr(S_T0), sr(S_T0)))
    a("v_add_u32 %s, %s, %s" % (vr(V_P), sr(S_T0), vr(t3)))
    a("v_lshlrev_b32 %s, 3, %s" % (vr(t0), vr(V_LANE)))
    a("s_and_b32 %s, %s, 1" % (sr(S_T0), sr(S_WAVE)))
    a("s_lshl_b32 %s, %s, 9" % (sr(S_T0), sr(S_T0)))
    a("s_lshr_b32 %s, %s, 1" % (sr(S_T1), sr(S_WAVE)))
    a("s_and_b32 %s, %s, 1" % (sr(S_T1), sr(S_T1)))
    a("s_mul_i32 %s, %s, %d" % (sr(S_T1), sr(S_T1), PBUF))
    a("s_add_u32 %s, %s, %d" % (sr(S_T2), sr(S_T1), P0 + 1016))
    a("s_sub_u32 %s, %s, %s" % (sr(S_T2), sr(S_T2), sr(S_T0)))
    a("v_sub_u32 %s, %s, %s" % (vr(V_WM), sr(S_T2), vr(t0)))
    a("s_add_u32 %s, %s, %d" % (sr(S_T2), sr(S_T1), P0))
    a("s_add_u32 %s, %s, %s" % (sr(S_T2), sr(S_T2), sr(S_T0)))
    a("v_add_u32 %s, %s, %s" % (vr(V_OR), sr(S_T2), vr(t0)))
    a("s_add_u32 %s, %s, 1" % (sr(S_T1), sr(S_WAVE)))
    a("s_lshr_b32 %s, %s, 1" % (sr(S_T1), sr(S_T1)))
    a("s_and_b32 %s, %s, 1" % (sr(S_T1), sr(S_T1)))
    a("s_mul_i32 %s, %s, %d" % (sr(S_T1), sr(S_T1), PBUF))
    a("s_add_u32 %s, %s, %d" % (sr(S_T1), sr(S_T1), P0 + 1528))
    a("v_sub_u32 %s, %s, %s" % (vr(V_WP), sr(S_T1), vr(t0)))
    a("s_lshl_b32 %s, %s, 8" % (sr(S_T0), sr(S_WAVE)))
    a("v_lshl_add_u32 %s, %s, 2, %s" % (vr(t0), vr(V_LANE), sr(S_T0)))
    a("s_lshl_b32 %s, %s, 1" % (sr(S_T1), sr(S_CH0)))
    a("v_mul_u32_u24 %s, 1280, %s" % (vr(t1), vr(t0)))
    a("v_add_u32 %s, %s, %s" % (vr(V_TMP + 4), sr(S_T1), vr(t1)))
    a("s_mul_i32 %s, %s, 1280" % (sr(S_T2), sr(S_TYPE)))
    a("s_add_u32 %s, %s, %s" % (sr(S_T2), sr(S_T2), sr(S_T1)))
    a("v_lshl_add_u32 %s, %s, 1, %s" % (vr(V_GO), vr(t1), sr(S_T2)))
    a("s_waitcnt lgkmcnt(0)")
    srd(SRD_O, PTR(15), 2048 * 2560)
    a("s_cmp_eq_u32 %s, 1" % sr(S_TYPE))
    a("s_cbranch_scc1 L_pathB")


V_IN = V_TMP + 4


def write_copies(d_lo, d_mid, d_hi, tmp, imm):
    ad = V_TMP + 5
    for k in range(4):
        a("v_alignbit_b32 %s, %s, %s, 16" % (vr(tmp + k), vr(d_mid + k), vr(d_lo + k)))
    for k in range(4):
        a("v_alignbit_b32 %s, %s, %s, 16" % (vr(tmp + 4 + k), vr(d_hi + k), vr(d_mid + k)))
    a("ds_write_b128 %s, %s offset:%d" % (vr(ad), vr(d_lo, 4), imm))
    a("ds_write_b128 %s, %s offset:%d" % (vr(ad), vr(d_mid, 4), imm + 2 * TCOPY))
    a("ds_write_b128 %s, %s offset:%d" % (vr(ad), vr(tmp, 4), imm + TCOPY))
    a("ds_write_b128 %s, %s offset:%d" % (vr(ad), vr(tmp + 4, 4), imm + 3 * TCOPY))


def write_head(d0, d1, tmp):
    ad = V_TMP + 5
    for k in range(12):
        a("v_mov_b32 %s, 0" % vr(tmp + k))
    a("v_lshlrev_b32 %s, 16, %s" % (vr(tmp + 7), vr(d0)))
    a("v_lshlrev_b32 %s, 16, %s" % (vr(tmp + 10), vr(d0)))
    a("v_alignbit_b32 %s, %s, %s, 16" % (vr(tmp + 11), vr(d1), vr(d0)))
    a("v_mov_b32 %s, 0" % vr(tmp + 12))
    a("v_mov_b32 %s, 0" % vr(tmp + 13))
    a("v_mov_b32 %s, 0" % vr(tmp + 14))
    a("v_mov_b32 %s, %s" % (vr(tmp + 15), vr(d0)))
    a("s_mov_b64 %s, exec" % sr(S_EX, 2))
    a("s_mov_b64 exec, 1")
    for s in range(4):
        a("ds_write_b128 %s, %s offset:%d" % (vr(ad), vr(tmp, 4), s * TCOPY))
    a("ds_write_b128 %s, %s offset:%d" % (vr(ad), vr(tmp, 4), 16))
    a("ds_write_b128 %s, %s offset:%d" % (vr(ad), vr(tmp + 4, 4), TCOPY + 16))
    a("ds_write_b128 %s, %s offset:%d" % (vr(ad), vr(tmp + 12, 4), 2 * TCOPY + 16))
    a("ds_write_b128 %s, %s offset:%d" % (vr(ad), vr(tmp + 8, 4), 3 * TCOPY + 16))
    a("s_mov_b64 exec, %s" % sr(S_EX, 2))


def tbase_addr():
    a("s_mul_i32 %s, %s, %d" % (sr(S_T0), sr(S_WAVE), TSZ))
    a("v_lshl_add_u32 %s, %s, 4, %s" % (vr(V_TMP + 5), vr(V_LANE), sr(S_T0)))


def d_selectors(ptr_idx):
    a("s_lshl_b32 %s, %s, 1" % (sr(S_T0), sr(S_CH0)))
    a("s_add_u32 %s, %s, %s" % (sr(S_T0 + 1), sr(PTR(ptr_idx)), sr(S_T0)))
    a("s_addc_u32 %s, %s, 0" % (sr(S_T0 + 2), sr(PTR(ptr_idx) + 1)))
    a("s_load_dwordx4 s[28:31], %s, 0" % sr(S_T0 + 1, 2))
    a("s_waitcnt lgkmcnt(0)")
    for c in range(8):
        src = 28 + (c >> 1)
        if c & 1:
            a("s_lshr_b32 %s, %s, 16" % (sr(S_D + 2 * c), sr(src)))
            a("s_and_b32 %s, %s, 0xffff0000" % (sr(S_D + 2 * c + 1), sr(src)))
        else:
            a("s_and_b32 %s, %s, 0xffff" % (sr(S_D + 2 * c), sr(src)))
            a("s_lshl_b32 %s, %s, 16" % (sr(S_D + 2 * c + 1), sr(src)))


def path_A():
    a.c("================= path A : H3 =================")
    srd(SRD_X, PTR(1), 2048 * 1280)
    srd(SRD_V, PTR(2), 2048 * 1280)
    srd(SRD_Q, PTR(0), 2048 * 1280)
    a("s_add_u32 %s, %s, %s" % (sr(S_T0), sr(S_CH0), sr(S_WAVE)))
    a("s_lshl_b32 %s, %s, 12" % (sr(S_T0), sr(S_T0)))
    a("s_add_u32 %s, %s, %s" % (sr(SRD_T), sr(PTR(4)), sr(S_T0)))
    a("s_addc_u32 %s, %s, 0" % (sr(SRD_T + 1), sr(PTR(4) + 1)))
    a("s_and_b32 %s, %s, 0xffff" % (sr(SRD_T + 1), sr(SRD_T + 1)))
    a("s_mov_b32 %s, 4096" % sr(SRD_T + 2))
    a("s_mov_b32 %s, 0x00020000" % sr(SRD_T + 3))
    a("s_lshl_b32 %s, %s, 3" % (sr(S_T0), sr(S_CH0)))
    a("s_add_u32 %s, %s, %s" % (sr(S_T0 + 1), sr(PTR(3)), sr(S_T0)))
    a("s_addc_u32 %s, %s, 0" % (sr(S_T0 + 2), sr(PTR(3) + 1)))
    a("s_load_dwordx16 s[24:39], %s, 0" % sr(S_T0 + 1, 2))
    a("v_lshlrev_b32 %s, 4, %s" % (vr(V_TMP), vr(V_LANE)))
    for n in range(4):
        for j in range(3):
            a("buffer_load_dwordx4 %s, %s, %s, 0 offen offset:%d" % (vr(V_S + 12 * n + 4 * j, 4), vr(V_TMP), sr(SRD_T, 4), 1024 * n + 4 * j))
    KH = V_TF
    VV = V_TF + 28
    a("v_subrev_u32 %s, %d, %s" % (vr(V_TMP + 1), 3 * 1280, vr(V_IN)))
    a("s_mov_b64 %s, exec" % sr(S_EX, 2))
    a("s_mov_b64 exec, 1")
    for j in range(3):
        a("buffer_load_dwordx4 %s, %s, %s, 0 offen offset:%d" % (vr(KH + 4 * j, 4), vr(V_TMP + 1), sr(SRD_X, 4), 1280 * j))
    a("s_mov_b64 exec, %s" % sr(S_EX, 2))
    for r in range(4):
        a("buffer_load_dwordx4 %s, %s, %s, 0 offen offset:%d" % (vr(KH + 12 + 4 * r, 4), vr(V_IN), sr(SRD_X, 4), 1280 * r))
    for r in range(4):
        a("buffer_load_dwordx4 %s, %s, %s, 0 offen offset:%d" % (vr(VV + 4 * r, 4), vr(V_IN), sr(SRD_V, 4), 1280 * r))
    for r in range(4):
        a("buffer_load_dwordx4 %s, %s, %s, 0 offen offset:%d" % (vr(V_Q + 4 * r, 4), vr(V_IN), sr(SRD_Q, 4), 1280 * r))
    a("s_waitcnt lgkmcnt(0)")
    for c in range(8):
        for j in range(4):
            src = 24 + 2 * c + (j >> 1)
            dst = S_W + 4 * c + j
            if c & 1:
                if j & 1:
                    a("s_and_b32 %s, %s, 0xffff0000" % (sr(dst), sr(src)))
                else:
                    a("s_lshl_b32 %s, %s, 16" % (sr(dst), sr(src)))
            else:
                if j & 1:
                    a("s_lshr_b32 %s, %s, 16" % (sr(dst), sr(src)))
                else:
                    a("s_and_b32 %s, %s, 0xffff" % (sr(dst), sr(src)))
    d_selectors(5)
    tbase_addr()
    a("s_waitcnt vmcnt(15)")
    write_head(V_S, V_S + 1, V_S + 48)
    for n in range(4):
        write_copies(V_S + 12 * n, V_S + 12 * n + 4, V_S + 12 * n + 8, V_S + 64 + 8 * (n & 1), 32 + 1024 * n)
    a("s_waitcnt vmcnt(4)")
    for j in range(3):
        for d in range(4):
            a("v_mov_b32_dpp %s, %s wave_shr:1 row_mask:0xf bank_mask:0xf" % (vr(KH + 4 * j + d), vr(KH + 16 + 4 * j + d)))
    E = V_S
    PA = V_S + 8
    PB = V_S + 16
    KV = V_S + 24
    for r in range(4):
        def krow(t): return KH + 4 * (r + t)
        for c in range(8):
            a("v_dot2_f32_bf16 %s, %s, %s, 0" % (vr(PA + c), vr(krow(0) + (c >> 1)), sr(S_W + 4 * c + 3)))
        for c in range(8):
            a("v_dot2_f32_bf16 %s, %s, %s, 0" % (vr(PB + c), vr(krow(1) + (c >> 1)), sr(S_W + 4 * c + 2)))
        for t in (2, 3):
            for c in range(8):
                a("v_cvt_pk_bf16_f32 %s, %s, %s" % (vr(E + c), vr(PA + c), vr(PB + c)))
            for c in range(8):
                a("v_dot2_f32_bf16 %s, %s, %s, 0" % (vr(PA + c), vr(E + c), sr(S_ONES)))
            for c in range(8):
                a("v_dot2_f32_bf16 %s, %s, %s, 0" % (vr(PB + c), vr(krow(t) + (c >> 1)), sr(S_W + 4 * c + 3 - t)))
        for c in range(8):
            a("v_cvt_pk_bf16_f32 %s, %s, %s" % (vr(E + c), vr(PA + c), vr(PB + c)))
        for c in range(8):
            a("v_dot2_f32_bf16 %s, %s, %s, 0" % (vr(PA + c), vr(E + c), sr(S_ONES)))
        for c in range(8):
            if c & 1:
                a("v_cvt_pk_bf16_f32 %s, 0, %s" % (vr(E + c), vr(PA + c)))
            else:
                a("v_cvt_pk_bf16_f32 %s, %s, 0" % (vr(E + c), vr(PA + c)))
        for c in range(8):
            a("v_dot2_f32_bf16 %s, %s, %s, 0" % (vr(KV + 8 * r + c), vr(E + c), vr(VV + 4 * r + (c >> 1))))
    a("s_nop 2")
    for c in range(8):
        a("v_cvt_pk_bf16_f32 %s, %s, %s" % (vr(V_X + 2 * c + 1), vr(KV + 8 + c), vr(KV + c)))
    for c in range(8):
        a("v_cvt_pk_bf16_f32 %s, %s, %s" % (vr(V_X + 2 * c), vr(KV + 24 + c), vr(KV + 16 + c)))
    a("s_branch L_conv")


def cmul(d, x, y):
    a("v_pk_mul_f32 %s, %s, %s op_sel_hi:[1,0]" % (vr(d, 2), vr(x, 2), vr(y, 2)))
    a("v_pk_fma_f32 %s, %s, %s, %s op_sel:[1,1,0] op_sel_hi:[0,1,1] neg_lo:[1,0,0]" % (vr(d, 2), vr(x, 2), vr(y, 2), vr(d, 2)))


def path_B():
    a.lab("L_pathB")
    a.c("================= path B : S4D =================")
    srd(SRD_X, PTR(6), 2048 * 1280)
    PRM = V_S
    for k in range(12):
        a("v_mov_b32 %s, 0" % vr(PRM + k))
    a("s_add_u32 %s, %s, %s" % (sr(S_T0), sr(S_CH0), sr(S_WAVE)))
    a("s_lshl_b32 %s, %s, 8" % (sr(S_T1), sr(S_T0)))
    a("v_lshl_add_u32 %s, %s, 1, %s" % (vr(V_TMP), vr(V_LANE), sr(S_T1)))
    for h in range(2):
        for k in range(6):
            a("global_load_short_d16_hi %s, %s, %s offset:%d" % (vr(PRM + 6 * h + k), vr(V_TMP), sr(PTR(7 + k), 2), 128 * h))
    a("s_lshl_b32 %s, %s, 1" % (sr(S_T1), sr(S_T0)))
    a("s_and_b32 %s, %s, -4" % (sr(S_T1), sr(S_T1)))
    a("s_add_u32 %s, %s, %s" % (sr(S_W), sr(PTR(13)), sr(S_T1)))
    a("s_addc_u32 %s, %s, 0" % (sr(S_W + 1), sr(PTR(13) + 1)))
    a("s_load_dword %s, %s, 0" % (sr(S_W + 2), sr(S_W, 2)))
    for r in range(4):
        a("buffer_load_dwordx4 %s, %s, %s, 0 offen offset:%d" % (vr(V_Q + 4 * r, 4), vr(V_IN), sr(SRD_X, 4), 1280 * r))
    a("s_waitcnt lgkmcnt(0)")
    a("s_and_b32 %s, %s, 1" % (sr(S_T0), sr(S_T0)))
    a("s_lshl_b32 %s, %s, 16" % (sr(S_W + 3), sr(S_W + 2)))
    a("s_and_b32 %s, %s, 0xffff0000" % (sr(S_W + 2), sr(S_W + 2)))
    a("s_cmp_eq_u32 %s, 1" % sr(S_T0))
    a("s_cselect_b32 %s, %s, %s" % (sr(S_W + 2), sr(S_W + 2), sr(S_W + 3)))
    d_selectors(14)
    a("s_mov_b32 %s, 0xffff0000" % sr(S_HIMASK))
    a("s_mov_b32 %s, 0x05040100" % sr(S_PERMLO))
    a("s_mov_b32 %s, 0x07060302" % sr(S_PERMHI))
    DT = V_S + 12
    a("v_mov_b32 %s, 0x3fb8aa3b" % vr(DT))
    a("v_mul_f32 %s, %s, %s" % (vr(DT), sr(S_W + 2), vr(DT)))
    a("v_exp_f32 %s, %s" % (vr(DT), vr(DT)))
    a("s_nop 0")
    a("v_cvt_pk_bf16_f32 %s, 0, %s" % (vr(DT), vr(DT)))
    AW = V_TMP + 1
    AR = V_TMP + 2
    a("s_mul_i32 %s, %s, %d" % (sr(S_T0), sr(S_WAVE), TSZ))
    a("v_lshl_add_u32 %s, %s, 2, %s" % (vr(AW), vr(V_LANE), sr(S_T0)))
    a("v_and_b32 %s, 15, %s" % (vr(AR), vr(V_LANE)))
    a("v_mul_u32_u24 %s, %d, %s" % (vr(AR), LROW, vr(AR)))
    a("v_lshrrev_b32 %s, 4, %s" % (vr(V_TMP + 3), vr(V_LANE)))
    a("v_lshl_add_u32 %s, %s, 4, %s" % (vr(AR), vr(V_TMP + 3), vr(AR)))
    a("v_add_u32 %s, %s, %s" % (vr(AR), sr(S_T0), vr(AR)))
    AR2, AI2 = V_S + 13, V_S + 14
    Wv = V_S + 16
    E1 = V_S + 18
    E8 = V_S + 32
    E128 = V_S + 48
    G = V_S + 50
    TA = V_S + 54
    CV = V_S + 62
    FR = V_TF
    KACC = V_ACC
    a("s_waitcnt vmcnt(4)")
    for h in range(2):
        p = PRM + 6 * h
        a.c("---- K-gen half %d ----" % h)
        a("v_mul_f32 %s, %s, %s" % (vr(AR2), vr(DT), vr(p + 0)))
        a("v_mul_f32 %s, %s, %s" % (vr(AI2), vr(DT), vr(p + 1)))
        a("v_mul_f32 %s, 0x3fb8aa3b, %s" % (vr(AR2), vr(AR2)))
        a("v_mul_f32 %s, 0.15915494, %s" % (vr(AI2), vr(AI2)))
        a("v_mul_f32 %s, %s, %s" % (vr(p + 2), vr(DT), vr(p + 2)))
        a("v_mul_f32 %s, %s, %s" % (vr(p + 3), vr(DT), vr(p + 3)))
        cmul(Wv, p + 4, p + 2)
        m = TA
        a("v_max_f32 %s, |%s|, |%s|" % (vr(m), vr(Wv), vr(Wv + 1)))
        for ctl in ("row_shr:1 row_mask:0xf", "row_shr:2 row_mask:0xf", "row_shr:4 row_mask:0xf", "row_shr:8 row_mask:0xf", "row_bcast:15 row_mask:0xa", "row_bcast:31 row_mask:0xc"):
            a("s_nop 1")
            a("v_max_f32_dpp %s, %s, %s %s bank_mask:0xf" % (vr(m), vr(m), vr(m), ctl))
        a("s_nop 1")
        sc = S_SC0 + h
        a("v_readlane_b32 %s, %s, 63" % (sr(sc), vr(m)))
        a("s_nop 3")
        a("s_and_b32 %s, %s, 0x7f800000" % (sr(sc), sr(sc)))
        a("s_sub_u32 %s, 0x7f000000, %s" % (sr(S_T0), sr(sc)))
        a("v_mul_f32 %s, %s, %s" % (vr(Wv), sr(S_T0), vr(Wv)))
        a("v_mul_f32 %s, %s, %s" % (vr(Wv + 1), sr(S_T0), vr(Wv + 1)))
        for dst, x in ((E1, 1.0), (E8, 8.0), (E128, 128.0)):
            lit = {1.0: "1.0", 8.0: "0x41000000", 128.0: "0x43000000"}[x]
            a("v_mul_f32 %s, %s, %s" % (vr(TA), lit, vr(AR2)))
            a("v_mul_f32 %s, %s, %s" % (vr(TA + 1), lit, vr(AI2)))
            a("v_exp_f32 %s, %s" % (vr(TA), vr(TA)))
            a("v_fract_f32 %s, %s" % (vr(TA + 1), vr(TA + 1)))
            a("v_cos_f32 %s, %s" % (vr(TA + 2), vr(TA + 1)))
            a("v_sin_f32 %s, %s" % (vr(TA + 3), vr(TA + 1)))
            a("s_nop 0")
            a("v_mul_f32 %s, %s, %s" % (vr(dst), vr(TA), vr(TA + 2)))
            a("v_mul_f32 %s, %s, %s" % (vr(dst + 1), vr(TA), vr(TA + 3)))
        if h == 1:
            a("s_waitcnt lgkmcnt(0)")
        cvi = [0]
        def putR(j, pair):
            c = CV + (cvi[0] & 3); cvi[0] += 1
            a("v_cvt_pk_f16_f32 %s, %s, -%s" % (vr(c), vr(pair), vr(pair + 1)))
            a("ds_write_b32 %s, %s offset:%d" % (vr(AW), vr(c), RBASE + j * LROW))
        def putL(row, pair):
            c = CV + (cvi[0] & 3); cvi[0] += 1
            a("v_cvt_pk_f16_f32 %s, %s, %s" % (vr(c), vr(pair), vr(pair + 1)))
            a("ds_write_b32 %s, %s offset:%d" % (vr(AW), vr(c), row * LROW))
        a("v_mov_b32 %s, 0x3c00" % vr(CV + 3))
        a("ds_write_b32 %s, %s offset:%d" % (vr(AW), vr(CV + 3), RBASE))
        def Rr(j): return E8 + 2 * (j - 1)
        putR(1, Rr(1))
        for j in range(2, 9):
            cmul(Rr(j), Rr(j // 2), Rr(j - j // 2))
            putR(j, Rr(j))
        for j in range(9, 16):
            t = TA + 2 * (j & 1)
            cmul(t, Rr(8), Rr(j - 8))
            putR(j, t)
        def Ep(phi): return E1 + 2 * (phi - 1)
        for phi in range(2, 8):
            cmul(Ep(phi), Ep(phi // 2), Ep(phi - phi // 2))
        cur = Wv
        for i in range(17):
            if i < 2:
                rows = [(8 * i + phi, phi) for phi in range(8)]
            elif i < 4:
                rows = [(16 + 4 * (i - 2) + f, 2 * f) for f in range(4)]
            elif i < 8:
                rows = [(24 + 2 * (i - 4) + f, 4 * f) for f in range(2)]
            else:
                rows = [(32 + (i - 8), 0)]
            nxt = G + 2 * (i & 1)
            if i < 16:
                cmul(nxt, cur, E128)
            for n, (row, phi) in enumerate(rows):
                if phi == 0:
                    putL(row, cur)
                else:
                    t = TA + 2 * (n & 3)
                    cmul(t, cur, Ep(phi))
                    putL(row, t)
            cur = nxt
        a("s_waitcnt lgkmcnt(0)")
        for kp in range(4):
            a("ds_read_b128 %s, %s offset:%d" % (vr(FR + 4 * kp, 4), vr(AR), RBASE + 64 * kp))
        for tau in range(3):
            for kp in range(4):
                a("ds_read_b128 %s, %s offset:%d" % (vr(FR + 16 + 16 * tau + 4 * kp, 4), vr(AR), 16 * tau * LROW + 64 * kp))
            if tau == 1:
                a("s_waitcnt lgkmcnt(4)")
                for kp in range(4):
                    acc = KACC + 12 * h
                    a("v_mfma_f32_16x16x32_f16 %s, %s, %s, %s" % (vr(acc, 4), vr(FR + 16 + 4 * kp, 4), vr(FR + 4 * kp, 4), "0" if kp == 0 else vr(acc, 4)))
        a("s_waitcnt lgkmcnt(0)")
        for tau in (1, 2):
            for kp in range(4):
                acc = KACC + 12 * h + 4 * tau
                a("v_mfma_f32_16x16x32_f16 %s, %s, %s, %s" % (vr(acc, 4), vr(FR + 16 + 16 * tau + 4 * kp, 4), vr(FR + 4 * kp, 4), "0" if kp == 0 else vr(acc, 4)))
    j, g = V_TMP, V_TMP + 3
    A0, A1, A1b, A2 = V_S, V_S + 1, V_S + 2, V_S + 3
    a("v_and_b32 %s, 15, %s" % (vr(j), vr(V_LANE)))
    a("s_mul_i32 %s, %s, %d" % (sr(S_T1), sr(S_WAVE), PCH))
    a("s_add_u32 %s, %s, %d" % (sr(S_T1), sr(S_T1), P0 + PBUF))
    a("v_lshrrev_b32 %s, 1, %s" % (vr(A0), vr(g)))
    a("v_lshlrev_b32 %s, 7, %s" % (vr(A0), vr(A0)))
    a("v_and_b32 %s, 1, %s" % (vr(A1), vr(g)))
    a("v_lshl_add_u32 %s, %s, 2, %s" % (vr(A0), vr(A1), vr(A0)))
    a("v_lshl_add_u32 %s, %s, 3, %s" % (vr(A0), vr(j), vr(A0)))
    a("v_lshl_add_u32 %s, %s, 1, %s" % (vr(A0), vr(A0), sr(S_T1)))
    a("v_lshlrev_b32 %s, 6, %s" % (vr(A2), vr(g)))
    a("v_cmp_gt_u32 vcc, 2, %s" % vr(g))
    a("v_lshlrev_b32 %s, 2, %s" % (vr(A1), vr(j)))
    a("v_lshlrev_b32 %s, 1, %s" % (vr(A1b), vr(j)))
    a("v_cndmask_b32 %s, %s, %s, vcc" % (vr(A1), vr(A1b), vr(A1)))
    a("v_add_u32 %s, %s, %s" % (vr(A1), vr(A1), vr(A2)))
    a("v_add_u32 %s, 256, %s" % (vr(A1), vr(A1)))
    a("v_mov_b32 %s, 32" % vr(A1b))
    a("v_cndmask_b32 %s, %s, 2, vcc" % (vr(A1b), vr(A1b)))
    a("v_add_u32 %s, %s, %s" % (vr(A1b), vr(A1b), vr(A1)))
    a("v_lshl_add_u32 %s, %s, 1, %s" % (vr(A1), vr(A1), sr(S_T1)))
    a("v_lshl_add_u32 %s, %s, 1, %s" % (vr(A1b), vr(A1b), sr(S_T1)))
    a("v_add3_u32 %s, %s, %s, %s" % (vr(A2), vr(A2), vr(j), "64"))
    a("v_add_u32 %s, 448, %s" % (vr(A2), vr(A2)))
    a("v_lshl_add_u32 %s, %s, 1, %s" % (vr(A2), vr(A2), sr(S_T1)))
    a("s_nop 7")
    for k in range(12):
        a("v_mul_f32 %s, %s, %s" % (vr(KACC + k), sr(S_SC0), vr(KACC + k)))
    for k in range(12):
        a("v_fma_f32 %s, %s, %s, %s" % (vr(KACC + k), sr(S_SC1), vr(KACC + 12 + k), vr(KACC + k)))
    for k in range(6):
        a("v_cvt_pk_bf16_f32 %s, %s, %s" % (vr(KACC + 12 + k), vr(KACC + 2 * k), vr(KACC + 2 * k + 1)))
    pk = KACC + 12
    a("ds_write_b16 %s, %s offset:0" % (vr(A0), vr(pk)))
    a("ds_write_b16_d16_hi %s, %s offset:2" % (vr(A0), vr(pk)))
    a("ds_write_b16 %s, %s offset:4" % (vr(A0), vr(pk + 1)))
    a("ds_write_b16_d16_hi %s, %s offset:6" % (vr(A0), vr(pk + 1)))
    a("ds_write_b16 %s, %s offset:0" % (vr(A1), vr(pk + 2)))
    a("ds_write_b16_d16_hi %s, %s offset:2" % (vr(A1), vr(pk + 2)))
    a("ds_write_b16 %s, %s offset:0" % (vr(A1b), vr(pk + 3)))
    a("ds_write_b16_d16_hi %s, %s offset:2" % (vr(A1b), vr(pk + 3)))
    a("ds_write_b16 %s, %s offset:0" % (vr(A2), vr(pk + 4)))
    a("ds_write_b16_d16_hi %s, %s offset:32" % (vr(A2), vr(pk + 4)))
    a("ds_write_b16 %s, %s offset:64" % (vr(A2), vr(pk + 5)))
    a("ds_write_b16_d16_hi %s, %s offset:96" % (vr(A2), vr(pk + 5)))
    a.c("---- expand the staircase into the four shifted copies ----")
    GA = V_S + 8
    a("v_lshlrev_b32 %s, 3, %s" % (vr(V_TMP), vr(V_LANE)))
    for e in range(11):
        a("v_add_u32 %s, %d, %s" % (vr(GA + e), e, vr(V_TMP)))
    for e in range(11):
        a("v_cvt_f32_u32 %s, %s" % (vr(GA + 12 + e), vr(GA + e)))
    for e in range(11):
        a("v_cvt_pk_bf16_f32 %s, %s, 0" % (vr(GA + 12 + e), vr(GA + 12 + e)))
    for e in range(11):
        a("v_subrev_u32 %s, 0x4280, %s" % (vr(GA + 12 + e), vr(GA + 12 + e)))
    for e in range(11):
        a("v_cmp_gt_u32 vcc, 128, %s" % vr(GA + e))
        a("s_nop 1")
        a("v_cndmask_b32 %s, %s, %s, vcc" % (vr(GA + e), vr(GA + 12 + e), vr(GA + e)))
    for e in range(11):
        a("v_lshl_add_u32 %s, %s, 1, %s" % (vr(GA + e), vr(GA + e), sr(S_T1)))
    tbase_addr()
    D = V_TF
    a("v_lshl_add_u32 %s, %s, 2, %s" % (vr(V_TMP + 1), vr(V_LANE), sr(S_T1)))
    a("v_lshl_add_u32 %s, %s, 1, %s" % (vr(V_TMP + 2), vr(V_LANE), sr(S_T1)))
    a("s_waitcnt lgkmcnt(0)")
    for e in range(11):
        if e & 1:
            a("ds_read_u16_d16_hi %s, %s" % (vr(D + 8 + (e >> 1)), vr(GA + e)))
        else:
            a("ds_read_u16 %s, %s" % (vr(D + (e >> 1)), vr(GA + e)))
    a("ds_read_b32 %s, %s offset:%d" % (vr(D + 16), vr(V_TMP + 1), 2 * 384))
    a("ds_read_b32 %s, %s offset:%d" % (vr(D + 17), vr(V_TMP + 1), 2 * 384 + 4))
    for n in (2, 3):
        o = 2 * (512 + 64 * (n - 2))
        a("ds_read_u16 %s, %s offset:%d" % (vr(D + 18 + 2 * (n - 2)), vr(V_TMP + 2), o))
        a("ds_read_u16 %s, %s offset:%d" % (vr(D + 19 + 2 * (n - 2)), vr(V_TMP + 2), o + 2))
    a("s_waitcnt lgkmcnt(0)")
    for k in range(5):
        a("v_and_or_b32 %s, %s, %s, %s" % (vr(D + k), vr(D + 8 + k), sr(S_HIMASK), vr(D + k)))
    def quads():
        for k in range(4):
            a("v_mov_b32 %s, %s" % (vr(D + 8 + k), vr(D + 1 + k)))
        for k in range(4):
            a("v_mov_b32 %s, %s" % (vr(D + 12 + k), vr(D + 2 + k)))
    quads()
    write_head(D, D + 1, V_S + 40)
    write_copies(D, D + 8, D + 12, V_S + 64, 32)
    D2 = D + 24
    a("s_mov_b32 %s, 0x01000100" % sr(S_T0))
    a("s_mov_b32 %s, 0x03020302" % sr(S_T2))
    a("v_perm_b32 %s, %s, %s, %s" % (vr(D2), vr(D + 16), vr(D + 16), sr(S_T0)))
    a("v_mov_b32 %s, %s" % (vr(D2 + 1), vr(D + 16)))
    a("v_perm_b32 %s, %s, %s, %s" % (vr(D2 + 2), vr(D + 16), vr(D + 16), sr(S_T2)))
    a("v_perm_b32 %s, %s, %s, %s" % (vr(D2 + 3), vr(D + 17), vr(D + 17), sr(S_T0)))
    for k, src in enumerate((1, 2, 3, 3)):
        a("v_mov_b32 %s, %s" % (vr(D2 + 4 + k), vr(D2 + src)))
    for k, src in enumerate((2, 3, 3, 3)):
        a("v_mov_b32 %s, %s" % (vr(D2 + 8 + k), vr(D2 + src)))
    write_copies(D2, D2 + 4, D2 + 8, V_S + 72, 32 + 1024)
    a("v_and_b32 %s, 1, %s" % (vr(V_TMP), vr(V_LANE)))
    a("v_cmp_eq_u32 vcc, 0, %s" % vr(V_TMP))
    for n in (2, 3):
        D3 = D + 36 + 12 * (n - 2)
        ra, rb_ = D + 18 + 2 * (n - 2), D + 19 + 2 * (n - 2)
        a("v_lshl_or_b32 %s, %s, 16, %s" % (vr(D3), vr(ra), vr(ra)))
        a("v_lshl_or_b32 %s, %s, 16, %s" % (vr(D3 + 3), vr(rb_), vr(rb_)))
        a("v_cndmask_b32 %s, %s, %s, vcc" % (vr(ra), vr(rb_), vr(ra)))
        a("v_mov_b32 %s, %s" % (vr(D3 + 1), vr(D3)))
        a("v_lshl_or_b32 %s, %s, 16, %s" % (vr(D3 + 2), vr(rb_), vr(ra)))
        for k, src in enumerate((1, 2, 3, 3)):
            a("v_mov_b32 %s, %s" % (vr(D3 + 4 + k), vr(D3 + src)))
        for k, src in enumerate((2, 3, 3, 3)):
            a("v_mov_b32 %s, %s" % (vr(D3 + 8 + k), vr(D3 + src)))
        write_copies(D3, D3 + 4, D3 + 8, V_S + 64 + 8 * (n & 1), 32 + 1024 * n)
    a("s_waitcnt vmcnt(0)")
    for c in range(8):
        sel = S_PERMHI if c & 1 else S_PERMLO
        d = c >> 1
        a("v_perm_b32 %s, %s, %s, %s" % (vr(V_X + 2 * c), vr(V_Q + 8 + d), vr(V_Q + 12 + d), sr(sel)))
        a("v_perm_b32 %s, %s, %s, %s" % (vr(V_X + 2 * c + 1), vr(V_Q + d), vr(V_Q + 4 + d), sr(sel)))


def p_write(addr):
    for c in range(8):
        a("ds_write_b64 %s, %s offset:%d" % (vr(addr), vr(V_X + 2 * c, 2), c * PCH))


def owner_reads():
    for c in range(8):
        a("ds_read_b64 %s, %s offset:%d" % (vr(V_S + 2 * c, 2), vr(V_OR), c * PCH))
    a("s_waitcnt lgkmcnt(0)")


def owner_math(tag):
    Y = V_S
    T1 = V_S + 16
    T2 = V_S + 24
    O = V_S + 32
    a("s_cmp_eq_u32 %s, 1" % sr(S_TYPE))
    a("s_cbranch_scc1 L_epiB%s" % tag)
    a("s_waitcnt vmcnt(0)")
    for r in range(4):
        xi = 1 - (r >> 1)
        xh = 1 - (r & 1)
        ysel = S_SEL1 if r & 1 else S_SEL0
        for c in range(8):
            a("v_dot2_f32_bf16 %s, %s, %s, 0" % (vr(T1 + c), vr(V_X + 2 * c + xi), sr(S_D + 2 * c + xh)))
        for c in range(8):
            a("v_cvt_pk_bf16_f32 %s, 0, %s" % (vr(T1 + c), vr(T1 + c)))
        for c in range(8):
            a("v_dot2_f32_bf16 %s, %s, %s, %s" % (vr(T2 + c), vr(Y + 2 * c + (r >> 1)), sr(ysel), vr(T1 + c)))
        for c in range(8):
            if c & 1:
                a("v_cvt_pk_bf16_f32 %s, 0, %s" % (vr(T2 + c), vr(T2 + c)))
            else:
                a("v_cvt_pk_bf16_f32 %s, %s, 0" % (vr(T2 + c), vr(T2 + c)))
        for c in range(8):
            a("v_dot2_f32_bf16 %s, %s, %s, 0" % (vr(T1 + c), vr(T2 + c), vr(V_Q + 4 * r + (c >> 1))))
        a("s_nop 1")
        for d in range(4):
            a("v_cvt_pk_bf16_f32 %s, %s, %s" % (vr(O + 4 * r + d), vr(T1 + 2 * d), vr(T1 + 2 * d + 1)))
    a("s_branch L_epiS%s" % tag)
    a.lab("L_epiB%s" % tag)
    for r in range(4):
        ysel = S_SEL1 if r & 1 else S_SEL0
        for c in range(8):
            a("v_dot2_f32_bf16 %s, %s, %s, 0" % (vr(T1 + c), vr(V_Q + 4 * r + (c >> 1)), sr(S_D + 2 * c + (c & 1))))
        for c in range(8):
            a("v_cvt_pk_bf16_f32 %s, 0, %s" % (vr(T1 + c), vr(T1 + c)))
        for c in range(8):
            a("v_dot2_f32_bf16 %s, %s, %s, %s" % (vr(T2 + c), vr(Y + 2 * c + (r >> 1)), sr(ysel), vr(T1 + c)))
        a("s_nop 1")
        for d in range(4):
            a("v_cvt_pk_bf16_f32 %s, %s, %s" % (vr(O + 4 * r + d), vr(T2 + 2 * d), vr(T2 + 2 * d + 1)))
    a.lab("L_epiS%s" % tag)
    a("s_movk_i32 %s, 5120" % sr(S_T0))
    a("buffer_store_dwordx4 %s, %s, %s, 0 offen" % (vr(O, 4), vr(V_GO), sr(SRD_O, 4)))
    a("buffer_store_dwordx4 %s, %s, %s, 0 offen offset:2560" % (vr(O + 4, 4), vr(V_GO), sr(SRD_O, 4)))
    a("buffer_store_dwordx4 %s, %s, %s, %s offen" % (vr(O + 8, 4), vr(V_GO), sr(SRD_O, 4), sr(S_T0)))
    a("buffer_store_dwordx4 %s, %s, %s, %s offen offset:2560" % (vr(O + 12, 4), vr(V_GO), sr(SRD_O, 4), sr(S_T0)))


DEBUG_T = len(sys.argv) > 2 and sys.argv[2] == "dumpT"
def dump_T():
    a("s_load_dwordx2 s[26:27], s[0:1], 136")
    a("s_waitcnt lgkmcnt(0)")
    a("s_mul_i32 %s, %s, 640" % (sr(S_T0), sr(S_TYPE)))
    a("s_add_u32 %s, %s, %s" % (sr(S_T0), sr(S_T0), sr(S_CH0)))
    a("s_add_u32 %s, %s, %s" % (sr(S_T0), sr(S_T0), sr(S_WAVE)))
    a("s_lshl_b32 %s, %s, 15" % (sr(S_T0), sr(S_T0)))
    a("v_lshl_add_u32 %s, %s, 4, %s" % (vr(V_S), vr(V_LANE), sr(S_T0)))
    tbase_addr()
    for i in range(17):
        a("ds_read_b128 %s, %s offset:%d" % (vr(V_S + 4, 4), vr(V_TMP + 5), 1024 * i))
        a("s_waitcnt lgkmcnt(0)")
        a("global_store_dwordx4 %s, %s, s[26:27]" % (vr(V_S), vr(V_S + 4, 4)))
        a("s_waitcnt vmcnt(0)")
        a("v_add_u32 %s, 1024, %s" % (vr(V_S), vr(V_S)))
    a("s_mul_i32 %s, %s, %d" % (sr(S_T1), sr(S_WAVE), PCH))
    a("s_add_u32 %s, %s, %d" % (sr(S_T1), sr(S_T1), P0 + PBUF))
    a("v_lshl_add_u32 %s, %s, 4, %s" % (vr(V_TMP + 5), vr(V_LANE), sr(S_T1)))
    for i in range(2):
        a("ds_read_b128 %s, %s offset:%d" % (vr(V_S + 4, 4), vr(V_TMP + 5), 1024 * i))
        a("s_waitcnt lgkmcnt(0)")
        a("global_store_dwordx4 %s, %s, s[26:27]" % (vr(V_S), vr(V_S + 4, 4)))
        a("s_waitcnt vmcnt(0)")
        a("v_add_u32 %s, 1024, %s" % (vr(V_S), vr(V_S)))


def conv():
    a.lab("L_conv")
    if DEBUG_T:
        dump_T()
    a.c("================= convolution =================")
    a("s_cmp_lt_u32 %s, 2" % sr(S_WAVE))
    a("s_cbranch_scc0 L_i1")
    p_write(V_WM)
    a.lab("L_i1")
    a("s_cmp_eq_u32 %s, 7" % sr(S_WAVE))
    a("s_cbranch_scc0 L_i2")
    a("v_mov_b32 %s, 0" % vr(V_S))
    a("v_mov_b32 %s, 0" % vr(V_S + 1))
    for c in range(8):
        a("ds_write_b64 %s, %s offset:%d" % (vr(V_WP), vr(V_S, 2), c * PCH))
    a.lab("L_i2")
    a("s_waitcnt lgkmcnt(0)")
    a("s_barrier")

    def reads(p, r, buf):
        out = []
        par = p & 1
        for dl in range(2):
            out.append("ds_read_b128 %s, %s offset:%d" % (vr(V_PF + 8 * buf + 4 * dl, 4), vr(V_P), par * PBUF + 512 * (1 - dl) + 64 * r))
        for u in range(8 - 2 * p):
            for hh in range(2):
                out.append("ds_read_b64 %s, %s offset:%d" % (vr(V_TF + 32 * buf + 4 * u + 2 * hh, 2), vr(V_T), 512 * u + 64 * r + 8 * hh))
        return out

    def mfmas(p, r, buf):
        out = []
        for u in range(8 - 2 * p):
            for dl in range(2):
                c = u + 2 * p + dl
                if c > 7:
                    continue
                first = (p == 0 and r == 0 and (dl == 0 or False))
                out.append((c, u, dl))
        return out

    touched = set()
    for p in range(4):
        a.c("---- super-step %d ----" % p)
        if p > 0:
            a("s_lshr_b32 %s, %s, 1" % (sr(S_T0), sr(S_WAVE)))
            a("s_cmp_eq_u32 %s, %d" % (sr(S_T0), p - 1))
            a("s_cbranch_scc0 L_or%d" % p)
            owner_reads()
            a.lab("L_or%d" % p)
            a("s_barrier")
        for s in reads(p, 0, 0):
            a(s)
        if p < 3:
            a("s_lshr_b32 %s, %s, 1" % (sr(S_T0), sr(S_WAVE)))
            a("s_cmp_eq_u32 %s, %d" % (sr(S_T0), p + 1))
            a("s_cbranch_scc0 L_pw%d" % p)
            p_write(V_WM)
            a.lab("L_pw%d" % p)
            a("s_cmp_eq_u32 %s, %d" % (sr(S_WAVE), 2 * p + 1))
            a("s_cbranch_scc0 L_pv%d" % p)
            p_write(V_WP)
            a.lab("L_pv%d" % p)
        if p > 0:
            a("s_lshr_b32 %s, %s, 1" % (sr(S_T0), sr(S_WAVE)))
            a("s_cmp_eq_u32 %s, %d" % (sr(S_T0), p - 1))
            a("s_cbranch_scc0 L_om%d" % p)
            owner_math(str(p))
            a.lab("L_om%d" % p)
        for r in range(8):
            buf = r & 1
            a("s_waitcnt lgkmcnt(0)")
            nxt = reads(p, r + 1, buf ^ 1) if r < 7 else []
            ms = mfmas(p, r, buf)
            per = -(-len(nxt) // max(1, len(ms) - 1)) if nxt else 0
            for i, (c, u, dl) in enumerate(ms):
                acc = V_ACC + 4 * c
                src = vr(acc, 4) if c in touched else "0"
                touched.add(c)
                a("v_mfma_f32_16x16x32_bf16 %s, %s, %s, %s" % (vr(acc, 4), vr(V_TF + 32 * buf + 4 * u, 4), vr(V_PF + 8 * buf + 4 * dl, 4), src))
                for s in nxt[i * per:(i + 1) * per]:
                    a(s)
        a("s_nop 7")
        a("s_nop 1")
        for dl in range(2):
            acc = V_ACC + 4 * (2 * p + dl)
            a("v_cvt_pk_bf16_f32 %s, %s, %s" % (vr(acc), vr(acc), vr(acc + 1)))
            a("v_cvt_pk_bf16_f32 %s, %s, %s" % (vr(acc + 1), vr(acc + 2), vr(acc + 3)))
            a("ds_write_b64 %s, %s offset:%d" % (vr(V_O), vr(acc, 2), (p & 1) * PBUF + 512 * dl))
        a("s_waitcnt lgkmcnt(0)")
        a("s_barrier")
    a("s_cmp_lt_u32 %s, 6" % sr(S_WAVE))
    a("s_cbranch_scc1 L_end")
    owner_reads()
    owner_math("4")


header()
prologue_common()
path_A()
path_B()
conv()
footer()
out = sys.argv[1] if len(sys.argv) > 1 else "concat_heads__ssm_conv_h3__ssm_conv_s4__prompt.s"
open(out, "w").write(a.text())
print("wrote", out, len(a.l), "lines")
```

```python
import os
import sys

NAME = "concat_heads__ssm_conv_h3__ssm_conv_s4__prompt_kernel"
MODE = sys.argv[2] if len(sys.argv) > 2 else ""
STAMPS = MODE == "stamps"
EXACT = int(os.environ.get("EXACT", "1"))
SPREAD = int(os.environ.get("SPREAD", "1"))
RPM = int(os.environ.get("RPM", "2"))
FILL = int(os.environ.get("FILL", "2"))

TCOPY = 4160
TSZ = 16896
P0 = 8 * TSZ
PCH = 1536
PBUF = 8 * PCH
LDS_TOTAL = P0 + 2 * PBUF
LROW = 528
KBUF = 16 * LROW


class A:
    def __init__(self):
        self.l = []

    def __call__(self, s):
        self.l.append("    " + s)

    def lab(self, s):
        self.l.append(s + ":")

    def c(self, s):
        self.l.append("    ; " + s)

    def text(self):
        return "\n".join(self.l) + "\n"


def vr(b, n=1):
    return "v%d" % b if n == 1 else "v[%d:%d]" % (b, b + n - 1)


def sr(b, n=1):
    return "s%d" % b if n == 1 else "s[%d:%d]" % (b, b + n - 1)


a = A()

S_TYPE = 3
S_PTR = 4
def PTR(i): return S_PTR + 2 * i
S_WAVE = 40
S_COL = 41
S_I = 42
S_CH0 = 43
SRD_X = 44
SRD_V = 48
SRD_Q = 52
SRD_T = 56
SRD_O = 60
S_W = 64
S_D = 4
S_ONES = 96
S_T0 = 99
S_T1 = 100
S_T2 = 101
S_EX = 20
S_SC = 22
S_IN1 = 23
S_OUT1 = 32
S_K0 = 26
S_K1 = 27

V_LANE = 1
V_T = 2
V_P = 3
V_O = 4
V_WM = 5
V_OR = 6
V_GO = 7
V_IN = 8
V_TMP = 9
V_X = 16
V_ACC = 48
V_TF = 80
V_PF = 144
V_S = 160
V_Q = V_S + 78
V_ST = 254
NVGPR = 256


def stamp_n(n):
    if not STAMPS:
        return
    a("s_memrealtime s[36:37]")
    a("s_waitcnt lgkmcnt(0)")
    a("v_writelane_b32 %s, s36, %d" % (vr(V_ST), n))
    a("s_memtime s[36:37]")
    a("s_waitcnt lgkmcnt(0)")
    a("v_writelane_b32 %s, s36, %d" % (vr(V_ST), n + 16))


def stamp_dump():
    if not STAMPS:
        return
    a("s_waitcnt vmcnt(0)")
    stamp_n(15)
    a("s_load_dwordx2 s[36:37], s[0:1], 136")
    a("s_lshl_b32 s38, s2, 3")
    a("s_add_u32 s38, s38, %s" % sr(S_WAVE))
    a("s_lshl_b32 s38, s38, 8")
    a("v_lshl_add_u32 %s, %s, 2, s38" % (vr(V_ST + 1), vr(V_LANE)))
    a("s_waitcnt lgkmcnt(0)")
    a("global_store_dword %s, %s, s[36:37]" % (vr(V_ST + 1), vr(V_ST)))


def header():
    a.l.append("; fused H3 (shift-SSM * v -> long conv -> gate) and S4D (kernel generation + long conv), one launch")
    a.l.append("; @launch grid=(256,1,1) block=(512,1,1) lds=%d" % LDS_TOTAL)
    a.l.append('.amdgcn_target "amdgcn-amd-amdhsa--gfx950"')
    a.l.append(".text")
    a.l.append(".globl " + NAME)
    a.l.append(".p2align 8")
    a.l.append(".type %s,@function" % NAME)
    a.lab(NAME)


def footer():
    a.lab("L_end")
    a("s_endpgm")
    a.l.append('.section .rodata,"a"')
    a.l.append(".p2align 6")
    a.l.append(".amdhsa_kernel " + NAME)
    a.l.append("  .amdhsa_next_free_vgpr %d" % NVGPR)
    a.l.append("  .amdhsa_next_free_sgpr 102")
    a.l.append("  .amdhsa_accum_offset %d" % NVGPR)
    a.l.append("  .amdhsa_group_segment_fixed_size 0")
    a.l.append("  .amdhsa_kernarg_size 144")
    a.l.append("  .amdhsa_user_sgpr_count 2")
    a.l.append("  .amdhsa_user_sgpr_kernarg_segment_ptr 1")
    a.l.append("  .amdhsa_system_sgpr_workgroup_id_x 1")
    a.l.append(".end_amdhsa_kernel")


def srd(d, plo, nbytes):
    a("s_mov_b32 %s, %s" % (sr(d), sr(plo)))
    a("s_and_b32 %s, %s, 0xffff" % (sr(d + 1), sr(plo + 1)))
    a("s_mov_b32 %s, 0x%x" % (sr(d + 2), nbytes))
    a("s_mov_b32 %s, 0x00020000" % sr(d + 3))


SLOTS = [
    [0x00, 0x02, 0x04, 0x05, 0x06, 0x07, 0x08, 0x09],
    [0x01, 0x03, 0x24, 0x25, 0x26, 0x27, 0x28, 0x29],
    [0x20, 0x22, 0x10, 0x12, 0x14, 0x16, 0x18, 0xff],
    [0x21, 0x23, 0x11, 0x13, 0x15, 0x17, 0x19, 0xff],
]


def prologue_common():
    a.c("---- decode workgroup -> (type, column, index) ----")
    a("s_cmp_ge_u32 s2, 256")
    a("s_cbranch_scc1 L_end")
    a("s_load_dwordx16 %s, s[0:1], 0" % sr(S_PTR, 16))
    a("s_load_dwordx16 %s, s[0:1], 64" % sr(S_PTR + 16, 16))
    a("s_and_b32 %s, s2, 7" % sr(S_T0))
    a("s_lshr_b32 %s, s2, 3" % sr(S_T1))
    a("s_and_b32 %s, %s, 7" % (sr(S_I), sr(S_T1)))
    a("s_lshr_b32 %s, %s, 3" % (sr(S_T1), sr(S_T1)))
    def pk(t, lo): return sum(t[lo + i] << (8 * i) for i in range(4))
    a("s_mov_b32 %s, 0x%x" % (sr(S_COL), pk(SLOTS[0], 0)))
    a("s_mov_b32 %s, 0x%x" % (sr(S_T2), pk(SLOTS[0], 4)))
    for k in (1, 2, 3):
        a("s_cmp_eq_u32 %s, %d" % (sr(S_T1), k))
        a("s_cselect_b32 %s, 0x%x, %s" % (sr(S_COL), pk(SLOTS[k], 0), sr(S_COL)))
        a("s_cselect_b32 %s, 0x%x, %s" % (sr(S_T2), pk(SLOTS[k], 4), sr(S_T2)))
    a("s_cmp_ge_u32 %s, 4" % sr(S_T0))
    a("s_cselect_b32 %s, %s, %s" % (sr(S_COL), sr(S_T2), sr(S_COL)))
    a("s_and_b32 %s, %s, 3" % (sr(S_T0), sr(S_T0)))
    a("s_lshl_b32 %s, %s, 3" % (sr(S_T0), sr(S_T0)))
    a("s_lshr_b32 %s, %s, %s" % (sr(S_COL), sr(S_COL), sr(S_T0)))
    a("s_and_b32 %s, %s, 0xff" % (sr(S_COL), sr(S_COL)))
    a("s_cmp_eq_u32 %s, 0xff" % sr(S_COL))
    a("s_cbranch_scc1 L_end")
    a("s_lshr_b32 %s, %s, 4" % (sr(S_TYPE), sr(S_COL)))
    a("s_and_b32 %s, %s, 15" % (sr(S_COL), sr(S_COL)))
    a("s_lshl_b32 %s, %s, 6" % (sr(S_CH0), sr(S_COL)))
    a("s_lshl_b32 %s, %s, 3" % (sr(S_T0), sr(S_I)))
    a("s_add_u32 %s, %s, %s" % (sr(S_CH0), sr(S_CH0), sr(S_T0)))
    a("v_lshrrev_b32 %s, 6, v0" % vr(V_TMP))
    a("v_and_b32 %s, 63, v0" % vr(V_LANE))
    a("s_mov_b32 %s, 0x3f803f80" % sr(S_ONES))
    a("v_readfirstlane_b32 %s, %s" % (sr(S_WAVE), vr(V_TMP)))
    a("s_cmp_eq_u32 %s, 2" % sr(S_TYPE))
    a("s_cbranch_scc1 L_helper")
    a.c("---- per-lane addresses ----")
    t0, t1, t2, t3 = V_TMP, V_TMP + 1, V_TMP + 2, V_TMP + 3
    a("v_and_b32 %s, 15, %s" % (vr(t0), vr(V_LANE)))
    a("v_lshrrev_b32 %s, 4, %s" % (vr(t1), vr(V_LANE)))
    a("v_add_u32 %s, 1, %s" % (vr(t2), vr(t0)))
    a("v_and_b32 %s, 3, %s" % (vr(t3), vr(t2)))
    a("v_sub_u32 %s, %s, %s" % (vr(t2), vr(t2), vr(t3)))
    a("v_lshlrev_b32 %s, 1, %s" % (vr(t2), vr(t2)))
    a("v_mul_u32_u24 %s, %d, %s" % (vr(t3), TCOPY, vr(t3)))
    a("v_add_u32 %s, %s, %s" % (vr(t2), vr(t2), vr(t3)))
    a("v_lshl_add_u32 %s, %s, 4, %s" % (vr(t2), vr(t1), vr(t2)))
    a("s_mul_i32 %s, %s, %d" % (sr(S_T0), sr(S_WAVE), TSZ))
    a("v_add_u32 %s, %s, %s" % (vr(V_T), sr(S_T0), vr(t2)))
    a("s_mul_i32 %s, %s, %d" % (sr(S_T0), sr(S_WAVE), PCH))
    a("s_add_u32 %s, %s, %d" % (sr(S_T0), sr(S_T0), P0))
    a("v_lshlrev_b32 %s, 5, %s" % (vr(t2), vr(t0)))
    a("v_lshl_add_u32 %s, %s, 3, %s" % (vr(t3), vr(t1), vr(t2)))
    a("v_add_u32 %s, %s, %s" % (vr(V_O), sr(S_T0), vr(t3)))
    a("v_lshlrev_b32 %s, 4, %s" % (vr(t3), vr(t1)))
    a("v_sub_u32 %s, %s, %s" % (vr(t3), vr(t3), vr(t2)))
    a("s_add_u32 %s, %s, 480" % (sr(S_T0), sr(S_T0)))
    a("v_add_u32 %s, %s, %s" % (vr(V_P), sr(S_T0), vr(t3)))
    a("v_lshlrev_b32 %s, 1, v0" % vr(t0))
    a("v_sub_u32 %s, %d, %s" % (vr(V_WM), P0 + 1022, vr(t0)))
    a("v_add_u32 %s, %d, %s" % (vr(V_OR), P0, vr(t0)))
    a("s_lshl_b32 %s, %s, 1" % (sr(S_T1), sr(S_CH0)))
    a("v_mul_u32_u24 %s, 1280, v0" % vr(t1))
    a("v_add_u32 %s, %s, %s" % (vr(V_IN), sr(S_T1), vr(t1)))
    a("s_mul_i32 %s, %s, 1280" % (sr(S_T2), sr(S_TYPE)))
    a("s_add_u32 %s, %s, %s" % (sr(S_T2), sr(S_T2), sr(S_T1)))
    a("v_lshl_add_u32 %s, %s, 1, %s" % (vr(V_GO), vr(t1), sr(S_T2)))
    a("s_waitcnt lgkmcnt(0)")
    srd(SRD_O, PTR(15), 2048 * 2560)
    stamp_n(0)
    a("s_cmp_eq_u32 %s, 1" % sr(S_TYPE))
    a("s_cbranch_scc1 L_pathB")


def step_offsets():
    for p in (1, 2, 3):
        a("s_mov_b32 %s, %d" % (sr(S_IN1 + p - 1), p * 512 * 1280))
        a("s_mov_b32 %s, %d" % (sr(S_OUT1 + p - 1), p * 512 * 2560))


def sin(p): return "0" if p == 0 else sr(S_IN1 + p - 1)
def sout(p): return "0" if p == 0 else sr(S_OUT1 + p - 1)


def helper():
    a.lab("L_helper")
    a.c("================= helper : bring k, v (rows >= 512) and q of one A column into this XCD's L2 =================")
    items = []
    for g in (1, 2):
        for b in range(8):
            items += [(0, 8 * g + b), (1, 8 * g + b)]
    for b in range(8):
        items.append((2, b))
    for b in range(8):
        items += [(0, 24 + b), (1, 24 + b)]
    for b in range(8, 32):
        items.append((2, b))
    assert len(items) == 80
    a("s_waitcnt lgkmcnt(0)")
    srd(SRD_X, PTR(1), 2048 * 1280)
    srd(SRD_V, PTR(2), 2048 * 1280)
    srd(SRD_Q, PTR(0), 2048 * 1280)
    a("v_mul_u32_u24 %s, 1280, %s" % (vr(V_TMP), vr(V_LANE)))
    a("s_lshl_b32 %s, %s, 7" % (sr(S_T1), sr(S_COL)))
    a("v_add_u32 %s, %s, %s" % (vr(V_TMP), sr(S_T1), vr(V_TMP)))
    a("s_lshr_b32 %s, %s, 1" % (sr(S_T0), sr(S_I)))
    a("s_lshl_b32 %s, %s, 2" % (sr(S_T1), sr(S_WAVE)))
    a("s_add_u32 %s, %s, %s" % (sr(S_T0), sr(S_T0), sr(S_T1)))
    a("s_cmp_eq_u32 %s, 4" % sr(S_WAVE))
    a("s_cbranch_scc1 L_hq0")
    a("s_cmp_eq_u32 %s, 7" % sr(S_WAVE))
    a("s_cbranch_scc1 L_hq1")
    a("s_cmp_lt_u32 %s, 4" % sr(S_WAVE))
    a("s_cselect_b32 %s, 8, 4" % sr(S_T1))
    a("s_add_u32 %s, %s, %s" % (sr(S_T0), sr(S_T0), sr(S_T1)))
    a("s_mul_i32 %s, %s, %d" % (sr(S_T0), sr(S_T0), 64 * 1280))
    a("s_and_b32 %s, %s, 1" % (sr(S_T1), sr(S_I)))
    a("s_cmp_eq_u32 %s, 1" % sr(S_T1))
    a("s_cbranch_scc1 L_hv")
    a("buffer_load_dword %s, %s, %s, %s offen" % (vr(V_TMP + 1), vr(V_TMP), sr(SRD_X, 4), sr(S_T0)))
    a("s_branch L_h2")
    a.lab("L_hv")
    a("buffer_load_dword %s, %s, %s, %s offen" % (vr(V_TMP + 1), vr(V_TMP), sr(SRD_V, 4), sr(S_T0)))
    a.lab("L_h2")
    a("s_cmp_ge_u32 %s, 2" % sr(S_WAVE))
    a("s_cbranch_scc1 L_hend")
    a("s_lshl_b32 %s, %s, 3" % (sr(S_T0), sr(S_WAVE)))
    a("s_add_u32 %s, %s, 16" % (sr(S_T0), sr(S_T0)))
    a("s_branch L_hq")
    a.lab("L_hq0")
    a("s_mov_b32 %s, 0" % sr(S_T0))
    a("s_branch L_hq")
    a.lab("L_hq1")
    a("s_mov_b32 %s, 8" % sr(S_T0))
    a.lab("L_hq")
    a("s_add_u32 %s, %s, %s" % (sr(S_T0), sr(S_T0), sr(S_I)))
    a("s_mul_i32 %s, %s, %d" % (sr(S_T0), sr(S_T0), 64 * 1280))
    a("buffer_load_dword %s, %s, %s, %s offen" % (vr(V_TMP + 2), vr(V_TMP), sr(SRD_Q, 4), sr(S_T0)))
    a.lab("L_hend")
    a("s_waitcnt vmcnt(0)")
    a("s_endpgm")


V_TA = V_TMP + 5
V_TA2 = V_TMP + 6


def write_copies(d, tmp, n):
    imm = 32 + 1024 * n
    a("v_add_u32 %s, %d, %s" % (vr(V_TA2), imm + 2 * TCOPY, vr(V_TA)))
    for k in range(4):
        a("v_alignbit_b32 %s, %s, %s, 16" % (vr(tmp + k), vr(d + k + 1), vr(d + k)))
    for k in range(4):
        a("v_alignbit_b32 %s, %s, %s, 16" % (vr(tmp + 4 + k), vr(d + k + 2), vr(d + k + 1)))
    a("ds_write_b128 %s, %s offset:%d" % (vr(V_TA), vr(d, 4), imm))
    a("ds_write2_b32 %s, %s, %s offset0:0 offset1:1" % (vr(V_TA2), vr(d + 1), vr(d + 2)))
    a("ds_write2_b32 %s, %s, %s offset0:2 offset1:3" % (vr(V_TA2), vr(d + 3), vr(d + 4)))
    a("ds_write_b128 %s, %s offset:%d" % (vr(V_TA), vr(tmp, 4), imm + TCOPY))
    a("ds_write_b128 %s, %s offset:%d" % (vr(V_TA), vr(tmp + 4, 4), imm + 3 * TCOPY))


def write_head(d0, d1, tmp):
    for k in range(4):
        a("v_mov_b32 %s, 0" % vr(tmp + k))
    a("v_lshlrev_b32 %s, 16, %s" % (vr(tmp + 4), vr(d0)))
    a("v_alignbit_b32 %s, %s, %s, 16" % (vr(tmp + 5), vr(d1), vr(d0)))
    a("s_mov_b64 %s, exec" % sr(S_EX, 2))
    a("s_mov_b64 exec, 3")
    for s in range(4):
        a("ds_write_b128 %s, %s offset:%d" % (vr(V_TA), vr(tmp, 4), s * TCOPY))
    a("s_mov_b64 exec, 1")
    a("ds_write_b32 %s, %s offset:%d" % (vr(V_TA), vr(tmp + 4), TCOPY + 28))
    a("ds_write_b32 %s, %s offset:%d" % (vr(V_TA), vr(d0), 2 * TCOPY + 28))
    a("ds_write_b64 %s, %s offset:%d" % (vr(V_TA), vr(tmp + 4, 2), 3 * TCOPY + 24))
    a("s_mov_b64 exec, %s" % sr(S_EX, 2))


def tbase_addr():
    a("s_mul_i32 %s, %s, %d" % (sr(S_T0), sr(S_WAVE), TSZ))
    a("v_lshl_add_u32 %s, %s, 4, %s" % (vr(V_TA), vr(V_LANE), sr(S_T0)))


def d_load(ptr_idx):
    a("s_lshl_b32 %s, %s, 1" % (sr(S_T0), sr(S_CH0)))
    a("s_add_u32 %s, %s, %s" % (sr(S_T0 + 1), sr(PTR(ptr_idx)), sr(S_T0)))
    a("s_addc_u32 %s, %s, 0" % (sr(S_T0 + 2), sr(PTR(ptr_idx) + 1)))
    a("s_load_dwordx4 s[92:95], %s, 0" % sr(S_T0 + 1, 2))


def d_selectors():
    for c in range(8):
        src = 92 + (c >> 1)
        if c & 1:
            a("s_and_b32 %s, %s, 0xffff0000" % (sr(S_D + c), sr(src)))
        else:
            a("s_lshl_b32 %s, %s, 16" % (sr(S_D + c), sr(src)))


class VM:
    def __init__(self):
        self.q = []

    def issue(self, tag):
        self.q.append(tag)

    def wait(self, tag):
        idx = max(i for i, t in enumerate(self.q) if t == tag)
        return "s_waitcnt vmcnt(%d)" % (len(self.q) - 1 - idx)


RAW = [V_S, V_S + 20]
V_PA = V_S + 40
V_U = V_S + 48
V_Y = V_S + 56
V_T1 = V_S + 64
V_OUT = V_S + 70
V_HA = V_TMP + 4


def unpack(dst, src, c):
    if c & 1:
        return "v_and_b32 %s, 0xffff0000, %s" % (vr(dst), vr(src))
    return "v_lshlrev_b32 %s, 16, %s" % (vr(dst), vr(src))


def raw_loads(p, vm):
    R = RAW[p & 1]
    out = []
    out.append("v_add_u32 %s, %d, %s" % (vr(V_HA), p * 512 * 1280 - 3 * 1280, vr(V_IN)))
    out.append("s_mov_b64 exec, 1")
    for j in range(3):
        out.append("buffer_load_dwordx4 %s, %s, %s, 0 offen offset:%d" % (vr(R + 4 * j, 4), vr(V_HA), sr(SRD_X, 4), 1280 * j))
        vm.issue("raw%d" % p)
    out.append("s_mov_b64 exec, -1")
    out.append("buffer_load_dwordx4 %s, %s, %s, %s offen" % (vr(R + 12, 4), vr(V_IN), sr(SRD_X, 4), sin(p)))
    vm.issue("raw%d" % p)
    out.append("buffer_load_dwordx4 %s, %s, %s, %s offen" % (vr(R + 16, 4), vr(V_IN), sr(SRD_V, 4), sin(p)))
    vm.issue("raw%d" % p)
    return out


def prologue_math(p, vm):
    R = RAW[p & 1]
    out = [vm.wait("raw%d" % p)]
    for j in (2, 1, 0):
        for d in range(4):
            out.append("v_mov_b32_dpp %s, %s wave_shr:1 row_mask:0xf bank_mask:0xf" % (vr(R + 4 * j + d), vr(R + 4 * j + 4 + d)))
    VV = R + 16
    rnd = lambda x: "v_cvt_pk_bf16_f32 %s, 0, %s" % (vr(x), vr(x))
    for t in range(4):
        for c in range(8):
            out.append(unpack(V_U + c, R + 4 * t + (c >> 1), c))
        w = lambda c: sr(S_W + 4 * c + 3 - t)
        if EXACT:
            if t == 0:
                for c in range(8):
                    out.append("v_mul_f32 %s, %s, %s" % (vr(V_PA + c), w(c), vr(V_U + c)))
                for c in range(8):
                    out.append(rnd(V_PA + c))
            else:
                for c in range(8):
                    out.append("v_mul_f32 %s, %s, %s" % (vr(V_U + c), w(c), vr(V_U + c)))
                for c in range(8):
                    out.append(rnd(V_U + c))
                for c in range(8):
                    out.append("v_add_f32 %s, %s, %s" % (vr(V_PA + c), vr(V_PA + c), vr(V_U + c)))
                for c in range(8):
                    out.append(rnd(V_PA + c))
        else:
            for c in range(8):
                if t == 0:
                    out.append("v_mul_f32 %s, %s, %s" % (vr(V_PA + c), w(c), vr(V_U + c)))
                else:
                    out.append("v_fmac_f32 %s, %s, %s" % (vr(V_PA + c), w(c), vr(V_U + c)))
    for c in range(8):
        out.append(unpack(V_U + c, VV + (c >> 1), c))
    for c in range(8):
        out.append("v_mul_f32 %s, %s, %s" % (vr(V_PA + c), vr(V_PA + c), vr(V_U + c)))
    for c in range(8):
        out.append("v_cvt_pk_bf16_f32 %s, 0, %s" % (vr(V_X + 8 * p + c), vr(V_PA + c)))
    return out


def p_writes(typ, p, prev):
    par = (p + (1 if prev else 0)) & 1
    out = []
    for c in range(8):
        off = par * PBUF + c * PCH + (1024 if prev else 0)
        if typ == 0:
            out.append("ds_write_b16_d16_hi %s, %s offset:%d" % (vr(V_WM), vr(V_X + 8 * p + c), off))
        else:
            out.append("ds_write_b16%s %s, %s offset:%d" % ("_d16_hi" if c & 1 else "", vr(V_WM), vr(V_X + 4 * p + (c >> 1)), off))
    return out


def out_reads(p):
    return ["ds_read_u16_d16_hi %s, %s offset:%d" % (vr(V_Y + c), vr(V_OR), (p & 1) * PBUF + c * PCH) for c in range(8)]


def epilogue_math(typ, p, vm):
    O = V_OUT + 4 * (p & 1)
    out = []
    rnd = lambda x: "v_cvt_pk_bf16_f32 %s, 0, %s" % (vr(x), vr(x))
    X = V_X + 8 * p
    if typ == 1:
        X = V_U
        for c in range(8):
            out.append(unpack(X + c, V_X + 4 * p + (c >> 1), c))
    if EXACT:
        for c in range(8):
            out.append("v_mul_f32 %s, %s, %s" % (vr(X + c), sr(S_D + c), vr(X + c)))
        for c in range(8):
            out.append(rnd(X + c))
        for c in range(8):
            out.append("v_add_f32 %s, %s, %s" % (vr(V_Y + c), vr(V_Y + c), vr(X + c)))
        if typ == 0:
            for c in range(8):
                out.append(rnd(V_Y + c))
    else:
        for c in range(8):
            out.append("v_fmac_f32 %s, %s, %s" % (vr(V_Y + c), sr(S_D + c), vr(X + c)))
    if typ == 0:
        out.append(vm.wait("q%d" % p))
        for c in range(8):
            out.append(unpack(X + c, V_Q + 4 * p + (c >> 1), c))
        for c in range(8):
            out.append("v_mul_f32 %s, %s, %s" % (vr(V_Y + c), vr(V_Y + c), vr(X + c)))
    for d in range(4):
        out.append("v_cvt_pk_bf16_f32 %s, %s, %s" % (vr(O + d), vr(V_Y + 2 * d), vr(V_Y + 2 * d + 1)))
    out.append("buffer_store_dwordx4 %s, %s, %s, %s offen" % (vr(O, 4), vr(V_GO), sr(SRD_O, 4), sout(p)))
    vm.issue("st%d" % p)
    return out


def path_A():
    vm = VM()
    a.c("================= path A : H3 =================")
    srd(SRD_X, PTR(1), 2048 * 1280)
    srd(SRD_V, PTR(2), 2048 * 1280)
    a("s_cmp_ge_u32 %s, 2" % sr(S_WAVE))
    a("s_cbranch_scc1 L_pfd")
    a("s_lshl_b32 %s, %s, 6" % (sr(S_T0), sr(S_I)))
    a("v_add_u32 %s, %s, %s" % (vr(V_TMP + 2), sr(S_T0), vr(V_LANE)))
    a("v_mul_u32_u24 %s, 1280, %s" % (vr(V_TMP + 2), vr(V_TMP + 2)))
    a("s_lshl_b32 %s, %s, 7" % (sr(S_T1), sr(S_COL)))
    a("v_add_u32 %s, %s, %s" % (vr(V_TMP + 2), sr(S_T1), vr(V_TMP + 2)))
    a("s_cmp_eq_u32 %s, 1" % sr(S_WAVE))
    a("s_cbranch_scc1 L_pfv")
    a("buffer_load_dword %s, %s, %s, 0 offen" % (vr(V_TMP + 3), vr(V_TMP + 2), sr(SRD_X, 4)))
    a("s_branch L_pfd")
    a.lab("L_pfv")
    a("buffer_load_dword %s, %s, %s, 0 offen" % (vr(V_TMP + 3), vr(V_TMP + 2), sr(SRD_V, 4)))
    a.lab("L_pfd")
    srd(SRD_Q, PTR(0), 2048 * 1280)
    a("s_add_u32 %s, %s, %s" % (sr(S_T0), sr(S_CH0), sr(S_WAVE)))
    a("s_lshl_b32 %s, %s, 12" % (sr(S_T0), sr(S_T0)))
    a("s_add_u32 %s, %s, %s" % (sr(SRD_T), sr(PTR(4)), sr(S_T0)))
    a("s_addc_u32 %s, %s, 0" % (sr(SRD_T + 1), sr(PTR(4) + 1)))
    a("s_and_b32 %s, %s, 0xffff" % (sr(SRD_T + 1), sr(SRD_T + 1)))
    a("s_mov_b32 %s, 4096" % sr(SRD_T + 2))
    a("s_mov_b32 %s, 0x00020000" % sr(SRD_T + 3))
    TD = V_TF
    a("v_lshlrev_b32 %s, 4, %s" % (vr(V_TMP), vr(V_LANE)))
    for n in range(4):
        a("buffer_load_dwordx4 %s, %s, %s, 0 offen offset:%d" % (vr(TD + 8 * n, 4), vr(V_TMP), sr(SRD_T, 4), 1024 * n))
        a("buffer_load_dwordx2 %s, %s, %s, 0 offen offset:%d" % (vr(TD + 8 * n + 4, 2), vr(V_TMP), sr(SRD_T, 4), 1024 * n + 16))
    a("s_lshl_b32 %s, %s, 3" % (sr(S_T0), sr(S_CH0)))
    a("s_add_u32 %s, %s, %s" % (sr(S_T0 + 1), sr(PTR(3)), sr(S_T0)))
    a("s_addc_u32 %s, %s, 0" % (sr(S_T0 + 2), sr(PTR(3) + 1)))
    a("s_load_dwordx16 s[20:35], %s, 0" % sr(S_T0 + 1, 2))
    d_load(5)
    tbase_addr()
    a("s_waitcnt lgkmcnt(0)")
    d_selectors()
    for c in range(8):
        for j in range(4):
            src = 20 + 2 * c + (j >> 1)
            dst = S_W + 4 * c + j
            if j & 1:
                a("s_and_b32 %s, %s, 0xffff0000" % (sr(dst), sr(src)))
            else:
                a("s_lshl_b32 %s, %s, 16" % (sr(dst), sr(src)))
    step_offsets()
    a("s_waitcnt vmcnt(8)")
    stamp_n(1)
    a("s_barrier")
    for s_ in raw_loads(0, vm):
        a(s_)
    for s_ in raw_loads(1, vm):
        a(s_)
    stamp_n(2)
    a("s_waitcnt vmcnt(10)")
    write_head(TD, TD + 1, V_ACC)
    for n in range(4):
        write_copies(TD + 8 * n, V_ACC + 8 + 8 * (n & 1), n)
    stamp_n(3)
    for s_ in prologue_math(0, vm):
        a(s_)
    stamp_n(4)
    conv(0, vm)


def cmul(d, x, y):
    a("v_pk_mul_f32 %s, %s, %s op_sel_hi:[1,0]" % (vr(d, 2), vr(x, 2), vr(y, 2)))
    a("v_pk_fma_f32 %s, %s, %s, %s op_sel:[1,1,0] op_sel_hi:[0,1,1] neg_lo:[1,0,0]" % (vr(d, 2), vr(x, 2), vr(y, 2), vr(d, 2)))


def path_B():
    vm = VM()
    a.lab("L_pathB")
    a.c("================= path B : S4D =================")
    srd(SRD_X, PTR(6), 2048 * 1280)
    PRM = V_PF
    a("s_add_u32 %s, %s, %s" % (sr(S_T0), sr(S_CH0), sr(S_WAVE)))
    a("s_lshl_b32 %s, %s, 8" % (sr(S_T1), sr(S_T0)))
    a("v_lshl_add_u32 %s, %s, 2, %s" % (vr(V_TMP), vr(V_LANE), sr(S_T1)))
    for k in range(6):
        a("global_load_dword %s, %s, %s" % (vr(PRM + k), vr(V_TMP), sr(PTR(7 + k), 2)))
    a("s_lshl_b32 %s, %s, 1" % (sr(S_T1), sr(S_T0)))
    a("s_and_b32 %s, %s, -4" % (sr(S_T1), sr(S_T1)))
    a("s_add_u32 %s, %s, %s" % (sr(S_W), sr(PTR(13)), sr(S_T1)))
    a("s_addc_u32 %s, %s, 0" % (sr(S_W + 1), sr(PTR(13) + 1)))
    a("s_load_dword %s, %s, 0" % (sr(S_W + 2), sr(S_W, 2)))
    a("s_and_b32 %s, %s, 1" % (sr(S_W + 4), sr(S_T0)))
    d_load(14)
    a("s_lshl_b32 %s, %s, 8" % (sr(S_T1), sr(S_WAVE)))
    a("s_lshl_b32 %s, %s, 5" % (sr(S_T2), sr(S_I)))
    a("s_add_u32 %s, %s, %s" % (sr(S_T1), sr(S_T1), sr(S_T2)))
    a("v_and_b32 %s, 31, %s" % (vr(V_TMP + 2), vr(V_LANE)))
    a("v_add_u32 %s, %s, %s" % (vr(V_TMP + 2), sr(S_T1), vr(V_TMP + 2)))
    a("v_mul_u32_u24 %s, 1280, %s" % (vr(V_TMP + 2), vr(V_TMP + 2)))
    a("s_lshl_b32 %s, %s, 7" % (sr(S_T1), sr(S_COL)))
    a("v_add_u32 %s, %s, %s" % (vr(V_TMP + 2), sr(S_T1), vr(V_TMP + 2)))
    a("buffer_load_dword %s, %s, %s, 0 offen" % (vr(V_TMP + 4), vr(V_TMP + 2), sr(SRD_X, 4)))
    a("s_waitcnt lgkmcnt(0)")
    a("s_lshl_b32 %s, %s, 16" % (sr(S_W + 3), sr(S_W + 2)))
    a("s_and_b32 %s, %s, 0xffff0000" % (sr(S_W + 2), sr(S_W + 2)))
    a("s_cmp_eq_u32 %s, 1" % sr(S_W + 4))
    a("s_cselect_b32 %s, %s, %s" % (sr(S_W + 2), sr(S_W + 2), sr(S_W + 3)))
    d_selectors()
    step_offsets()
    DT = V_PF + 6
    a("v_mov_b32 %s, 0x3fb8aa3b" % vr(DT))
    a("v_mul_f32 %s, %s, %s" % (vr(DT), sr(S_W + 2), vr(DT)))
    a("v_exp_f32 %s, %s" % (vr(DT), vr(DT)))
    AW = V_TMP + 1
    AR = V_TMP + 2
    a("s_mul_i32 %s, %s, %d" % (sr(S_T0), sr(S_WAVE), TSZ))
    a("v_cvt_pk_bf16_f32 %s, 0, %s" % (vr(DT), vr(DT)))
    a("v_lshl_add_u32 %s, %s, 3, %s" % (vr(AW), vr(V_LANE), sr(S_T0)))
    a("v_and_b32 %s, 15, %s" % (vr(AR), vr(V_LANE)))
    a("v_mul_u32_u24 %s, %d, %s" % (vr(AR), LROW, vr(AR)))
    a("v_lshrrev_b32 %s, 4, %s" % (vr(V_TMP + 3), vr(V_LANE)))
    a("v_lshl_add_u32 %s, %s, 4, %s" % (vr(AR), vr(V_TMP + 3), vr(AR)))
    a("v_add_u32 %s, %s, %s" % (vr(AR), sr(S_T0), vr(AR)))
    M = [V_S, V_S + 46]
    def AR2(m): return M[m]
    def AI2(m): return M[m] + 1
    def Wv(m): return M[m] + 2
    def Ep(m, phi): return M[m] + 4 + 2 * (phi - 1)
    def Rr(m, j): return M[m] + 18 + 2 * (j - 1)
    def E128(m): return M[m] + 34
    def G(m, i): return M[m] + 36 + 2 * (i & 1)
    def TA(m, n): return M[m] + 40 + 2 * (n % 3)
    CV = V_ACC + 16
    FRB = V_TF
    FRA = V_TF + 32
    FRC = V_X
    KACC = V_ACC
    stamp_n(1)
    a("s_waitcnt vmcnt(1)")
    stamp_n(2)
    for m in range(2):
        def un(dst, src):
            if m == 0:
                a("v_lshlrev_b32 %s, 16, %s" % (vr(dst), vr(src)))
            else:
                a("v_and_b32 %s, 0xffff0000, %s" % (vr(dst), vr(src)))
        un(AR2(m), PRM + 0)
        un(AI2(m), PRM + 1)
        un(TA(m, 0), PRM + 2)
        un(TA(m, 0) + 1, PRM + 3)
        un(TA(m, 1), PRM + 4)
        un(TA(m, 1) + 1, PRM + 5)
    for m in range(2):
        a("v_mul_f32 %s, %s, %s" % (vr(AR2(m)), vr(DT), vr(AR2(m))))
        a("v_mul_f32 %s, %s, %s" % (vr(AI2(m)), vr(DT), vr(AI2(m))))
        a("v_mul_f32 %s, 0x3fb8aa3b, %s" % (vr(AR2(m)), vr(AR2(m))))
        a("v_mul_f32 %s, 0.15915494, %s" % (vr(AI2(m)), vr(AI2(m))))
        a("v_mul_f32 %s, %s, %s" % (vr(TA(m, 0)), vr(DT), vr(TA(m, 0))))
        a("v_mul_f32 %s, %s, %s" % (vr(TA(m, 0) + 1), vr(DT), vr(TA(m, 0) + 1)))
        cmul(Wv(m), TA(m, 1), TA(m, 0))
    mx = CV
    a("v_max_f32 %s, |%s|, |%s|" % (vr(mx), vr(Wv(0)), vr(Wv(0) + 1)))
    a("v_max3_f32 %s, |%s|, |%s|, %s" % (vr(mx), vr(Wv(1)), vr(Wv(1) + 1), vr(mx)))
    dpp = ["row_shr:1 row_mask:0xf", "row_shr:2 row_mask:0xf", "row_shr:4 row_mask:0xf", "row_shr:8 row_mask:0xf", "row_bcast:15 row_mask:0xa", "row_bcast:31 row_mask:0xc"]
    k = 0
    for x, lit in ((1, "1.0"), (8, "0x41000000"), (128, "0x43000000")):
        for m in range(2):
            dst = Ep(m, 1) if x == 1 else Rr(m, 1) if x == 8 else E128(m)
            t = TA(m, 0)
            a("v_mul_f32 %s, %s, %s" % (vr(t), lit, vr(AR2(m))))
            a("v_mul_f32 %s, %s, %s" % (vr(t + 1), lit, vr(AI2(m))))
            a("v_max_f32_dpp %s, %s, %s %s bank_mask:0xf" % (vr(mx), vr(mx), vr(mx), dpp[k])); k += 1
            a("v_exp_f32 %s, %s" % (vr(t), vr(t)))
            a("v_fract_f32 %s, %s" % (vr(t + 1), vr(t + 1)))
            a("v_cos_f32 %s, %s" % (vr(t + 2), vr(t + 1)))
            a("v_sin_f32 %s, %s" % (vr(t + 3), vr(t + 1)))
            a("s_nop 0")
            a("v_mul_f32 %s, %s, %s" % (vr(dst), vr(t), vr(t + 2)))
            a("v_mul_f32 %s, %s, %s" % (vr(dst + 1), vr(t), vr(t + 3)))
    a("v_readlane_b32 %s, %s, 63" % (sr(S_SC), vr(mx)))
    cvi = [0]
    def put(off, p0, p1, neg):
        c = CV + 2 * (cvi[0] & 3); cvi[0] += 1
        n = "-" if neg else ""
        a("v_cvt_pk_f16_f32 %s, %s, %s%s" % (vr(c), vr(p0), n, vr(p0 + 1)))
        a("v_cvt_pk_f16_f32 %s, %s, %s%s" % (vr(c + 1), vr(p1), n, vr(p1 + 1)))
        a("ds_write_b64 %s, %s offset:%d" % (vr(AW), vr(c, 2), off))
    a("v_mov_b32 %s, 0x3c00" % vr(CV + 6))
    a("v_mov_b32 %s, 0x3c00" % vr(CV + 7))
    a("ds_write_b64 %s, %s offset:0" % (vr(AW), vr(CV + 6, 2)))
    a("s_and_b32 %s, %s, 0x7f800000" % (sr(S_SC), sr(S_SC)))
    a("s_sub_u32 %s, 0x7f000000, %s" % (sr(S_T0), sr(S_SC)))
    for m in range(2):
        a("v_mul_f32 %s, %s, %s" % (vr(Wv(m)), sr(S_T0), vr(Wv(m))))
        a("v_mul_f32 %s, %s, %s" % (vr(Wv(m) + 1), sr(S_T0), vr(Wv(m) + 1)))
    put(LROW, Rr(0, 1), Rr(1, 1), True)
    for j in range(2, 9):
        for m in range(2):
            cmul(Rr(m, j), Rr(m, j // 2), Rr(m, j - j // 2))
        put(j * LROW, Rr(0, j), Rr(1, j), True)
    for j in range(9, 16):
        for m in range(2):
            cmul(TA(m, j), Rr(m, 8), Rr(m, j - 8))
        put(j * LROW, TA(0, j), TA(1, j), True)
    for phi in range(2, 8):
        for m in range(2):
            cmul(Ep(m, phi), Ep(m, phi // 2), Ep(m, phi - phi // 2))
    def lrow_off(row):
        return (KBUF if (row >> 4) != 1 else 0) + (row & 15) * LROW
    cur = [Wv(0), Wv(1)]
    tn = [0]
    for i in range(17):
        if i < 2:
            rows = [(8 * i + phi, phi) for phi in range(8)]
        elif i < 4:
            rows = [(16 + 4 * (i - 2) + f, 2 * f) for f in range(4)]
        elif i < 8:
            rows = [(24 + 2 * (i - 4) + f, 4 * f) for f in range(2)]
        else:
            rows = [(32 + (i - 8), 0)]
        if i == 2:
            a("s_waitcnt lgkmcnt(0)")
            for kp in range(8):
                a("ds_read_b128 %s, %s offset:%d" % (vr(FRB + 4 * kp, 4), vr(AR), 64 * kp))
            for kp in range(8):
                a("ds_read_b128 %s, %s offset:%d" % (vr(FRA + 4 * kp, 4), vr(AR), KBUF + 64 * kp))
        nxt = [G(0, i), G(1, i)]
        if i < 16:
            for m in range(2):
                cmul(nxt[m], cur[m], E128(m))
        if i == 2:
            a("s_waitcnt lgkmcnt(0)")
        for n, (row, phi) in enumerate(rows):
            if phi == 0:
                put(lrow_off(row), cur[0], cur[1], False)
            else:
                for m in range(2):
                    cmul(TA(m, tn[0]), cur[m], Ep(m, phi))
                put(lrow_off(row), TA(0, tn[0]), TA(1, tn[0]), False)
                tn[0] += 1
            if 16 <= row < 24:
                kp = row - 16
                a("v_mfma_f32_16x16x32_f16 %s, %s, %s, %s" % (vr(KACC, 4), vr(FRA + 4 * kp, 4), vr(FRB + 4 * kp, 4), "0" if kp == 0 else vr(KACC, 4)))
        cur = nxt
    a("s_waitcnt lgkmcnt(0)")
    for kp in range(8):
        a("ds_read_b128 %s, %s offset:%d" % (vr(FRA + 4 * kp, 4), vr(AR), 64 * kp))
    for kp in range(8):
        a("ds_read_b128 %s, %s offset:%d" % (vr(FRC + 4 * kp, 4), vr(AR), KBUF + 64 * kp))
    j, g = V_TMP, V_TMP + 3
    A0, A1, A1b, A2 = V_S, V_S + 1, V_S + 2, V_S + 3
    a("v_and_b32 %s, 15, %s" % (vr(j), vr(V_LANE)))
    a("s_mul_i32 %s, %s, %d" % (sr(S_T1), sr(S_WAVE), PCH))
    a("s_add_u32 %s, %s, %d" % (sr(S_T1), sr(S_T1), P0 + PBUF))
    a("v_lshrrev_b32 %s, 1, %s" % (vr(A0), vr(g)))
    a("v_lshlrev_b32 %s, 7, %s" % (vr(A0), vr(A0)))
    a("v_and_b32 %s, 1, %s" % (vr(A1), vr(g)))
    a("v_lshl_add_u32 %s, %s, 2, %s" % (vr(A0), vr(A1), vr(A0)))
    a("v_lshl_add_u32 %s, %s, 3, %s" % (vr(A0), vr(j), vr(A0)))
    a("v_lshl_add_u32 %s, %s, 1, %s" % (vr(A0), vr(A0), sr(S_T1)))
    a("v_lshlrev_b32 %s, 6, %s" % (vr(A2), vr(g)))
    a("v_cmp_gt_u32 vcc, 2, %s" % vr(g))
    a("v_lshlrev_b32 %s, 2, %s" % (vr(A1), vr(j)))
    a("v_lshlrev_b32 %s, 1, %s" % (vr(A1b), vr(j)))
    a("v_cndmask_b32 %s, %s, %s, vcc" % (vr(A1), vr(A1b), vr(A1)))
    a("s_waitcnt lgkmcnt(8)")
    for kp in range(8):
        a("v_mfma_f32_16x16x32_f16 %s, %s, %s, %s" % (vr(KACC + 4, 4), vr(FRA + 4 * kp, 4), vr(FRB + 4 * kp, 4), "0" if kp == 0 else vr(KACC + 4, 4)))
    a("s_waitcnt lgkmcnt(0)")
    for kp in range(8):
        a("v_mfma_f32_16x16x32_f16 %s, %s, %s, %s" % (vr(KACC + 8, 4), vr(FRC + 4 * kp, 4), vr(FRB + 4 * kp, 4), "0" if kp == 0 else vr(KACC + 8, 4)))
    a("v_add_u32 %s, %s, %s" % (vr(A1), vr(A1), vr(A2)))
    a("v_add_u32 %s, 256, %s" % (vr(A1), vr(A1)))
    a("v_mov_b32 %s, 32" % vr(A1b))
    a("v_cndmask_b32 %s, %s, 2, vcc" % (vr(A1b), vr(A1b)))
    a("v_add_u32 %s, %s, %s" % (vr(A1b), vr(A1b), vr(A1)))
    a("v_lshl_add_u32 %s, %s, 1, %s" % (vr(A1), vr(A1), sr(S_T1)))
    a("v_lshl_add_u32 %s, %s, 1, %s" % (vr(A1b), vr(A1b), sr(S_T1)))
    a("v_add3_u32 %s, %s, %s, %s" % (vr(A2), vr(A2), vr(j), "64"))
    a("v_add_u32 %s, 448, %s" % (vr(A2), vr(A2)))
    a("v_lshl_add_u32 %s, %s, 1, %s" % (vr(A2), vr(A2), sr(S_T1)))
    a("s_waitcnt vmcnt(0)")
    stamp_n(3)
    for k in range(12):
        a("v_mul_f32 %s, %s, %s" % (vr(KACC + k), sr(S_SC), vr(KACC + k)))
    for p in range(4):
        a("buffer_load_dwordx4 %s, %s, %s, %s offen" % (vr(V_X + 4 * p, 4), vr(V_IN), sr(SRD_X, 4), sin(p)))
        vm.issue("u%d" % p)
    pk = KACC + 12
    for k in range(6):
        a("v_cvt_pk_bf16_f32 %s, %s, %s" % (vr(pk + k), vr(KACC + 2 * k), vr(KACC + 2 * k + 1)))
    a("ds_write_b64 %s, %s offset:0" % (vr(A0), vr(pk, 2)))
    a("ds_write_b32 %s, %s offset:0" % (vr(A1), vr(pk + 2)))
    a("ds_write_b32 %s, %s offset:0" % (vr(A1b), vr(pk + 3)))
    a("ds_write_b16 %s, %s offset:0" % (vr(A2), vr(pk + 4)))
    a("ds_write_b16_d16_hi %s, %s offset:32" % (vr(A2), vr(pk + 4)))
    a("ds_write_b16 %s, %s offset:64" % (vr(A2), vr(pk + 5)))
    a("ds_write_b16_d16_hi %s, %s offset:96" % (vr(A2), vr(pk + 5)))
    a.c("---- expand the staircase into the four shifted copies ----")
    tbase_addr()
    D = V_TF
    H = V_TF + 32
    a("v_lshl_add_u32 %s, %s, 4, %s" % (vr(V_TMP), vr(V_LANE), sr(S_T1)))
    a("v_lshl_add_u32 %s, %s, 3, %s" % (vr(V_TMP + 1), vr(V_LANE), sr(S_T1)))
    a("v_lshl_add_u32 %s, %s, 2, %s" % (vr(V_TMP + 2), vr(V_LANE), sr(S_T1)))
    a("v_lshl_add_u32 %s, %s, 1, %s" % (vr(V_TMP + 3), vr(V_LANE), sr(S_T1)))
    a("s_mov_b32 %s, 0x01000100" % sr(S_K0))
    a("s_mov_b32 %s, 0x03020302" % sr(S_K1))
    a("s_waitcnt lgkmcnt(0)")
    a("ds_read_b128 %s, %s" % (vr(D, 4), vr(V_TMP)))
    a("ds_read_b64 %s, %s offset:16" % (vr(D + 4, 2), vr(V_TMP)))
    a("ds_read_b64 %s, %s offset:256" % (vr(H, 2), vr(V_TMP + 1)))
    a("ds_read_b32 %s, %s offset:264" % (vr(H + 2), vr(V_TMP + 1)))
    a("ds_read_b32 %s, %s offset:%d" % (vr(H + 4), vr(V_TMP + 2), 2 * 384))
    a("ds_read_b32 %s, %s offset:%d" % (vr(H + 5), vr(V_TMP + 2), 2 * 384 + 4))
    for n in (2, 3):
        o = 2 * (512 + 64 * (n - 2))
        a("ds_read_u16 %s, %s offset:%d" % (vr(H + 6 + 2 * (n - 2)), vr(V_TMP + 3), o))
        a("ds_read_u16 %s, %s offset:%d" % (vr(H + 7 + 2 * (n - 2)), vr(V_TMP + 3), o + 2))
    a("v_and_b32 %s, 1, %s" % (vr(V_TMP), vr(V_LANE)))
    a("v_cmp_eq_u32 vcc, 0, %s" % vr(V_TMP))
    a("s_waitcnt lgkmcnt(0)")
    a("s_mov_b32 exec_hi, 0")
    a("s_mov_b32 exec_lo, 0x80000000")
    a("v_lshrrev_b32 %s, 16, %s" % (vr(D + 5), vr(D + 4)))
    a("v_perm_b32 %s, %s, %s, %s" % (vr(D + 4), vr(D + 4), vr(D + 4), sr(S_K0)))
    a("s_mov_b32 exec_lo, 0")
    a("s_mov_b32 exec_hi, -1")
    a("v_perm_b32 %s, %s, %s, %s" % (vr(D), vr(H), vr(H), sr(S_K0)))
    a("v_alignbit_b32 %s, %s, %s, 16" % (vr(D + 1), vr(H + 1), vr(H)))
    a("v_perm_b32 %s, %s, %s, %s" % (vr(D + 2), vr(H + 1), vr(H + 1), sr(S_K0)))
    a("v_alignbit_b32 %s, %s, %s, 16" % (vr(D + 3), vr(H + 2), vr(H + 1)))
    a("v_perm_b32 %s, %s, %s, %s" % (vr(D + 4), vr(H + 2), vr(H + 2), sr(S_K0)))
    a("v_lshrrev_b32 %s, 16, %s" % (vr(D + 5), vr(H + 2)))
    a("s_mov_b32 exec_hi, 0x80000000")
    a("v_mov_b32 %s, %s" % (vr(D + 5), vr(D + 4)))
    a("s_mov_b64 exec, -1")
    write_head(D, D + 1, V_S + 8)
    write_copies(D, V_S + 16, 0)
    D2 = D + 8
    a("v_perm_b32 %s, %s, %s, %s" % (vr(D2), vr(H + 4), vr(H + 4), sr(S_K0)))
    a("v_mov_b32 %s, %s" % (vr(D2 + 1), vr(H + 4)))
    a("v_perm_b32 %s, %s, %s, %s" % (vr(D2 + 2), vr(H + 4), vr(H + 4), sr(S_K1)))
    for k in (3, 4, 5):
        a("v_perm_b32 %s, %s, %s, %s" % (vr(D2 + k), vr(H + 5), vr(H + 5), sr(S_K0)))
    write_copies(D2, V_S + 24, 1)
    for n in (2, 3):
        D3 = D + 8 * n
        ra, rb_ = H + 6 + 2 * (n - 2), H + 7 + 2 * (n - 2)
        a("v_lshl_or_b32 %s, %s, 16, %s" % (vr(D3), vr(ra), vr(ra)))
        a("v_lshl_or_b32 %s, %s, 16, %s" % (vr(D3 + 1), vr(ra), vr(ra)))
        for k in (3, 4, 5):
            a("v_lshl_or_b32 %s, %s, 16, %s" % (vr(D3 + k), vr(rb_), vr(rb_)))
        a("v_cndmask_b32 %s, %s, %s, vcc" % (vr(ra), vr(rb_), vr(ra)))
        a("v_lshl_or_b32 %s, %s, 16, %s" % (vr(D3 + 2), vr(rb_), vr(ra)))
        write_copies(D3, V_S + 16 + 8 * (n & 1), n)
    stamp_n(4)
    a(vm.wait("u0"))
    conv(1, vm)


def conv(typ, vm):
    T = "AB"[typ]
    a.c("================= convolution (%s) =================" % T)
    for s_ in p_writes(typ, 0, False):
        a(s_)
    a("v_mov_b32 %s, 0" % vr(V_PF))
    a("v_mov_b32 %s, 0" % vr(V_PF + 1))
    a("ds_write_b64 %s, %s offset:1024" % (vr(V_O), vr(V_PF, 2)))
    a("s_waitcnt lgkmcnt(0)")
    stamp_n(5)
    a("s_barrier")

    def reads(p, r, buf):
        out = []
        par = p & 1
        for dl in range(2):
            out.append("ds_read_b128 %s, %s offset:%d" % (vr(V_PF + 8 * buf + 4 * dl, 4), vr(V_P), par * PBUF + 512 * (1 - dl) + 64 * r))
        for u in range(8 - 2 * p):
            for hh in range(2):
                out.append("ds_read_b64 %s, %s offset:%d" % (vr(V_TF + 32 * buf + 4 * u + 2 * hh, 2), vr(V_T), 512 * u + 64 * r + 8 * hh))
        return out

    def mfmas(p):
        out = []
        for u in range(8 - 2 * p):
            for dl in range(2):
                c = u + 2 * p + dl
                if c <= 7:
                    out.append((c, u, dl))
        return out

    touched = set()
    for p in range(4):
        a.c("---- super-step %d ----" % p)
        stamp_n(6 + 2 * p)
        if p > 0:
            for s_ in out_reads(p - 1):
                a(s_)
        for s_ in reads(p, 0, 0):
            a(s_)
        if p > 0:
            a("s_waitcnt lgkmcnt(0)")
            a("s_barrier")
        if p < 3:
            a("s_cmp_lt_u32 %s, 4" % sr(S_WAVE))
            a("s_cbranch_scc1 L_%spv%d" % (T, p))
            for s_ in p_writes(typ, p, True):
                a(s_)
            a.lab("L_%spv%d" % (T, p))
        fill = []
        if typ == 0:
            if p < 2:
                fill += raw_loads(p + 2, vm)
            fill.append("buffer_load_dwordx4 %s, %s, %s, %s offen" % (vr(V_Q + 4 * p, 4), vr(V_IN), sr(SRD_Q, 4), sin(p)))
            vm.issue("q%d" % p)
        if p > 0:
            fill += epilogue_math(typ, p - 1, vm)
        if p < 3:
            if typ == 0:
                fill += prologue_math(p + 1, vm)
                fill += p_writes(typ, p + 1, False)
            else:
                fill.append(vm.wait("u%d" % (p + 1)))
                fill += p_writes(typ, p + 1, False)
        fi = 0
        lq = [] if p > 0 else [("f", 0, k) for k in range(len(reads(p, 0, 0)))]
        if p < 3:
            a("s_waitcnt lgkmcnt(0)")
            lq = []
        done = [len(lq) == 0, -1]
        state = {"done": -1}
        def need(tag):
            idxs = [i for i, t in enumerate(lq) if t == tag]
            if not idxs:
                return
            idx = idxs[-1]
            if idx <= state["done"]:
                return
            n = len(lq) - 1 - idx
            if n <= 15:
                a("s_waitcnt lgkmcnt(%d)" % n)
                state["done"] = idx
            else:
                a("s_waitcnt lgkmcnt(15)")
                state["done"] = len(lq) - 1 - 15
        def emit(s_, tag=None):
            a(s_)
            if s_.startswith("ds_"):
                lq.append(tag)
        for r in range(8):
            buf = r & 1
            nxt = reads(p, r + 1, buf ^ 1) if r < 7 else []
            ms = mfmas(p)
            for i, (c, u, dl) in enumerate(ms):
                acc = V_ACC + 4 * c
                src = vr(acc, 4) if c in touched else "0"
                touched.add(c)
                need(("f", r, max(dl, 2 + 2 * u + 1)))
                a("v_mfma_f32_16x16x32_bf16 %s, %s, %s, %s" % (vr(acc, 4), vr(V_TF + 32 * buf + 4 * u, 4), vr(V_PF + 8 * buf + 4 * dl, 4), src))
                lo = (i * len(nxt) + len(ms) - 1) // len(ms) if SPREAD else i * RPM
                hi = len(nxt) if i == len(ms) - 1 else (((i + 1) * len(nxt) + len(ms) - 1) // len(ms) if SPREAD else (i + 1) * RPM)
                for k in range(lo, min(hi, len(nxt))):
                    emit(nxt[k], ("f", r + 1, k))
                n = 0
                while fi < len(fill) and (n < FILL or fill[fi - 1].startswith("s_mov_b64 exec, 1") or (fill[fi - 1].startswith("buffer_load") and V_HA_STR in fill[fi - 1])):
                    emit(fill[fi], "x"); fi += 1; n += 1
        while fi < len(fill):
            a(fill[fi]); fi += 1
        stamp_n(7 + 2 * p)
        a("s_nop 7")
        a("s_nop 1")
        for dl in range(2):
            acc = V_ACC + 4 * (2 * p + dl)
            a("v_cvt_pk_bf16_f32 %s, %s, %s" % (vr(acc), vr(acc), vr(acc + 1)))
            a("v_cvt_pk_bf16_f32 %s, %s, %s" % (vr(acc + 1), vr(acc + 2), vr(acc + 3)))
            a("ds_write_b64 %s, %s offset:%d" % (vr(V_O), vr(acc, 2), (p & 1) * PBUF + 512 * dl))
        a("s_waitcnt lgkmcnt(0)")
        a("s_barrier")
    stamp_n(14)
    for s_ in out_reads(3):
        a(s_)
    a("s_waitcnt lgkmcnt(0)")
    for s_ in epilogue_math(typ, 3, vm):
        a(s_)
    stamp_dump()
    a("s_endpgm")


V_HA_STR = ", v%d, " % V_HA

header()
prologue_common()
path_A()
path_B()
helper()
footer()
out = sys.argv[1] if len(sys.argv) > 1 else "concat_heads__ssm_conv_h3__ssm_conv_s4__prompt.s"
open(out, "w").write(a.text())
print("wrote", out, len(a.l), "lines")
```

```python
import os
import sys

NAME = "concat_heads__ssm_conv_h3__ssm_conv_s4__prompt_kernel"
MODE = sys.argv[2] if len(sys.argv) > 2 else ""
STAMPS = MODE in ("stamps", "dbgt")
EXACT = int(os.environ.get("EXACT", "1"))
SPREAD = int(os.environ.get("SPREAD", "1"))
RPM = int(os.environ.get("RPM", "2"))
FILL = int(os.environ.get("FILL", "2"))

TCOPY = 4160
TSZ = 16896
P0 = 8 * TSZ
PCH = 1536
PBUF = 8 * PCH
LDS_TOTAL = P0 + 2 * PBUF
LROW = 528
KBUF = 16 * LROW


class A:
    def __init__(self):
        self.l = []

    def __call__(self, s):
        self.l.append("    " + s)

    def lab(self, s):
        self.l.append(s + ":")

    def c(self, s):
        self.l.append("    ; " + s)

    def text(self):
        return "\n".join(self.l) + "\n"


def vr(b, n=1):
    return "v%d" % b if n == 1 else "v[%d:%d]" % (b, b + n - 1)


def sr(b, n=1):
    return "s%d" % b if n == 1 else "s[%d:%d]" % (b, b + n - 1)


a = A()

S_TYPE = 3
S_PTR = 4
def PTR(i): return S_PTR + 2 * i
S_WAVE = 40
S_COL = 41
S_I = 42
S_CH0 = 43
SRD_X = 44
SRD_V = 48
SRD_Q = 52
SRD_T = 56
SRD_O = 60
S_W = 64
S_D = 4
S_ONES = 96
S_T0 = 99
S_T1 = 100
S_T2 = 101
S_EX = 20
S_SC = 22
S_IN1 = 23
S_OUT1 = 32
S_K0 = 26
S_K1 = 27

V_LANE = 1
V_T = 2
V_P = 3
V_O = 4
V_WM = 5
V_OR = 6
V_GO = 7
V_IN = 8
V_TMP = 9
V_X = 16
V_ACC = 48
V_TF = 80
V_PF = 144
V_S = 160
V_Q = V_S + 78
V_ST = 254
NVGPR = 256


def stamp_n(n):
    if not STAMPS:
        return
    a("s_memrealtime s[36:37]")
    a("s_waitcnt lgkmcnt(0)")
    a("v_writelane_b32 %s, s36, %d" % (vr(V_ST), n))
    a("s_memtime s[36:37]")
    a("s_waitcnt lgkmcnt(0)")
    a("v_writelane_b32 %s, s36, %d" % (vr(V_ST), n + 16))


_dd = [0]
def stamp_dump():
    if not STAMPS:
        return
    a("s_waitcnt vmcnt(0)")
    stamp_n(15)
    if MODE == "dbgt":
        a("s_load_dwordx2 s[36:37], s[0:1], 128")
        a("s_cmp_lg_u32 %s, 0" % sr(S_WAVE))
        a("s_cbranch_scc1 L_end")
        a("s_cmp_lg_u32 s2, %d" % (0 if _dd[0] == 0 else 130))
        a("s_cbranch_scc1 L_end")
        for k, ln in enumerate((0, 1, 6, 15, 16, 17, 22, 31)):
            a("v_readlane_b32 s38, %s, %d" % (vr(V_ST), ln))
            a("s_nop 3")
            a("v_mov_b32 %s, s38" % vr(V_S + k))
        a("v_mov_b32 %s, %d" % (vr(V_ST + 1), 32 * _dd[0]))
        a("s_waitcnt lgkmcnt(0)")
        a("s_mov_b64 exec, 1")
        a("global_store_dwordx4 %s, %s, s[36:37]" % (vr(V_ST + 1), vr(V_S, 4)))
        a("global_store_dwordx4 %s, %s, s[36:37] offset:16" % (vr(V_ST + 1), vr(V_S + 4, 4)))
        _dd[0] += 1
        return
    a("s_load_dwordx2 s[36:37], s[0:1], 136")
    a("s_lshl_b32 s38, s2, 3")
    a("s_add_u32 s38, s38, %s" % sr(S_WAVE))
    a("s_lshl_b32 s38, s38, 8")
    a("v_lshl_add_u32 %s, %s, 2, s38" % (vr(V_ST + 1), vr(V_LANE)))
    a("s_waitcnt lgkmcnt(0)")
    a("global_store_dword %s, %s, s[36:37]" % (vr(V_ST + 1), vr(V_ST)))


def header():
    a.l.append("; fused H3 (shift-SSM * v -> long conv -> gate) and S4D (kernel generation + long conv), one launch")
    a.l.append("; @launch grid=(256,1,1) block=(512,1,1) lds=%d" % LDS_TOTAL)
    a.l.append('.amdgcn_target "amdgcn-amd-amdhsa--gfx950"')
    a.l.append(".text")
    a.l.append(".globl " + NAME)
    a.l.append(".p2align 8")
    a.l.append(".type %s,@function" % NAME)
    a.lab(NAME)


def footer():
    a.lab("L_end")
    a("s_endpgm")
    a.l.append('.section .rodata,"a"')
    a.l.append(".p2align 6")
    a.l.append(".amdhsa_kernel " + NAME)
    a.l.append("  .amdhsa_next_free_vgpr %d" % NVGPR)
    a.l.append("  .amdhsa_next_free_sgpr 102")
    a.l.append("  .amdhsa_accum_offset %d" % NVGPR)
    a.l.append("  .amdhsa_group_segment_fixed_size 0")
    a.l.append("  .amdhsa_kernarg_size 144")
    a.l.append("  .amdhsa_user_sgpr_count 2")
    a.l.append("  .amdhsa_user_sgpr_kernarg_segment_ptr 1")
    a.l.append("  .amdhsa_system_sgpr_workgroup_id_x 1")
    a.l.append(".end_amdhsa_kernel")


def srd(d, plo, nbytes):
    a("s_mov_b32 %s, %s" % (sr(d), sr(plo)))
    a("s_and_b32 %s, %s, 0xffff" % (sr(d + 1), sr(plo + 1)))
    a("s_mov_b32 %s, 0x%x" % (sr(d + 2), nbytes))
    a("s_mov_b32 %s, 0x00020000" % sr(d + 3))


SLOTS = [
    [0x00, 0x02, 0x04, 0x05, 0x06, 0x07, 0x08, 0x09],
    [0x01, 0x03, 0x24, 0x25, 0x26, 0x27, 0x28, 0x29],
    [0x20, 0x22, 0x10, 0x12, 0x14, 0x16, 0x18, 0xff],
    [0x21, 0x23, 0x11, 0x13, 0x15, 0x17, 0x19, 0xff],
]


def prologue_common():
    a.c("---- decode workgroup -> (type, column, index) ----")
    a("s_cmp_ge_u32 s2, 256")
    a("s_cbranch_scc1 L_end")
    a("s_load_dwordx16 %s, s[0:1], 0" % sr(S_PTR, 16))
    a("s_load_dwordx16 %s, s[0:1], 64" % sr(S_PTR + 16, 16))
    if os.environ.get("BADMAP"):
        a("s_lshr_b32 %s, s2, 5" % sr(S_T0))
        a("s_and_b32 %s, s2, 31" % sr(S_T1))
    else:
        a("s_and_b32 %s, s2, 7" % sr(S_T0))
        a("s_lshr_b32 %s, s2, 3" % sr(S_T1))
    a("s_and_b32 %s, %s, 7" % (sr(S_I), sr(S_T1)))
    a("s_lshr_b32 %s, %s, 3" % (sr(S_T1), sr(S_T1)))
    def pk(t, lo): return sum(t[lo + i] << (8 * i) for i in range(4))
    a("s_mov_b32 %s, 0x%x" % (sr(S_COL), pk(SLOTS[0], 0)))
    a("s_mov_b32 %s, 0x%x" % (sr(S_T2), pk(SLOTS[0], 4)))
    for k in (1, 2, 3):
        a("s_cmp_eq_u32 %s, %d" % (sr(S_T1), k))
        a("s_cselect_b32 %s, 0x%x, %s" % (sr(S_COL), pk(SLOTS[k], 0), sr(S_COL)))
        a("s_cselect_b32 %s, 0x%x, %s" % (sr(S_T2), pk(SLOTS[k], 4), sr(S_T2)))
    a("s_cmp_ge_u32 %s, 4" % sr(S_T0))
    a("s_cselect_b32 %s, %s, %s" % (sr(S_COL), sr(S_T2), sr(S_COL)))
    a("s_and_b32 %s, %s, 3" % (sr(S_T0), sr(S_T0)))
    a("s_lshl_b32 %s, %s, 3" % (sr(S_T0), sr(S_T0)))
    a("s_lshr_b32 %s, %s, %s" % (sr(S_COL), sr(S_COL), sr(S_T0)))
    a("s_and_b32 %s, %s, 0xff" % (sr(S_COL), sr(S_COL)))
    a("s_cmp_eq_u32 %s, 0xff" % sr(S_COL))
    a("s_cbranch_scc1 L_end")
    a("s_lshr_b32 %s, %s, 4" % (sr(S_TYPE), sr(S_COL)))
    a("s_and_b32 %s, %s, 15" % (sr(S_COL), sr(S_COL)))
    a("s_lshl_b32 %s, %s, 6" % (sr(S_CH0), sr(S_COL)))
    a("s_lshl_b32 %s, %s, 3" % (sr(S_T0), sr(S_I)))
    a("s_add_u32 %s, %s, %s" % (sr(S_CH0), sr(S_CH0), sr(S_T0)))
    a("v_lshrrev_b32 %s, 6, v0" % vr(V_TMP))
    a("v_and_b32 %s, 63, v0" % vr(V_LANE))
    a("s_mov_b32 %s, 0x3f803f80" % sr(S_ONES))
    a("v_readfirstlane_b32 %s, %s" % (sr(S_WAVE), vr(V_TMP)))
    a("s_cmp_eq_u32 %s, 2" % sr(S_TYPE))
    a("s_cbranch_scc1 L_helper")
    a.c("---- per-lane addresses ----")
    t0, t1, t2, t3 = V_TMP, V_TMP + 1, V_TMP + 2, V_TMP + 3
    a("v_and_b32 %s, 15, %s" % (vr(t0), vr(V_LANE)))
    a("v_lshrrev_b32 %s, 4, %s" % (vr(t1), vr(V_LANE)))
    a("v_add_u32 %s, 1, %s" % (vr(t2), vr(t0)))
    a("v_and_b32 %s, 3, %s" % (vr(t3), vr(t2)))
    a("v_sub_u32 %s, %s, %s" % (vr(t2), vr(t2), vr(t3)))
    a("v_lshlrev_b32 %s, 1, %s" % (vr(t2), vr(t2)))
    a("v_mul_u32_u24 %s, %d, %s" % (vr(t3), TCOPY, vr(t3)))
    a("v_add_u32 %s, %s, %s" % (vr(t2), vr(t2), vr(t3)))
    a("v_lshl_add_u32 %s, %s, 4, %s" % (vr(t2), vr(t1), vr(t2)))
    a("s_mul_i32 %s, %s, %d" % (sr(S_T0), sr(S_WAVE), TSZ))
    a("v_add_u32 %s, %s, %s" % (vr(V_T), sr(S_T0), vr(t2)))
    a("s_mul_i32 %s, %s, %d" % (sr(S_T0), sr(S_WAVE), PCH))
    a("s_add_u32 %s, %s, %d" % (sr(S_T0), sr(S_T0), P0))
    a("v_lshlrev_b32 %s, 5, %s" % (vr(t2), vr(t0)))
    a("v_lshl_add_u32 %s, %s, 3, %s" % (vr(t3), vr(t1), vr(t2)))
    a("v_add_u32 %s, %s, %s" % (vr(V_O), sr(S_T0), vr(t3)))
    a("v_lshlrev_b32 %s, 4, %s" % (vr(t3), vr(t1)))
    a("v_sub_u32 %s, %s, %s" % (vr(t3), vr(t3), vr(t2)))
    a("s_add_u32 %s, %s, 480" % (sr(S_T0), sr(S_T0)))
    a("v_add_u32 %s, %s, %s" % (vr(V_P), sr(S_T0), vr(t3)))
    a("v_lshlrev_b32 %s, 1, v0" % vr(t0))
    a("v_sub_u32 %s, %d, %s" % (vr(V_WM), P0 + 1022, vr(t0)))
    a("v_add_u32 %s, %d, %s" % (vr(V_OR), P0, vr(t0)))
    a("s_lshl_b32 %s, %s, 1" % (sr(S_T1), sr(S_CH0)))
    a("v_mul_u32_u24 %s, 1280, v0" % vr(t1))
    a("v_add_u32 %s, %s, %s" % (vr(V_IN), sr(S_T1), vr(t1)))
    a("s_mul_i32 %s, %s, 1280" % (sr(S_T2), sr(S_TYPE)))
    a("s_add_u32 %s, %s, %s" % (sr(S_T2), sr(S_T2), sr(S_T1)))
    a("v_lshl_add_u32 %s, %s, 1, %s" % (vr(V_GO), vr(t1), sr(S_T2)))
    a("s_waitcnt lgkmcnt(0)")
    srd(SRD_O, PTR(15), 2048 * 2560)
    stamp_n(0)
    a("s_cmp_eq_u32 %s, 1" % sr(S_TYPE))
    a("s_cbranch_scc1 L_pathB")


def step_offsets():
    for p in (1, 2, 3):
        a("s_mov_b32 %s, %d" % (sr(S_IN1 + p - 1), p * 512 * 1280))
        a("s_mov_b32 %s, %d" % (sr(S_OUT1 + p - 1), p * 512 * 2560))


def sin(p): return "0" if p == 0 else sr(S_IN1 + p - 1)
def sout(p): return "0" if p == 0 else sr(S_OUT1 + p - 1)


def helper():
    a.lab("L_helper")
    a.c("================= helper : bring k, v (rows >= 512) and q of one A column into this XCD's L2 =================")
    items = []
    for g in (1, 2):
        for b in range(8):
            items += [(0, 8 * g + b), (1, 8 * g + b)]
    for b in range(8):
        items.append((2, b))
    for b in range(8):
        items += [(0, 24 + b), (1, 24 + b)]
    for b in range(8, 32):
        items.append((2, b))
    assert len(items) == 80
    a("s_waitcnt lgkmcnt(0)")
    srd(SRD_X, PTR(1), 2048 * 1280)
    srd(SRD_V, PTR(2), 2048 * 1280)
    srd(SRD_Q, PTR(0), 2048 * 1280)
    a("v_mul_u32_u24 %s, 1280, %s" % (vr(V_TMP), vr(V_LANE)))
    a("s_lshl_b32 %s, %s, 7" % (sr(S_T1), sr(S_COL)))
    a("v_add_u32 %s, %s, %s" % (vr(V_TMP), sr(S_T1), vr(V_TMP)))
    a("s_lshr_b32 %s, %s, 1" % (sr(S_T0), sr(S_I)))
    a("s_lshl_b32 %s, %s, 2" % (sr(S_T1), sr(S_WAVE)))
    a("s_add_u32 %s, %s, %s" % (sr(S_T0), sr(S_T0), sr(S_T1)))
    a("s_cmp_eq_u32 %s, 4" % sr(S_WAVE))
    a("s_cbranch_scc1 L_hq0")
    a("s_cmp_eq_u32 %s, 7" % sr(S_WAVE))
    a("s_cbranch_scc1 L_hq1")
    a("s_cmp_lt_u32 %s, 4" % sr(S_WAVE))
    a("s_cselect_b32 %s, 8, 4" % sr(S_T1))
    a("s_add_u32 %s, %s, %s" % (sr(S_T0), sr(S_T0), sr(S_T1)))
    a("s_mul_i32 %s, %s, %d" % (sr(S_T0), sr(S_T0), 64 * 1280))
    a("s_and_b32 %s, %s, 1" % (sr(S_T1), sr(S_I)))
    a("s_cmp_eq_u32 %s, 1" % sr(S_T1))
    a("s_cbranch_scc1 L_hv")
    a("buffer_load_dword %s, %s, %s, %s offen" % (vr(V_TMP + 1), vr(V_TMP), sr(SRD_X, 4), sr(S_T0)))
    a("s_branch L_h2")
    a.lab("L_hv")
    a("buffer_load_dword %s, %s, %s, %s offen" % (vr(V_TMP + 1), vr(V_TMP), sr(SRD_V, 4), sr(S_T0)))
    a.lab("L_h2")
    a("s_cmp_ge_u32 %s, 2" % sr(S_WAVE))
    a("s_cbranch_scc1 L_hend")
    a("s_lshl_b32 %s, %s, 3" % (sr(S_T0), sr(S_WAVE)))
    a("s_add_u32 %s, %s, 16" % (sr(S_T0), sr(S_T0)))
    a("s_branch L_hq")
    a.lab("L_hq0")
    a("s_mov_b32 %s, 0" % sr(S_T0))
    a("s_branch L_hq")
    a.lab("L_hq1")
    a("s_mov_b32 %s, 8" % sr(S_T0))
    a.lab("L_hq")
    a("s_add_u32 %s, %s, %s" % (sr(S_T0), sr(S_T0), sr(S_I)))
    a("s_mul_i32 %s, %s, %d" % (sr(S_T0), sr(S_T0), 64 * 1280))
    a("buffer_load_dword %s, %s, %s, %s offen" % (vr(V_TMP + 2), vr(V_TMP), sr(SRD_Q, 4), sr(S_T0)))
    a.lab("L_hend")
    a("s_waitcnt vmcnt(0)")
    a("s_endpgm")


V_TA = V_TMP + 5
V_TA2 = V_TMP + 6


def write_copies(d, tmp, n):
    imm = 32 + 1024 * n
    a("v_add_u32 %s, %d, %s" % (vr(V_TA2), imm + 2 * TCOPY, vr(V_TA)))
    for k in range(4):
        a("v_alignbit_b32 %s, %s, %s, 16" % (vr(tmp + k), vr(d + k + 1), vr(d + k)))
    for k in range(4):
        a("v_alignbit_b32 %s, %s, %s, 16" % (vr(tmp + 4 + k), vr(d + k + 2), vr(d + k + 1)))
    a("ds_write_b128 %s, %s offset:%d" % (vr(V_TA), vr(d, 4), imm))
    a("ds_write2_b32 %s, %s, %s offset0:0 offset1:1" % (vr(V_TA2), vr(d + 1), vr(d + 2)))
    a("ds_write2_b32 %s, %s, %s offset0:2 offset1:3" % (vr(V_TA2), vr(d + 3), vr(d + 4)))
    a("ds_write_b128 %s, %s offset:%d" % (vr(V_TA), vr(tmp, 4), imm + TCOPY))
    a("ds_write_b128 %s, %s offset:%d" % (vr(V_TA), vr(tmp + 4, 4), imm + 3 * TCOPY))


def write_head(d0, d1, tmp):
    for k in range(4):
        a("v_mov_b32 %s, 0" % vr(tmp + k))
    a("v_lshlrev_b32 %s, 16, %s" % (vr(tmp + 4), vr(d0)))
    a("v_alignbit_b32 %s, %s, %s, 16" % (vr(tmp + 5), vr(d1), vr(d0)))
    a("s_mov_b64 %s, exec" % sr(S_EX, 2))
    a("s_mov_b64 exec, 3")
    for s in range(4):
        a("ds_write_b128 %s, %s offset:%d" % (vr(V_TA), vr(tmp, 4), s * TCOPY))
    a("s_mov_b64 exec, 1")
    a("ds_write_b32 %s, %s offset:%d" % (vr(V_TA), vr(tmp + 4), TCOPY + 28))
    a("ds_write_b32 %s, %s offset:%d" % (vr(V_TA), vr(d0), 2 * TCOPY + 28))
    a("ds_write_b64 %s, %s offset:%d" % (vr(V_TA), vr(tmp + 4, 2), 3 * TCOPY + 24))
    a("s_mov_b64 exec, %s" % sr(S_EX, 2))


def tbase_addr():
    a("s_mul_i32 %s, %s, %d" % (sr(S_T0), sr(S_WAVE), TSZ))
    a("v_lshl_add_u32 %s, %s, 4, %s" % (vr(V_TA), vr(V_LANE), sr(S_T0)))


def d_load(ptr_idx):
    a("s_lshl_b32 %s, %s, 1" % (sr(S_T0), sr(S_CH0)))
    a("s_add_u32 %s, %s, %s" % (sr(S_T0 + 1), sr(PTR(ptr_idx)), sr(S_T0)))
    a("s_addc_u32 %s, %s, 0" % (sr(S_T0 + 2), sr(PTR(ptr_idx) + 1)))
    a("s_load_dwordx4 s[92:95], %s, 0" % sr(S_T0 + 1, 2))


def d_selectors():
    for c in range(8):
        src = 92 + (c >> 1)
        if c & 1:
            a("s_and_b32 %s, %s, 0xffff0000" % (sr(S_D + c), sr(src)))
        else:
            a("s_lshl_b32 %s, %s, 16" % (sr(S_D + c), sr(src)))


class VM:
    def __init__(self):
        self.q = []

    def issue(self, tag):
        self.q.append(tag)

    def wait(self, tag):
        idx = max(i for i, t in enumerate(self.q) if t == tag)
        return "s_waitcnt vmcnt(%d)" % (len(self.q) - 1 - idx)


RAW = [V_S, V_S + 20]
V_PA = V_S + 40
V_U = V_S + 48
V_Y = V_S + 56
V_T1 = V_S + 64
V_OUT = V_S + 70
V_HA = V_TMP + 4


def unpack(dst, src, c):
    if c & 1:
        return "v_and_b32 %s, 0xffff0000, %s" % (vr(dst), vr(src))
    return "v_lshlrev_b32 %s, 16, %s" % (vr(dst), vr(src))


def raw_loads(p, vm):
    R = RAW[p & 1]
    out = []
    out.append("v_add_u32 %s, %d, %s" % (vr(V_HA), p * 512 * 1280 - 3 * 1280, vr(V_IN)))
    out.append("s_mov_b64 exec, 1")
    for j in range(3):
        out.append("buffer_load_dwordx4 %s, %s, %s, 0 offen offset:%d" % (vr(R + 4 * j, 4), vr(V_HA), sr(SRD_X, 4), 1280 * j))
        vm.issue("raw%d" % p)
    out.append("s_mov_b64 exec, -1")
    out.append("buffer_load_dwordx4 %s, %s, %s, %s offen" % (vr(R + 12, 4), vr(V_IN), sr(SRD_X, 4), sin(p)))
    vm.issue("raw%d" % p)
    out.append("buffer_load_dwordx4 %s, %s, %s, %s offen" % (vr(R + 16, 4), vr(V_IN), sr(SRD_V, 4), sin(p)))
    vm.issue("raw%d" % p)
    return out


def prologue_math(p, vm):
    R = RAW[p & 1]
    out = [vm.wait("raw%d" % p)]
    for j in (2, 1, 0):
        for d in range(4):
            out.append("v_mov_b32_dpp %s, %s wave_shr:1 row_mask:0xf bank_mask:0xf" % (vr(R + 4 * j + d), vr(R + 4 * j + 4 + d)))
    VV = R + 16
    rnd = lambda x: "v_cvt_pk_bf16_f32 %s, 0, %s" % (vr(x), vr(x))
    for t in range(4):
        for c in range(8):
            out.append(unpack(V_U + c, R + 4 * t + (c >> 1), c))
        w = lambda c: sr(S_W + 4 * c + 3 - t)
        if EXACT:
            if t == 0:
                for c in range(8):
                    out.append("v_mul_f32 %s, %s, %s" % (vr(V_PA + c), w(c), vr(V_U + c)))
                for c in range(8):
                    out.append(rnd(V_PA + c))
            else:
                for c in range(8):
                    out.append("v_mul_f32 %s, %s, %s" % (vr(V_U + c), w(c), vr(V_U + c)))
                for c in range(8):
                    out.append(rnd(V_U + c))
                for c in range(8):
                    out.append("v_add_f32 %s, %s, %s" % (vr(V_PA + c), vr(V_PA + c), vr(V_U + c)))
                for c in range(8):
                    out.append(rnd(V_PA + c))
        else:
            for c in range(8):
                if t == 0:
                    out.append("v_mul_f32 %s, %s, %s" % (vr(V_PA + c), w(c), vr(V_U + c)))
                else:
                    out.append("v_fmac_f32 %s, %s, %s" % (vr(V_PA + c), w(c), vr(V_U + c)))
    for c in range(8):
        out.append(unpack(V_U + c, VV + (c >> 1), c))
    for c in range(8):
        out.append("v_mul_f32 %s, %s, %s" % (vr(V_PA + c), vr(V_PA + c), vr(V_U + c)))
    for c in range(8):
        out.append("v_cvt_pk_bf16_f32 %s, 0, %s" % (vr(V_X + 8 * p + c), vr(V_PA + c)))
    return out


def p_writes(typ, p, prev):
    par = (p + (1 if prev else 0)) & 1
    out = []
    for c in range(8):
        off = par * PBUF + c * PCH + (1024 if prev else 0)
        if typ == 0:
            out.append("ds_write_b16_d16_hi %s, %s offset:%d" % (vr(V_WM), vr(V_X + 8 * p + c), off))
        else:
            out.append("ds_write_b16%s %s, %s offset:%d" % ("_d16_hi" if c & 1 else "", vr(V_WM), vr(V_X + 4 * p + (c >> 1)), off))
    return out


def out_reads(p):
    return ["ds_read_u16_d16_hi %s, %s offset:%d" % (vr(V_Y + c), vr(V_OR), (p & 1) * PBUF + c * PCH) for c in range(8)]


def epilogue_math(typ, p, vm):
    O = V_OUT + 4 * (p & 1)
    out = []
    rnd = lambda x: "v_cvt_pk_bf16_f32 %s, 0, %s" % (vr(x), vr(x))
    X = V_X + 8 * p
    if typ == 1:
        X = V_U
        for c in range(8):
            out.append(unpack(X + c, V_X + 4 * p + (c >> 1), c))
    if EXACT:
        for c in range(8):
            out.append("v_mul_f32 %s, %s, %s" % (vr(X + c), sr(S_D + c), vr(X + c)))
        for c in range(8):
            out.append(rnd(X + c))
        for c in range(8):
            out.append("v_add_f32 %s, %s, %s" % (vr(V_Y + c), vr(V_Y + c), vr(X + c)))
        if typ == 0:
            for c in range(8):
                out.append(rnd(V_Y + c))
    else:
        for c in range(8):
            out.append("v_fmac_f32 %s, %s, %s" % (vr(V_Y + c), sr(S_D + c), vr(X + c)))
    if typ == 0:
        out.append(vm.wait("q%d" % p))
        for c in range(8):
            out.append(unpack(X + c, V_Q + 4 * p + (c >> 1), c))
        for c in range(8):
            out.append("v_mul_f32 %s, %s, %s" % (vr(V_Y + c), vr(V_Y + c), vr(X + c)))
    for d in range(4):
        out.append("v_cvt_pk_bf16_f32 %s, %s, %s" % (vr(O + d), vr(V_Y + 2 * d), vr(V_Y + 2 * d + 1)))
    out.append("buffer_store_dwordx4 %s, %s, %s, %s offen" % (vr(O, 4), vr(V_GO), sr(SRD_O, 4), sout(p)))
    vm.issue("st%d" % p)
    return out


def path_A():
    vm = VM()
    a.c("================= path A : H3 =================")
    srd(SRD_X, PTR(1), 2048 * 1280)
    srd(SRD_V, PTR(2), 2048 * 1280)
    a("s_cmp_ge_u32 %s, 2" % sr(S_WAVE))
    a("s_cbranch_scc1 L_pfd")
    a("s_lshl_b32 %s, %s, 6" % (sr(S_T0), sr(S_I)))
    a("v_add_u32 %s, %s, %s" % (vr(V_TMP + 2), sr(S_T0), vr(V_LANE)))
    a("v_mul_u32_u24 %s, 1280, %s" % (vr(V_TMP + 2), vr(V_TMP + 2)))
    a("s_lshl_b32 %s, %s, 7" % (sr(S_T1), sr(S_COL)))
    a("v_add_u32 %s, %s, %s" % (vr(V_TMP + 2), sr(S_T1), vr(V_TMP + 2)))
    a("s_cmp_eq_u32 %s, 1" % sr(S_WAVE))
    a("s_cbranch_scc1 L_pfv")
    a("buffer_load_dword %s, %s, %s, 0 offen" % (vr(V_TMP + 3), vr(V_TMP + 2), sr(SRD_X, 4)))
    a("s_branch L_pfd")
    a.lab("L_pfv")
    a("buffer_load_dword %s, %s, %s, 0 offen" % (vr(V_TMP + 3), vr(V_TMP + 2), sr(SRD_V, 4)))
    a.lab("L_pfd")
    srd(SRD_Q, PTR(0), 2048 * 1280)
    a("s_add_u32 %s, %s, %s" % (sr(S_T0), sr(S_CH0), sr(S_WAVE)))
    a("s_lshl_b32 %s, %s, 12" % (sr(S_T0), sr(S_T0)))
    a("s_add_u32 %s, %s, %s" % (sr(SRD_T), sr(PTR(4)), sr(S_T0)))
    a("s_addc_u32 %s, %s, 0" % (sr(SRD_T + 1), sr(PTR(4) + 1)))
    a("s_and_b32 %s, %s, 0xffff" % (sr(SRD_T + 1), sr(SRD_T + 1)))
    a("s_mov_b32 %s, 4096" % sr(SRD_T + 2))
    a("s_mov_b32 %s, 0x00020000" % sr(SRD_T + 3))
    TD = V_TF
    a("v_lshlrev_b32 %s, 4, %s" % (vr(V_TMP), vr(V_LANE)))
    for n in range(4):
        a("buffer_load_dwordx4 %s, %s, %s, 0 offen offset:%d" % (vr(TD + 8 * n, 4), vr(V_TMP), sr(SRD_T, 4), 1024 * n))
        a("buffer_load_dwordx2 %s, %s, %s, 0 offen offset:%d" % (vr(TD + 8 * n + 4, 2), vr(V_TMP), sr(SRD_T, 4), 1024 * n + 16))
    a("s_lshl_b32 %s, %s, 3" % (sr(S_T0), sr(S_CH0)))
    a("s_add_u32 %s, %s, %s" % (sr(S_T0 + 1), sr(PTR(3)), sr(S_T0)))
    a("s_addc_u32 %s, %s, 0" % (sr(S_T0 + 2), sr(PTR(3) + 1)))
    a("s_load_dwordx16 s[20:35], %s, 0" % sr(S_T0 + 1, 2))
    d_load(5)
    tbase_addr()
    a("s_waitcnt lgkmcnt(0)")
    d_selectors()
    for c in range(8):
        for j in range(4):
            src = 20 + 2 * c + (j >> 1)
            dst = S_W + 4 * c + j
            if j & 1:
                a("s_and_b32 %s, %s, 0xffff0000" % (sr(dst), sr(src)))
            else:
                a("s_lshl_b32 %s, %s, 16" % (sr(dst), sr(src)))
    step_offsets()
    a("s_waitcnt vmcnt(8)")
    stamp_n(1)
    a("s_barrier")
    for s_ in raw_loads(0, vm):
        a(s_)
    for s_ in raw_loads(1, vm):
        a(s_)
    stamp_n(2)
    a("s_waitcnt vmcnt(10)")
    write_head(TD, TD + 1, V_ACC)
    for n in range(4):
        write_copies(TD + 8 * n, V_ACC + 8 + 8 * (n & 1), n)
    stamp_n(3)
    for s_ in prologue_math(0, vm):
        a(s_)
    stamp_n(4)
    conv(0, vm)


def cmul(d, x, y):
    a("v_pk_mul_f32 %s, %s, %s op_sel_hi:[1,0]" % (vr(d, 2), vr(x, 2), vr(y, 2)))
    a("v_pk_fma_f32 %s, %s, %s, %s op_sel:[1,1,0] op_sel_hi:[0,1,1] neg_lo:[1,0,0]" % (vr(d, 2), vr(x, 2), vr(y, 2), vr(d, 2)))


def path_B():
    vm = VM()
    a.lab("L_pathB")
    a.c("================= path B : S4D =================")
    srd(SRD_X, PTR(6), 2048 * 1280)
    PRM = V_PF
    a("s_add_u32 %s, %s, %s" % (sr(S_T0), sr(S_CH0), sr(S_WAVE)))
    a("s_lshl_b32 %s, %s, 8" % (sr(S_T1), sr(S_T0)))
    a("v_lshl_add_u32 %s, %s, 2, %s" % (vr(V_TMP), vr(V_LANE), sr(S_T1)))
    for k in range(6):
        a("global_load_dword %s, %s, %s" % (vr(PRM + k), vr(V_TMP), sr(PTR(7 + k), 2)))
    a("s_lshl_b32 %s, %s, 1" % (sr(S_T1), sr(S_T0)))
    a("s_and_b32 %s, %s, -4" % (sr(S_T1), sr(S_T1)))
    a("s_add_u32 %s, %s, %s" % (sr(S_W), sr(PTR(13)), sr(S_T1)))
    a("s_addc_u32 %s, %s, 0" % (sr(S_W + 1), sr(PTR(13) + 1)))
    a("s_load_dword %s, %s, 0" % (sr(S_W + 2), sr(S_W, 2)))
    a("s_and_b32 %s, %s, 1" % (sr(S_W + 4), sr(S_T0)))
    d_load(14)
    a("s_lshl_b32 %s, %s, 8" % (sr(S_T1), sr(S_WAVE)))
    a("s_lshl_b32 %s, %s, 5" % (sr(S_T2), sr(S_I)))
    a("s_add_u32 %s, %s, %s" % (sr(S_T1), sr(S_T1), sr(S_T2)))
    a("v_and_b32 %s, 31, %s" % (vr(V_TMP + 2), vr(V_LANE)))
    a("v_add_u32 %s, %s, %s" % (vr(V_TMP + 2), sr(S_T1), vr(V_TMP + 2)))
    a("v_mul_u32_u24 %s, 1280, %s" % (vr(V_TMP + 2), vr(V_TMP + 2)))
    a("s_lshl_b32 %s, %s, 7" % (sr(S_T1), sr(S_COL)))
    a("v_add_u32 %s, %s, %s" % (vr(V_TMP + 2), sr(S_T1), vr(V_TMP + 2)))
    a("buffer_load_dword %s, %s, %s, 0 offen" % (vr(V_TMP + 4), vr(V_TMP + 2), sr(SRD_X, 4)))
    a("s_waitcnt lgkmcnt(0)")
    a("s_lshl_b32 %s, %s, 16" % (sr(S_W + 3), sr(S_W + 2)))
    a("s_and_b32 %s, %s, 0xffff0000" % (sr(S_W + 2), sr(S_W + 2)))
    a("s_cmp_eq_u32 %s, 1" % sr(S_W + 4))
    a("s_cselect_b32 %s, %s, %s" % (sr(S_W + 2), sr(S_W + 2), sr(S_W + 3)))
    d_selectors()
    step_offsets()
    DT = V_PF + 6
    a("v_mov_b32 %s, 0x3fb8aa3b" % vr(DT))
    a("v_mul_f32 %s, %s, %s" % (vr(DT), sr(S_W + 2), vr(DT)))
    a("v_exp_f32 %s, %s" % (vr(DT), vr(DT)))
    AW = V_TMP + 1
    AR = V_TMP + 2
    a("s_mul_i32 %s, %s, %d" % (sr(S_T0), sr(S_WAVE), TSZ))
    a("v_cvt_pk_bf16_f32 %s, 0, %s" % (vr(DT), vr(DT)))
    a("v_lshl_add_u32 %s, %s, 3, %s" % (vr(AW), vr(V_LANE), sr(S_T0)))
    a("v_and_b32 %s, 15, %s" % (vr(AR), vr(V_LANE)))
    a("v_mul_u32_u24 %s, %d, %s" % (vr(AR), LROW, vr(AR)))
    a("v_lshrrev_b32 %s, 4, %s" % (vr(V_TMP + 3), vr(V_LANE)))
    a("v_lshl_add_u32 %s, %s, 4, %s" % (vr(AR), vr(V_TMP + 3), vr(AR)))
    a("v_add_u32 %s, %s, %s" % (vr(AR), sr(S_T0), vr(AR)))
    M = [V_S, V_S + 46]
    def AR2(m): return M[m]
    def AI2(m): return M[m] + 1
    def Wv(m): return M[m] + 2
    def Ep(m, phi): return M[m] + 4 + 2 * (phi - 1)
    def Rr(m, j): return M[m] + 18 + 2 * (j - 1)
    def E128(m): return M[m] + 34
    def G(m, i): return M[m] + 36 + 2 * (i & 1)
    def TA(m, n): return M[m] + 40 + 2 * (n % 3)
    CV = V_ACC + 16
    FRB = V_TF
    FRA = V_TF + 32
    FRC = V_X
    KACC = V_ACC
    stamp_n(1)
    a("s_waitcnt vmcnt(1)")
    stamp_n(2)
    for m in range(2):
        def un(dst, src):
            if m == 0:
                a("v_lshlrev_b32 %s, 16, %s" % (vr(dst), vr(src)))
            else:
                a("v_and_b32 %s, 0xffff0000, %s" % (vr(dst), vr(src)))
        un(AR2(m), PRM + 0)
        un(AI2(m), PRM + 1)
        un(TA(m, 0), PRM + 2)
        un(TA(m, 0) + 1, PRM + 3)
        un(TA(m, 1), PRM + 4)
        un(TA(m, 1) + 1, PRM + 5)
    for m in range(2):
        a("v_mul_f32 %s, %s, %s" % (vr(AR2(m)), vr(DT), vr(AR2(m))))
        a("v_mul_f32 %s, %s, %s" % (vr(AI2(m)), vr(DT), vr(AI2(m))))
        a("v_mul_f32 %s, 0x3fb8aa3b, %s" % (vr(AR2(m)), vr(AR2(m))))
        a("v_mul_f32 %s, 0.15915494, %s" % (vr(AI2(m)), vr(AI2(m))))
        a("v_mul_f32 %s, %s, %s" % (vr(TA(m, 0)), vr(DT), vr(TA(m, 0))))
        a("v_mul_f32 %s, %s, %s" % (vr(TA(m, 0) + 1), vr(DT), vr(TA(m, 0) + 1)))
        cmul(Wv(m), TA(m, 1), TA(m, 0))
    mx = CV
    a("v_max_f32 %s, |%s|, |%s|" % (vr(mx), vr(Wv(0)), vr(Wv(0) + 1)))
    a("v_max3_f32 %s, |%s|, |%s|, %s" % (vr(mx), vr(Wv(1)), vr(Wv(1) + 1), vr(mx)))
    dpp = ["row_shr:1 row_mask:0xf", "row_shr:2 row_mask:0xf", "row_shr:4 row_mask:0xf", "row_shr:8 row_mask:0xf", "row_bcast:15 row_mask:0xa", "row_bcast:31 row_mask:0xc"]
    k = 0
    for x, lit in ((1, "1.0"), (8, "0x41000000"), (128, "0x43000000")):
        for m in range(2):
            dst = Ep(m, 1) if x == 1 else Rr(m, 1) if x == 8 else E128(m)
            t = TA(m, 0)
            a("v_mul_f32 %s, %s, %s" % (vr(t), lit, vr(AR2(m))))
            a("v_mul_f32 %s, %s, %s" % (vr(t + 1), lit, vr(AI2(m))))
            a("v_max_f32_dpp %s, %s, %s %s bank_mask:0xf" % (vr(mx), vr(mx), vr(mx), dpp[k])); k += 1
            a("v_exp_f32 %s, %s" % (vr(t), vr(t)))
            a("v_fract_f32 %s, %s" % (vr(t + 1), vr(t + 1)))
            a("v_cos_f32 %s, %s" % (vr(t + 2), vr(t + 1)))
            a("v_sin_f32 %s, %s" % (vr(t + 3), vr(t + 1)))
            a("s_nop 0")
            a("v_mul_f32 %s, %s, %s" % (vr(dst), vr(t), vr(t + 2)))
            a("v_mul_f32 %s, %s, %s" % (vr(dst + 1), vr(t), vr(t + 3)))
    a("v_readlane_b32 %s, %s, 63" % (sr(S_SC), vr(mx)))
    cvi = [0]
    def put(off, p0, p1, neg):
        c = CV + 2 * (cvi[0] & 3); cvi[0] += 1
        n = "-" if neg else ""
        a("v_cvt_pk_f16_f32 %s, %s, %s%s" % (vr(c), vr(p0), n, vr(p0 + 1)))
        a("v_cvt_pk_f16_f32 %s, %s, %s%s" % (vr(c + 1), vr(p1), n, vr(p1 + 1)))
        a("ds_write_b64 %s, %s offset:%d" % (vr(AW), vr(c, 2), off))
    a("v_mov_b32 %s, 0x3c00" % vr(CV + 6))
    a("v_mov_b32 %s, 0x3c00" % vr(CV + 7))
    a("ds_write_b64 %s, %s offset:0" % (vr(AW), vr(CV + 6, 2)))
    a("s_and_b32 %s, %s, 0x7f800000" % (sr(S_SC), sr(S_SC)))
    a("s_sub_u32 %s, 0x7f000000, %s" % (sr(S_T0), sr(S_SC)))
    for m in range(2):
        a("v_mul_f32 %s, %s, %s" % (vr(Wv(m)), sr(S_T0), vr(Wv(m))))
        a("v_mul_f32 %s, %s, %s" % (vr(Wv(m) + 1), sr(S_T0), vr(Wv(m) + 1)))
    put(LROW, Rr(0, 1), Rr(1, 1), True)
    for j in range(2, 9):
        for m in range(2):
            cmul(Rr(m, j), Rr(m, j // 2), Rr(m, j - j // 2))
        put(j * LROW, Rr(0, j), Rr(1, j), True)
    for j in range(9, 16):
        for m in range(2):
            cmul(TA(m, j), Rr(m, 8), Rr(m, j - 8))
        put(j * LROW, TA(0, j), TA(1, j), True)
    for phi in range(2, 8):
        for m in range(2):
            cmul(Ep(m, phi), Ep(m, phi // 2), Ep(m, phi - phi // 2))
    def lrow_off(row):
        return (KBUF if (row >> 4) != 1 else 0) + (row & 15) * LROW
    cur = [Wv(0), Wv(1)]
    tn = [0]
    for i in range(17):
        if i < 2:
            rows = [(8 * i + phi, phi) for phi in range(8)]
        elif i < 4:
            rows = [(16 + 4 * (i - 2) + f, 2 * f) for f in range(4)]
        elif i < 8:
            rows = [(24 + 2 * (i - 4) + f, 4 * f) for f in range(2)]
        else:
            rows = [(32 + (i - 8), 0)]
        if i == 2:
            a("s_waitcnt lgkmcnt(0)")
            for kp in range(8):
                a("ds_read_b128 %s, %s offset:%d" % (vr(FRB + 4 * kp, 4), vr(AR), 64 * kp))
            for kp in range(8):
                a("ds_read_b128 %s, %s offset:%d" % (vr(FRA + 4 * kp, 4), vr(AR), KBUF + 64 * kp))
        nxt = [G(0, i), G(1, i)]
        if i < 16:
            for m in range(2):
                cmul(nxt[m], cur[m], E128(m))
        if i == 2:
            a("s_waitcnt lgkmcnt(0)")
        for n, (row, phi) in enumerate(rows):
            if phi == 0:
                put(lrow_off(row), cur[0], cur[1], False)
            else:
                for m in range(2):
                    cmul(TA(m, tn[0]), cur[m], Ep(m, phi))
                put(lrow_off(row), TA(0, tn[0]), TA(1, tn[0]), False)
                tn[0] += 1
            if 16 <= row < 24:
                kp = row - 16
                a("v_mfma_f32_16x16x32_f16 %s, %s, %s, %s" % (vr(KACC, 4), vr(FRA + 4 * kp, 4), vr(FRB + 4 * kp, 4), "0" if kp == 0 else vr(KACC, 4)))
        cur = nxt
    a("s_waitcnt lgkmcnt(0)")
    for kp in range(8):
        a("ds_read_b128 %s, %s offset:%d" % (vr(FRA + 4 * kp, 4), vr(AR), 64 * kp))
    for kp in range(8):
        a("ds_read_b128 %s, %s offset:%d" % (vr(FRC + 4 * kp, 4), vr(AR), KBUF + 64 * kp))
    j, g = V_TMP, V_TMP + 3
    A0, A1, A1b, A2 = V_S, V_S + 1, V_S + 2, V_S + 3
    a("v_and_b32 %s, 15, %s" % (vr(j), vr(V_LANE)))
    a("s_mul_i32 %s, %s, %d" % (sr(S_T1), sr(S_WAVE), PCH))
    a("s_add_u32 %s, %s, %d" % (sr(S_T1), sr(S_T1), P0 + PBUF))
    a("v_lshrrev_b32 %s, 1, %s" % (vr(A0), vr(g)))
    a("v_lshlrev_b32 %s, 7, %s" % (vr(A0), vr(A0)))
    a("v_and_b32 %s, 1, %s" % (vr(A1), vr(g)))
    a("v_lshl_add_u32 %s, %s, 2, %s" % (vr(A0), vr(A1), vr(A0)))
    a("v_lshl_add_u32 %s, %s, 3, %s" % (vr(A0), vr(j), vr(A0)))
    a("v_lshl_add_u32 %s, %s, 1, %s" % (vr(A0), vr(A0), sr(S_T1)))
    a("v_lshlrev_b32 %s, 6, %s" % (vr(A2), vr(g)))
    a("v_cmp_gt_u32 vcc, 2, %s" % vr(g))
    a("v_lshlrev_b32 %s, 2, %s" % (vr(A1), vr(j)))
    a("v_lshlrev_b32 %s, 1, %s" % (vr(A1b), vr(j)))
    a("v_cndmask_b32 %s, %s, %s, vcc" % (vr(A1), vr(A1b), vr(A1)))
    a("s_waitcnt lgkmcnt(8)")
    for kp in range(8):
        a("v_mfma_f32_16x16x32_f16 %s, %s, %s, %s" % (vr(KACC + 4, 4), vr(FRA + 4 * kp, 4), vr(FRB + 4 * kp, 4), "0" if kp == 0 else vr(KACC + 4, 4)))
    a("s_waitcnt lgkmcnt(0)")
    for kp in range(8):
        a("v_mfma_f32_16x16x32_f16 %s, %s, %s, %s" % (vr(KACC + 8, 4), vr(FRC + 4 * kp, 4), vr(FRB + 4 * kp, 4), "0" if kp == 0 else vr(KACC + 8, 4)))
    a("v_add_u32 %s, %s, %s" % (vr(A1), vr(A1), vr(A2)))
    a("v_add_u32 %s, 256, %s" % (vr(A1), vr(A1)))
    a("v_mov_b32 %s, 32" % vr(A1b))
    a("v_cndmask_b32 %s, %s, 2, vcc" % (vr(A1b), vr(A1b)))
    a("v_add_u32 %s, %s, %s" % (vr(A1b), vr(A1b), vr(A1)))
    a("v_lshl_add_u32 %s, %s, 1, %s" % (vr(A1), vr(A1), sr(S_T1)))
    a("v_lshl_add_u32 %s, %s, 1, %s" % (vr(A1b), vr(A1b), sr(S_T1)))
    a("v_add3_u32 %s, %s, %s, %s" % (vr(A2), vr(A2), vr(j), "64"))
    a("v_add_u32 %s, 448, %s" % (vr(A2), vr(A2)))
    a("v_lshl_add_u32 %s, %s, 1, %s" % (vr(A2), vr(A2), sr(S_T1)))
    a("s_waitcnt vmcnt(0)")
    stamp_n(3)
    for k in range(12):
        a("v_mul_f32 %s, %s, %s" % (vr(KACC + k), sr(S_SC), vr(KACC + k)))
    for p in range(4):
        a("buffer_load_dwordx4 %s, %s, %s, %s offen" % (vr(V_X + 4 * p, 4), vr(V_IN), sr(SRD_X, 4), sin(p)))
        vm.issue("u%d" % p)
    pk = KACC + 12
    for k in range(6):
        a("v_cvt_pk_bf16_f32 %s, %s, %s" % (vr(pk + k), vr(KACC + 2 * k), vr(KACC + 2 * k + 1)))
    a("ds_write_b64 %s, %s offset:0" % (vr(A0), vr(pk, 2)))
    a("ds_write_b32 %s, %s offset:0" % (vr(A1), vr(pk + 2)))
    a("ds_write_b32 %s, %s offset:0" % (vr(A1b), vr(pk + 3)))
    a("ds_write_b16 %s, %s offset:0" % (vr(A2), vr(pk + 4)))
    a("ds_write_b16_d16_hi %s, %s offset:32" % (vr(A2), vr(pk + 4)))
    a("ds_write_b16 %s, %s offset:64" % (vr(A2), vr(pk + 5)))
    a("ds_write_b16_d16_hi %s, %s offset:96" % (vr(A2), vr(pk + 5)))
    a.c("---- expand the staircase into the four shifted copies ----")
    tbase_addr()
    D = V_TF
    H = V_TF + 32
    a("v_lshl_add_u32 %s, %s, 4, %s" % (vr(V_TMP), vr(V_LANE), sr(S_T1)))
    a("v_lshl_add_u32 %s, %s, 3, %s" % (vr(V_TMP + 1), vr(V_LANE), sr(S_T1)))
    a("v_lshl_add_u32 %s, %s, 2, %s" % (vr(V_TMP + 2), vr(V_LANE), sr(S_T1)))
    a("v_lshl_add_u32 %s, %s, 1, %s" % (vr(V_TMP + 3), vr(V_LANE), sr(S_T1)))
    a("s_mov_b32 %s, 0x01000100" % sr(S_K0))
    a("s_mov_b32 %s, 0x03020302" % sr(S_K1))
    a("s_waitcnt lgkmcnt(0)")
    a("ds_read_b128 %s, %s" % (vr(D, 4), vr(V_TMP)))
    a("ds_read_b64 %s, %s offset:16" % (vr(D + 4, 2), vr(V_TMP)))
    a("ds_read_b64 %s, %s offset:256" % (vr(H, 2), vr(V_TMP + 1)))
    a("ds_read_b32 %s, %s offset:264" % (vr(H + 2), vr(V_TMP + 1)))
    a("ds_read_b32 %s, %s offset:%d" % (vr(H + 4), vr(V_TMP + 2), 2 * 384))
    a("ds_read_b32 %s, %s offset:%d" % (vr(H + 5), vr(V_TMP + 2), 2 * 384 + 4))
    for n in (2, 3):
        o = 2 * (512 + 64 * (n - 2))
        a("ds_read_u16 %s, %s offset:%d" % (vr(H + 6 + 2 * (n - 2)), vr(V_TMP + 3), o))
        a("ds_read_u16 %s, %s offset:%d" % (vr(H + 7 + 2 * (n - 2)), vr(V_TMP + 3), o + 2))
    a("v_and_b32 %s, 1, %s" % (vr(V_TMP), vr(V_LANE)))
    a("v_cmp_eq_u32 vcc, 0, %s" % vr(V_TMP))
    a("s_waitcnt lgkmcnt(0)")
    a("s_mov_b32 exec_hi, 0")
    a("s_mov_b32 exec_lo, 0x80000000")
    a("v_lshrrev_b32 %s, 16, %s" % (vr(D + 5), vr(D + 4)))
    a("v_perm_b32 %s, %s, %s, %s" % (vr(D + 4), vr(D + 4), vr(D + 4), sr(S_K0)))
    a("s_mov_b32 exec_lo, 0")
    a("s_mov_b32 exec_hi, -1")
    a("v_perm_b32 %s, %s, %s, %s" % (vr(D), vr(H), vr(H), sr(S_K0)))
    a("v_alignbit_b32 %s, %s, %s, 16" % (vr(D + 1), vr(H + 1), vr(H)))
    a("v_perm_b32 %s, %s, %s, %s" % (vr(D + 2), vr(H + 1), vr(H + 1), sr(S_K0)))
    a("v_alignbit_b32 %s, %s, %s, 16" % (vr(D + 3), vr(H + 2), vr(H + 1)))
    a("v_perm_b32 %s, %s, %s, %s" % (vr(D + 4), vr(H + 2), vr(H + 2), sr(S_K0)))
    a("v_lshrrev_b32 %s, 16, %s" % (vr(D + 5), vr(H + 2)))
    a("s_mov_b32 exec_hi, 0x80000000")
    a("v_mov_b32 %s, %s" % (vr(D + 5), vr(D + 4)))
    a("s_mov_b64 exec, -1")
    write_head(D, D + 1, V_S + 8)
    write_copies(D, V_S + 16, 0)
    D2 = D + 8
    a("v_perm_b32 %s, %s, %s, %s" % (vr(D2), vr(H + 4), vr(H + 4), sr(S_K0)))
    a("v_mov_b32 %s, %s" % (vr(D2 + 1), vr(H + 4)))
    a("v_perm_b32 %s, %s, %s, %s" % (vr(D2 + 2), vr(H + 4), vr(H + 4), sr(S_K1)))
    for k in (3, 4, 5):
        a("v_perm_b32 %s, %s, %s, %s" % (vr(D2 + k), vr(H + 5), vr(H + 5), sr(S_K0)))
    write_copies(D2, V_S + 24, 1)
    for n in (2, 3):
        D3 = D + 8 * n
        ra, rb_ = H + 6 + 2 * (n - 2), H + 7 + 2 * (n - 2)
        a("v_lshl_or_b32 %s, %s, 16, %s" % (vr(D3), vr(ra), vr(ra)))
        a("v_lshl_or_b32 %s, %s, 16, %s" % (vr(D3 + 1), vr(ra), vr(ra)))
        for k in (3, 4, 5):
            a("v_lshl_or_b32 %s, %s, 16, %s" % (vr(D3 + k), vr(rb_), vr(rb_)))
        a("v_cndmask_b32 %s, %s, %s, vcc" % (vr(ra), vr(rb_), vr(ra)))
        a("v_lshl_or_b32 %s, %s, 16, %s" % (vr(D3 + 2), vr(rb_), vr(ra)))
        write_copies(D3, V_S + 16 + 8 * (n & 1), n)
    stamp_n(4)
    a(vm.wait("u0"))
    conv(1, vm)


def conv(typ, vm):
    T = "AB"[typ]
    a.c("================= convolution (%s) =================" % T)
    for s_ in p_writes(typ, 0, False):
        a(s_)
    a("v_mov_b32 %s, 0" % vr(V_PF))
    a("v_mov_b32 %s, 0" % vr(V_PF + 1))
    a("ds_write_b64 %s, %s offset:1024" % (vr(V_O), vr(V_PF, 2)))
    a("s_waitcnt lgkmcnt(0)")
    stamp_n(5)
    a("s_barrier")

    def reads(p, r, buf):
        out = []
        par = p & 1
        for dl in range(2):
            out.append("ds_read_b128 %s, %s offset:%d" % (vr(V_PF + 8 * buf + 4 * dl, 4), vr(V_P), par * PBUF + 512 * (1 - dl) + 64 * r))
        for u in range(8 - 2 * p):
            for hh in range(2):
                out.append("ds_read_b64 %s, %s offset:%d" % (vr(V_TF + 32 * buf + 4 * u + 2 * hh, 2), vr(V_T), 512 * u + 64 * r + 8 * hh))
        return out

    def mfmas(p):
        out = []
        for u in range(8 - 2 * p):
            for dl in range(2):
                c = u + 2 * p + dl
                if c <= 7:
                    out.append((c, u, dl))
        return out

    touched = set()
    for p in range(4):
        a.c("---- super-step %d ----" % p)
        stamp_n(6 + 2 * p)
        if p > 0:
            for s_ in out_reads(p - 1):
                a(s_)
        for s_ in reads(p, 0, 0):
            a(s_)
        if p > 0:
            a("s_waitcnt lgkmcnt(0)")
            a("s_barrier")
        if p < 3:
            a("s_cmp_lt_u32 %s, 4" % sr(S_WAVE))
            a("s_cbranch_scc1 L_%spv%d" % (T, p))
            for s_ in p_writes(typ, p, True):
                a(s_)
            a.lab("L_%spv%d" % (T, p))
        fill = []
        if typ == 0:
            if p < 2:
                fill += raw_loads(p + 2, vm)
            fill.append("buffer_load_dwordx4 %s, %s, %s, %s offen" % (vr(V_Q + 4 * p, 4), vr(V_IN), sr(SRD_Q, 4), sin(p)))
            vm.issue("q%d" % p)
        if p > 0:
            fill += epilogue_math(typ, p - 1, vm)
        if p < 3:
            if typ == 0:
                fill += prologue_math(p + 1, vm)
                fill += p_writes(typ, p + 1, False)
            else:
                fill.append(vm.wait("u%d" % (p + 1)))
                fill += p_writes(typ, p + 1, False)
        fi = 0
        lq = [] if p > 0 else [("f", 0, k) for k in range(len(reads(p, 0, 0)))]
        if p < 3:
            a("s_waitcnt lgkmcnt(0)")
            lq = []
        done = [len(lq) == 0, -1]
        state = {"done": -1}
        def need(tag):
            idxs = [i for i, t in enumerate(lq) if t == tag]
            if not idxs:
                return
            idx = idxs[-1]
            if idx <= state["done"]:
                return
            n = len(lq) - 1 - idx
            if n <= 15:
                a("s_waitcnt lgkmcnt(%d)" % n)
                state["done"] = idx
            else:
                a("s_waitcnt lgkmcnt(15)")
                state["done"] = len(lq) - 1 - 15
        def emit(s_, tag=None):
            a(s_)
            if s_.startswith("ds_"):
                lq.append(tag)
        for r in range(8):
            buf = r & 1
            nxt = reads(p, r + 1, buf ^ 1) if r < 7 else []
            ms = mfmas(p)
            for i, (c, u, dl) in enumerate(ms):
                acc = V_ACC + 4 * c
                src = vr(acc, 4) if c in touched else "0"
                touched.add(c)
                need(("f", r, max(dl, 2 + 2 * u + 1)))
                a("v_mfma_f32_16x16x32_bf16 %s, %s, %s, %s" % (vr(acc, 4), vr(V_TF + 32 * buf + 4 * u, 4), vr(V_PF + 8 * buf + 4 * dl, 4), src))
                lo = (i * len(nxt) + len(ms) - 1) // len(ms) if SPREAD else i * RPM
                hi = len(nxt) if i == len(ms) - 1 else (((i + 1) * len(nxt) + len(ms) - 1) // len(ms) if SPREAD else (i + 1) * RPM)
                for k in range(lo, min(hi, len(nxt))):
                    emit(nxt[k], ("f", r + 1, k))
                n = 0
                while fi < len(fill) and (n < FILL or fill[fi - 1].startswith("s_mov_b64 exec, 1") or (fill[fi - 1].startswith("buffer_load") and V_HA_STR in fill[fi - 1])):
                    emit(fill[fi], "x"); fi += 1; n += 1
        while fi < len(fill):
            a(fill[fi]); fi += 1
        stamp_n(7 + 2 * p)
        a("s_nop 7")
        a("s_nop 1")
        for dl in range(2):
            acc = V_ACC + 4 * (2 * p + dl)
            a("v_cvt_pk_bf16_f32 %s, %s, %s" % (vr(acc), vr(acc), vr(acc + 1)))
            a("v_cvt_pk_bf16_f32 %s, %s, %s" % (vr(acc + 1), vr(acc + 2), vr(acc + 3)))
            a("ds_write_b64 %s, %s offset:%d" % (vr(V_O), vr(acc, 2), (p & 1) * PBUF + 512 * dl))
        a("s_waitcnt lgkmcnt(0)")
        a("s_barrier")
    stamp_n(14)
    for s_ in out_reads(3):
        a(s_)
    a("s_waitcnt lgkmcnt(0)")
    for s_ in epilogue_math(typ, 3, vm):
        a(s_)
    stamp_dump()
    a("s_endpgm")


V_HA_STR = ", v%d, " % V_HA

header()
prologue_common()
path_A()
path_B()
helper()
footer()
out = sys.argv[1] if len(sys.argv) > 1 else "concat_heads__ssm_conv_h3__ssm_conv_s4__prompt.s"
open(out, "w").write(a.text())
print("wrote", out, len(a.l), "lines")
```

```python
import os
import sys

NAME = "concat_heads__ssm_conv_h3__ssm_conv_s4__prompt_kernel"
MODE = sys.argv[2] if len(sys.argv) > 2 else ""
STAMPS = MODE in ("stamps", "dbgt")
EXACT = int(os.environ.get("EXACT", "1"))
CODEPF = int(os.environ.get("CODEPF", "0"))
SPREAD = int(os.environ.get("SPREAD", "1"))
RPM = int(os.environ.get("RPM", "2"))
FILL = int(os.environ.get("FILL", "2"))

TCOPY = 4160
TSZ = 16896
P0 = 8 * TSZ
PCH = 1536
PBUF = 8 * PCH
LDS_TOTAL = P0 + 2 * PBUF
LROW = 528
KBUF = 16 * LROW


class A:
    def __init__(self):
        self.l = []

    def __call__(self, s):
        self.l.append("    " + s)

    def lab(self, s):
        self.l.append(s + ":")

    def c(self, s):
        self.l.append("    ; " + s)

    def text(self):
        return "\n".join(self.l) + "\n"


def vr(b, n=1):
    return "v%d" % b if n == 1 else "v[%d:%d]" % (b, b + n - 1)


def sr(b, n=1):
    return "s%d" % b if n == 1 else "s[%d:%d]" % (b, b + n - 1)


a = A()

S_TYPE = 3
S_PTR = 4
def PTR(i): return S_PTR + 2 * i
S_WAVE = 40
S_COL = 41
S_I = 42
S_CH0 = 43
SRD_X = 44
SRD_V = 48
SRD_Q = 52
SRD_T = 56
SRD_O = 60
S_W = 64
S_D = 4
S_ONES = 96
S_T0 = 99
S_T1 = 100
S_T2 = 101
S_EX = 20
S_SC = 22
S_IN1 = 23
S_OUT1 = 32
S_K0 = 26
S_K1 = 27

V_LANE = 1
V_T = 2
V_P = 3
V_O = 4
V_WM = 5
V_OR = 6
V_GO = 7
V_IN = 8
V_TMP = 9
V_WP = 255
V_X = 16
V_Q = 40
V_ACC = 48
V_TC = 80
V_TF = 144
V_PF = 192
V_S = 144
V_ST = 254
NVGPR = 256


def stamp_n(n):
    if not STAMPS:
        return
    a("s_memrealtime s[36:37]")
    a("s_waitcnt lgkmcnt(0)")
    a("v_writelane_b32 %s, s36, %d" % (vr(V_ST), n))
    a("s_memtime s[36:37]")
    a("s_waitcnt lgkmcnt(0)")
    a("v_writelane_b32 %s, s36, %d" % (vr(V_ST), n + 16))


_dd = [0]
def stamp_dump():
    if not STAMPS:
        return
    a("s_waitcnt vmcnt(0)")
    stamp_n(15)
    if MODE == "dbgt":
        a("s_load_dwordx2 s[36:37], s[0:1], 128")
        a("s_cmp_lg_u32 %s, 0" % sr(S_WAVE))
        a("s_cbranch_scc1 L_end")
        a("s_cmp_lg_u32 s2, %d" % (0 if _dd[0] == 0 else 130))
        a("s_cbranch_scc1 L_end")
        for k, ln in enumerate((0, 1, 6, 15, 16, 17, 22, 31)):
            a("v_readlane_b32 s38, %s, %d" % (vr(V_ST), ln))
            a("s_nop 3")
            a("v_mov_b32 %s, s38" % vr(V_S + k))
        a("v_mov_b32 %s, %d" % (vr(V_ST + 1), 32 * _dd[0]))
        a("s_waitcnt lgkmcnt(0)")
        a("s_mov_b64 exec, 1")
        a("global_store_dwordx4 %s, %s, s[36:37]" % (vr(V_ST + 1), vr(V_S, 4)))
        a("global_store_dwordx4 %s, %s, s[36:37] offset:16" % (vr(V_ST + 1), vr(V_S + 4, 4)))
        _dd[0] += 1
        return
    a("s_load_dwordx2 s[36:37], s[0:1], 136")
    a("s_lshl_b32 s38, s2, 3")
    a("s_add_u32 s38, s38, %s" % sr(S_WAVE))
    a("s_lshl_b32 s38, s38, 8")
    a("v_lshl_add_u32 %s, %s, 2, s38" % (vr(V_ST + 1), vr(V_LANE)))
    a("s_waitcnt lgkmcnt(0)")
    a("global_store_dword %s, %s, s[36:37]" % (vr(V_ST + 1), vr(V_ST)))


def header():
    a.l.append("; fused H3 (shift-SSM * v -> long conv -> gate) and S4D (kernel generation + long conv), one launch")
    a.l.append("; @launch grid=(256,1,1) block=(512,1,1) lds=%d" % LDS_TOTAL)
    a.l.append('.amdgcn_target "amdgcn-amd-amdhsa--gfx950"')
    a.l.append(".text")
    a.l.append(".globl " + NAME)
    a.l.append(".p2align 8")
    a.l.append(".type %s,@function" % NAME)
    a.lab(NAME)


def footer():
    a.lab("L_end")
    a("s_endpgm")
    a.l.append('.section .rodata,"a"')
    a.l.append(".p2align 6")
    a.l.append(".amdhsa_kernel " + NAME)
    a.l.append("  .amdhsa_next_free_vgpr %d" % NVGPR)
    a.l.append("  .amdhsa_next_free_sgpr 102")
    a.l.append("  .amdhsa_accum_offset %d" % NVGPR)
    a.l.append("  .amdhsa_group_segment_fixed_size 0")
    a.l.append("  .amdhsa_kernarg_size 144")
    a.l.append("  .amdhsa_user_sgpr_count 2")
    a.l.append("  .amdhsa_user_sgpr_kernarg_segment_ptr 1")
    a.l.append("  .amdhsa_system_sgpr_workgroup_id_x 1")
    a.l.append(".end_amdhsa_kernel")


def srd(d, plo, nbytes):
    a("s_mov_b32 %s, %s" % (sr(d), sr(plo)))
    a("s_and_b32 %s, %s, 0xffff" % (sr(d + 1), sr(plo + 1)))
    a("s_mov_b32 %s, 0x%x" % (sr(d + 2), nbytes))
    a("s_mov_b32 %s, 0x00020000" % sr(d + 3))


SLOTS = [
    [0x00, 0x02, 0x04, 0x05, 0x06, 0x07, 0x08, 0x09],
    [0x01, 0x03, 0x24, 0x25, 0x26, 0x27, 0x28, 0x29],
    [0x20, 0x22, 0x10, 0x12, 0x14, 0x16, 0x18, 0xff],
    [0x21, 0x23, 0x11, 0x13, 0x15, 0x17, 0x19, 0xff],
]


def prologue_common():
    a.c("---- decode workgroup -> (type, column, index) ----")
    a("s_cmp_ge_u32 s2, 256")
    a("s_cbranch_scc1 L_end")
    a("s_load_dwordx16 %s, s[0:1], 0" % sr(S_PTR, 16))
    a("s_load_dwordx16 %s, s[0:1], 64" % sr(S_PTR + 16, 16))
    if os.environ.get("BADMAP"):
        a("s_lshr_b32 %s, s2, 5" % sr(S_T0))
        a("s_and_b32 %s, s2, 31" % sr(S_T1))
    else:
        a("s_and_b32 %s, s2, 7" % sr(S_T0))
        a("s_lshr_b32 %s, s2, 3" % sr(S_T1))
    a("s_and_b32 %s, %s, 7" % (sr(S_I), sr(S_T1)))
    a("s_lshr_b32 %s, %s, 3" % (sr(S_T1), sr(S_T1)))
    def pk(t, lo): return sum(t[lo + i] << (8 * i) for i in range(4))
    a("s_mov_b32 %s, 0x%x" % (sr(S_COL), pk(SLOTS[0], 0)))
    a("s_mov_b32 %s, 0x%x" % (sr(S_T2), pk(SLOTS[0], 4)))
    for k in (1, 2, 3):
        a("s_cmp_eq_u32 %s, %d" % (sr(S_T1), k))
        a("s_cselect_b32 %s, 0x%x, %s" % (sr(S_COL), pk(SLOTS[k], 0), sr(S_COL)))
        a("s_cselect_b32 %s, 0x%x, %s" % (sr(S_T2), pk(SLOTS[k], 4), sr(S_T2)))
    a("s_cmp_ge_u32 %s, 4" % sr(S_T0))
    a("s_cselect_b32 %s, %s, %s" % (sr(S_COL), sr(S_T2), sr(S_COL)))
    a("s_and_b32 %s, %s, 3" % (sr(S_T0), sr(S_T0)))
    a("s_lshl_b32 %s, %s, 3" % (sr(S_T0), sr(S_T0)))
    a("s_lshr_b32 %s, %s, %s" % (sr(S_COL), sr(S_COL), sr(S_T0)))
    a("s_and_b32 %s, %s, 0xff" % (sr(S_COL), sr(S_COL)))
    a("s_cmp_eq_u32 %s, 0xff" % sr(S_COL))
    a("s_cbranch_scc1 L_end")
    a("s_lshr_b32 %s, %s, 4" % (sr(S_TYPE), sr(S_COL)))
    a("s_and_b32 %s, %s, 15" % (sr(S_COL), sr(S_COL)))
    a("s_lshl_b32 %s, %s, 6" % (sr(S_CH0), sr(S_COL)))
    a("s_lshl_b32 %s, %s, 3" % (sr(S_T0), sr(S_I)))
    a("s_add_u32 %s, %s, %s" % (sr(S_CH0), sr(S_CH0), sr(S_T0)))
    if CODEPF:
        a("s_getpc_b64 s[36:37]")
        a.lab("L_pc")
        a("v_lshlrev_b32 %s, 7, v0" % vr(V_TMP + 1))
        a("v_mov_b32 %s, s37" % vr(V_TMP + 4))
        a("v_min_u32 %s, L_end-L_pc, %s" % (vr(V_TMP + 1), vr(V_TMP + 1)))
        a("v_add_co_u32 %s, vcc, s36, %s" % (vr(V_TMP + 3), vr(V_TMP + 1)))
        a("s_nop 1")
        a("v_addc_co_u32 %s, vcc, 0, %s, vcc" % (vr(V_TMP + 4), vr(V_TMP + 4)))
        a("v_cmp_gt_u32 vcc, 256, v0")
        a("s_and_saveexec_b64 s[38:39], vcc")
        a("s_cbranch_execz L_pcd")
        a("global_load_dword %s, %s, off" % (vr(253), vr(V_TMP + 3, 2)))
        a.lab("L_pcd")
        a("s_mov_b64 exec, s[38:39]")
    a("v_lshrrev_b32 %s, 6, v0" % vr(V_TMP))
    a("v_and_b32 %s, 63, v0" % vr(V_LANE))
    a("s_mov_b32 %s, 0x3f803f80" % sr(S_ONES))
    a("v_readfirstlane_b32 %s, %s" % (sr(S_WAVE), vr(V_TMP)))
    a("s_cmp_eq_u32 %s, 2" % sr(S_TYPE))
    a("s_cbranch_scc1 L_helper")
    a.c("---- per-lane addresses ----")
    t0, t1, t2, t3 = V_TMP, V_TMP + 1, V_TMP + 2, V_TMP + 3
    a("v_and_b32 %s, 15, %s" % (vr(t0), vr(V_LANE)))
    a("v_lshrrev_b32 %s, 4, %s" % (vr(t1), vr(V_LANE)))
    a("v_add_u32 %s, 1, %s" % (vr(t2), vr(t0)))
    a("v_and_b32 %s, 3, %s" % (vr(t3), vr(t2)))
    a("v_sub_u32 %s, %s, %s" % (vr(t2), vr(t2), vr(t3)))
    a("v_lshlrev_b32 %s, 1, %s" % (vr(t2), vr(t2)))
    a("v_mul_u32_u24 %s, %d, %s" % (vr(t3), TCOPY, vr(t3)))
    a("v_add_u32 %s, %s, %s" % (vr(t2), vr(t2), vr(t3)))
    a("v_lshl_add_u32 %s, %s, 4, %s" % (vr(t2), vr(t1), vr(t2)))
    a("s_mul_i32 %s, %s, %d" % (sr(S_T0), sr(S_WAVE), TSZ))
    a("v_add_u32 %s, %s, %s" % (vr(V_T), sr(S_T0), vr(t2)))
    a("s_mul_i32 %s, %s, %d" % (sr(S_T0), sr(S_WAVE), PCH))
    a("s_add_u32 %s, %s, %d" % (sr(S_T0), sr(S_T0), P0))
    a("v_lshlrev_b32 %s, 5, %s" % (vr(t2), vr(t0)))
    a("v_lshl_add_u32 %s, %s, 3, %s" % (vr(t3), vr(t1), vr(t2)))
    a("v_add_u32 %s, %s, %s" % (vr(V_O), sr(S_T0), vr(t3)))
    a("v_lshlrev_b32 %s, 4, %s" % (vr(t3), vr(t1)))
    a("v_sub_u32 %s, %s, %s" % (vr(t3), vr(t3), vr(t2)))
    a("s_add_u32 %s, %s, 480" % (sr(S_T0), sr(S_T0)))
    a("v_add_u32 %s, %s, %s" % (vr(V_P), sr(S_T0), vr(t3)))
    a("v_lshlrev_b32 %s, 1, v0" % vr(t0))
    a("v_sub_u32 %s, %d, %s" % (vr(V_WM), P0 + 1022, vr(t0)))
    a("v_add_u32 %s, %d, %s" % (vr(V_OR), P0, vr(t0)))
    a("v_and_b32 %s, 30, %s" % (vr(t2), vr(t0)))
    a("v_add_u32 %s, %d, %s" % (vr(t2), P0 + 1504, vr(t2)))
    a("v_add_u32 %s, 1024, %s" % (vr(V_WP), vr(V_WM)))
    a("v_cmp_gt_u32 vcc, 256, v0")
    a("s_lshl_b32 %s, %s, 1" % (sr(S_T1), sr(S_CH0)))
    a("v_mul_u32_u24 %s, 1280, v0" % vr(t1))
    a("v_cndmask_b32 %s, %s, %s, vcc" % (vr(V_WP), vr(V_WP), vr(t2)))
    a("v_add_u32 %s, %s, %s" % (vr(V_IN), sr(S_T1), vr(t1)))
    a("s_mul_i32 %s, %s, 1280" % (sr(S_T2), sr(S_TYPE)))
    a("s_add_u32 %s, %s, %s" % (sr(S_T2), sr(S_T2), sr(S_T1)))
    a("v_lshl_add_u32 %s, %s, 1, %s" % (vr(V_GO), vr(t1), sr(S_T2)))
    a("s_waitcnt lgkmcnt(0)")
    srd(SRD_O, PTR(15), 2048 * 2560)
    stamp_n(0)
    a("s_cmp_eq_u32 %s, 1" % sr(S_TYPE))
    a("s_cbranch_scc1 L_pathB")


def step_offsets():
    for p in (1, 2, 3):
        a("s_mov_b32 %s, %d" % (sr(S_IN1 + p - 1), p * 512 * 1280))
        a("s_mov_b32 %s, %d" % (sr(S_OUT1 + p - 1), p * 512 * 2560))


def sin(p): return "0" if p == 0 else sr(S_IN1 + p - 1)
def sout(p): return "0" if p == 0 else sr(S_OUT1 + p - 1)


def helper():
    a.lab("L_helper")
    a.c("================= helper : bring k, v (rows >= 512) and q of one A column into this XCD's L2 =================")
    items = []
    for g in (1, 2):
        for b in range(8):
            items += [(0, 8 * g + b), (1, 8 * g + b)]
    for b in range(8):
        items.append((2, b))
    for b in range(8):
        items += [(0, 24 + b), (1, 24 + b)]
    for b in range(8, 32):
        items.append((2, b))
    assert len(items) == 80
    a("s_waitcnt lgkmcnt(0)")
    srd(SRD_X, PTR(1), 2048 * 1280)
    srd(SRD_V, PTR(2), 2048 * 1280)
    srd(SRD_Q, PTR(0), 2048 * 1280)
    a("v_mul_u32_u24 %s, 1280, %s" % (vr(V_TMP), vr(V_LANE)))
    a("s_lshl_b32 %s, %s, 7" % (sr(S_T1), sr(S_COL)))
    a("v_add_u32 %s, %s, %s" % (vr(V_TMP), sr(S_T1), vr(V_TMP)))
    a("s_lshr_b32 %s, %s, 1" % (sr(S_T0), sr(S_I)))
    a("s_lshl_b32 %s, %s, 2" % (sr(S_T1), sr(S_WAVE)))
    a("s_add_u32 %s, %s, %s" % (sr(S_T0), sr(S_T0), sr(S_T1)))
    a("s_cmp_eq_u32 %s, 4" % sr(S_WAVE))
    a("s_cbranch_scc1 L_hq0")
    a("s_cmp_eq_u32 %s, 7" % sr(S_WAVE))
    a("s_cbranch_scc1 L_hq1")
    a("s_cmp_lt_u32 %s, 4" % sr(S_WAVE))
    a("s_cselect_b32 %s, 8, 4" % sr(S_T1))
    a("s_add_u32 %s, %s, %s" % (sr(S_T0), sr(S_T0), sr(S_T1)))
    a("s_mul_i32 %s, %s, %d" % (sr(S_T0), sr(S_T0), 64 * 1280))
    a("s_and_b32 %s, %s, 1" % (sr(S_T1), sr(S_I)))
    a("s_cmp_eq_u32 %s, 1" % sr(S_T1))
    a("s_cbranch_scc1 L_hv")
    a("buffer_load_dword %s, %s, %s, %s offen" % (vr(V_TMP + 1), vr(V_TMP), sr(SRD_X, 4), sr(S_T0)))
    a("s_branch L_h2")
    a.lab("L_hv")
    a("buffer_load_dword %s, %s, %s, %s offen" % (vr(V_TMP + 1), vr(V_TMP), sr(SRD_V, 4), sr(S_T0)))
    a.lab("L_h2")
    a("s_cmp_ge_u32 %s, 2" % sr(S_WAVE))
    a("s_cbranch_scc1 L_hend")
    a("s_lshl_b32 %s, %s, 3" % (sr(S_T0), sr(S_WAVE)))
    a("s_add_u32 %s, %s, 16" % (sr(S_T0), sr(S_T0)))
    a("s_branch L_hq")
    a.lab("L_hq0")
    a("s_mov_b32 %s, 0" % sr(S_T0))
    a("s_branch L_hq")
    a.lab("L_hq1")
    a("s_mov_b32 %s, 8" % sr(S_T0))
    a.lab("L_hq")
    a("s_add_u32 %s, %s, %s" % (sr(S_T0), sr(S_T0), sr(S_I)))
    a("s_mul_i32 %s, %s, %d" % (sr(S_T0), sr(S_T0), 64 * 1280))
    a("buffer_load_dword %s, %s, %s, %s offen" % (vr(V_TMP + 2), vr(V_TMP), sr(SRD_Q, 4), sr(S_T0)))
    a.lab("L_hend")
    a("s_waitcnt vmcnt(0)")
    a("s_endpgm")


V_TA = V_TMP + 5
V_TA2 = V_TMP + 6


def write_copies(d, tmp, n):
    imm = 32 + 1024 * n
    a("v_add_u32 %s, %d, %s" % (vr(V_TA2), imm + 2 * TCOPY, vr(V_TA)))
    for k in range(4):
        a("v_alignbit_b32 %s, %s, %s, 16" % (vr(tmp + k), vr(d + k + 1), vr(d + k)))
    for k in range(4):
        a("v_alignbit_b32 %s, %s, %s, 16" % (vr(tmp + 4 + k), vr(d + k + 2), vr(d + k + 1)))
    a("ds_write_b128 %s, %s offset:%d" % (vr(V_TA), vr(d, 4), imm))
    a("ds_write2_b32 %s, %s, %s offset0:0 offset1:1" % (vr(V_TA2), vr(d + 1), vr(d + 2)))
    a("ds_write2_b32 %s, %s, %s offset0:2 offset1:3" % (vr(V_TA2), vr(d + 3), vr(d + 4)))
    a("ds_write_b128 %s, %s offset:%d" % (vr(V_TA), vr(tmp, 4), imm + TCOPY))
    a("ds_write_b128 %s, %s offset:%d" % (vr(V_TA), vr(tmp + 4, 4), imm + 3 * TCOPY))


def write_head(d0, d1, tmp):
    for k in range(4):
        a("v_mov_b32 %s, 0" % vr(tmp + k))
    a("v_lshlrev_b32 %s, 16, %s" % (vr(tmp + 4), vr(d0)))
    a("v_alignbit_b32 %s, %s, %s, 16" % (vr(tmp + 5), vr(d1), vr(d0)))
    a("s_mov_b64 %s, exec" % sr(S_EX, 2))
    a("s_mov_b64 exec, 3")
    for s in range(4):
        a("ds_write_b128 %s, %s offset:%d" % (vr(V_TA), vr(tmp, 4), s * TCOPY))
    a("s_mov_b64 exec, 1")
    a("ds_write_b32 %s, %s offset:%d" % (vr(V_TA), vr(tmp + 4), TCOPY + 28))
    a("ds_write_b32 %s, %s offset:%d" % (vr(V_TA), vr(d0), 2 * TCOPY + 28))
    a("ds_write_b64 %s, %s offset:%d" % (vr(V_TA), vr(tmp + 4, 2), 3 * TCOPY + 24))
    a("s_mov_b64 exec, %s" % sr(S_EX, 2))


def tbase_addr():
    a("s_mul_i32 %s, %s, %d" % (sr(S_T0), sr(S_WAVE), TSZ))
    a("v_lshl_add_u32 %s, %s, 4, %s" % (vr(V_TA), vr(V_LANE), sr(S_T0)))


def d_load(ptr_idx):
    a("s_lshl_b32 %s, %s, 1" % (sr(S_T0), sr(S_CH0)))
    a("s_add_u32 %s, %s, %s" % (sr(S_T0 + 1), sr(PTR(ptr_idx)), sr(S_T0)))
    a("s_addc_u32 %s, %s, 0" % (sr(S_T0 + 2), sr(PTR(ptr_idx) + 1)))
    a("s_load_dwordx4 s[92:95], %s, 0" % sr(S_T0 + 1, 2))


def d_selectors():
    for c in range(8):
        src = 92 + (c >> 1)
        if c & 1:
            a("s_and_b32 %s, %s, 0xffff0000" % (sr(S_D + c), sr(src)))
        else:
            a("s_lshl_b32 %s, %s, 16" % (sr(S_D + c), sr(src)))


class VM:
    def __init__(self):
        self.q = []

    def issue(self, tag):
        self.q.append(tag)

    def wait(self, tag):
        idx = max(i for i, t in enumerate(self.q) if t == tag)
        return "s_waitcnt vmcnt(%d)" % (len(self.q) - 1 - idx)


RAW = [208, 208]
V_PA = 228
V_U = 236
V_Y = 244
def XA(p): return V_X + 8 * (p % 3)
def QA(p): return V_Q + 4 * (p & 1)
V_HA = V_TMP + 4


def unpack(dst, src, c):
    if c & 1:
        return "v_and_b32 %s, 0xffff0000, %s" % (vr(dst), vr(src))
    return "v_lshlrev_b32 %s, 16, %s" % (vr(dst), vr(src))


def raw_loads(p, vm):
    R = RAW[p & 1]
    out = []
    out.append("v_add_u32 %s, %d, %s" % (vr(V_HA), p * 512 * 1280 - 3 * 1280, vr(V_IN)))
    out.append("s_mov_b64 exec, 1")
    for j in range(3):
        out.append("buffer_load_dwordx4 %s, %s, %s, 0 offen offset:%d" % (vr(R + 4 * j, 4), vr(V_HA), sr(SRD_X, 4), 1280 * j))
        vm.issue("raw%d" % p)
    out.append("s_mov_b64 exec, -1")
    out.append("buffer_load_dwordx4 %s, %s, %s, %s offen" % (vr(R + 12, 4), vr(V_IN), sr(SRD_X, 4), sin(p)))
    vm.issue("raw%d" % p)
    out.append("buffer_load_dwordx4 %s, %s, %s, %s offen" % (vr(R + 16, 4), vr(V_IN), sr(SRD_V, 4), sin(p)))
    vm.issue("raw%d" % p)
    return out


def prologue_math(p, vm):
    R = RAW[p & 1]
    out = [vm.wait("raw%d" % p)]
    for j in (2, 1, 0):
        for d in range(4):
            out.append("v_mov_b32_dpp %s, %s wave_shr:1 row_mask:0xf bank_mask:0xf" % (vr(R + 4 * j + d), vr(R + 4 * j + 4 + d)))
    VV = R + 16
    rnd = lambda x: "v_cvt_pk_bf16_f32 %s, 0, %s" % (vr(x), vr(x))
    for t in range(4):
        for c in range(8):
            out.append(unpack(V_U + c, R + 4 * t + (c >> 1), c))
        w = lambda c: sr(S_W + 4 * c + 3 - t)
        if EXACT:
            if t == 0:
                for c in range(8):
                    out.append("v_mul_f32 %s, %s, %s" % (vr(V_PA + c), w(c), vr(V_U + c)))
                for c in range(8):
                    out.append(rnd(V_PA + c))
            else:
                for c in range(8):
                    out.append("v_mul_f32 %s, %s, %s" % (vr(V_U + c), w(c), vr(V_U + c)))
                for c in range(8):
                    out.append(rnd(V_U + c))
                for c in range(8):
                    out.append("v_add_f32 %s, %s, %s" % (vr(V_PA + c), vr(V_PA + c), vr(V_U + c)))
                for c in range(8):
                    out.append(rnd(V_PA + c))
        else:
            for c in range(8):
                if t == 0:
                    out.append("v_mul_f32 %s, %s, %s" % (vr(V_PA + c), w(c), vr(V_U + c)))
                else:
                    out.append("v_fmac_f32 %s, %s, %s" % (vr(V_PA + c), w(c), vr(V_U + c)))
    for c in range(8):
        out.append(unpack(V_U + c, VV + (c >> 1), c))
    for c in range(8):
        out.append("v_mul_f32 %s, %s, %s" % (vr(V_PA + c), vr(V_PA + c), vr(V_U + c)))
    for c in range(8):
        out.append("v_cvt_pk_bf16_f32 %s, 0, %s" % (vr(XA(p) + c), vr(V_PA + c)))
    return out


def p_writes(typ, p, prev):
    par = (p + (1 if prev else 0)) & 1
    out = []
    for c in range(8):
        off = par * PBUF + c * PCH
        ad = V_WP if prev else V_WM
        if typ == 0:
            out.append("ds_write_b16_d16_hi %s, %s offset:%d" % (vr(ad), vr(XA(p) + c), off))
        else:
            out.append("ds_write_b16%s %s, %s offset:%d" % ("_d16_hi" if c & 1 else "", vr(ad), vr(V_X + 4 * p + (c >> 1)), off))
    return out


def out_reads(p):
    return ["ds_read_u16_d16_hi %s, %s offset:%d" % (vr(V_Y + c), vr(V_OR), (p & 1) * PBUF + c * PCH) for c in range(8)]


def epilogue_math(typ, p, vm):
    O = V_Y
    out = []
    rnd = lambda x: "v_cvt_pk_bf16_f32 %s, 0, %s" % (vr(x), vr(x))
    X = XA(p)
    if typ == 1:
        X = V_U
        for c in range(8):
            out.append(unpack(X + c, V_X + 4 * p + (c >> 1), c))
    if EXACT:
        for c in range(8):
            out.append("v_mul_f32 %s, %s, %s" % (vr(X + c), sr(S_D + c), vr(X + c)))
        for c in range(8):
            out.append(rnd(X + c))
        for c in range(8):
            out.append("v_add_f32 %s, %s, %s" % (vr(V_Y + c), vr(V_Y + c), vr(X + c)))
        if typ == 0:
            for c in range(8):
                out.append(rnd(V_Y + c))
    else:
        for c in range(8):
            out.append("v_fmac_f32 %s, %s, %s" % (vr(V_Y + c), sr(S_D + c), vr(X + c)))
    if typ == 0:
        out.append(vm.wait("q%d" % p))
        for c in range(8):
            out.append(unpack(X + c, QA(p) + (c >> 1), c))
        for c in range(8):
            out.append("v_mul_f32 %s, %s, %s" % (vr(V_Y + c), vr(V_Y + c), vr(X + c)))
    for d in range(4):
        out.append("v_cvt_pk_bf16_f32 %s, %s, %s" % (vr(O + d), vr(V_Y + 2 * d), vr(V_Y + 2 * d + 1)))
    out.append("buffer_store_dwordx4 %s, %s, %s, %s offen" % (vr(O, 4), vr(V_GO), sr(SRD_O, 4), sout(p)))
    vm.issue("st%d" % p)
    return out


def path_A():
    vm = VM()
    a.c("================= path A : H3 =================")
    srd(SRD_X, PTR(1), 2048 * 1280)
    srd(SRD_V, PTR(2), 2048 * 1280)
    a("s_cmp_ge_u32 %s, 2" % sr(S_WAVE))
    a("s_cbranch_scc1 L_pfd")
    a("s_lshl_b32 %s, %s, 6" % (sr(S_T0), sr(S_I)))
    a("v_add_u32 %s, %s, %s" % (vr(V_TMP + 2), sr(S_T0), vr(V_LANE)))
    a("v_mul_u32_u24 %s, 1280, %s" % (vr(V_TMP + 2), vr(V_TMP + 2)))
    a("s_lshl_b32 %s, %s, 7" % (sr(S_T1), sr(S_COL)))
    a("v_add_u32 %s, %s, %s" % (vr(V_TMP + 2), sr(S_T1), vr(V_TMP + 2)))
    a("s_cmp_eq_u32 %s, 1" % sr(S_WAVE))
    a("s_cbranch_scc1 L_pfv")
    a("buffer_load_dword %s, %s, %s, 0 offen" % (vr(V_TMP + 3), vr(V_TMP + 2), sr(SRD_X, 4)))
    a("s_branch L_pfd")
    a.lab("L_pfv")
    a("buffer_load_dword %s, %s, %s, 0 offen" % (vr(V_TMP + 3), vr(V_TMP + 2), sr(SRD_V, 4)))
    a.lab("L_pfd")
    srd(SRD_Q, PTR(0), 2048 * 1280)
    a("s_add_u32 %s, %s, %s" % (sr(S_T0), sr(S_CH0), sr(S_WAVE)))
    a("s_lshl_b32 %s, %s, 12" % (sr(S_T0), sr(S_T0)))
    a("s_add_u32 %s, %s, %s" % (sr(SRD_T), sr(PTR(4)), sr(S_T0)))
    a("s_addc_u32 %s, %s, 0" % (sr(SRD_T + 1), sr(PTR(4) + 1)))
    a("s_and_b32 %s, %s, 0xffff" % (sr(SRD_T + 1), sr(SRD_T + 1)))
    a("s_mov_b32 %s, 4096" % sr(SRD_T + 2))
    a("s_mov_b32 %s, 0x00020000" % sr(SRD_T + 3))
    TD = V_TC
    a("v_lshlrev_b32 %s, 4, %s" % (vr(V_TMP), vr(V_LANE)))
    for n in range(4):
        a("buffer_load_dwordx4 %s, %s, %s, 0 offen offset:%d" % (vr(TD + 8 * n, 4), vr(V_TMP), sr(SRD_T, 4), 1024 * n))
        a("buffer_load_dwordx2 %s, %s, %s, 0 offen offset:%d" % (vr(TD + 8 * n + 4, 2), vr(V_TMP), sr(SRD_T, 4), 1024 * n + 16))
    a("s_lshl_b32 %s, %s, 3" % (sr(S_T0), sr(S_CH0)))
    a("s_add_u32 %s, %s, %s" % (sr(S_T0 + 1), sr(PTR(3)), sr(S_T0)))
    a("s_addc_u32 %s, %s, 0" % (sr(S_T0 + 2), sr(PTR(3) + 1)))
    a("s_load_dwordx16 s[20:35], %s, 0" % sr(S_T0 + 1, 2))
    d_load(5)
    tbase_addr()
    a("s_waitcnt lgkmcnt(0)")
    d_selectors()
    for c in range(8):
        for j in range(4):
            src = 20 + 2 * c + (j >> 1)
            dst = S_W + 4 * c + j
            if j & 1:
                a("s_and_b32 %s, %s, 0xffff0000" % (sr(dst), sr(src)))
            else:
                a("s_lshl_b32 %s, %s, 16" % (sr(dst), sr(src)))
    step_offsets()
    a("s_waitcnt vmcnt(8)")
    stamp_n(1)
    a("s_barrier")
    for s_ in raw_loads(0, vm):
        a(s_)
    stamp_n(2)
    a("s_waitcnt vmcnt(5)")
    write_head(TD, TD + 1, V_ACC)
    for n in range(4):
        write_copies(TD + 8 * n, V_ACC + 8 + 8 * (n & 1), n)
    stamp_n(3)
    for s_ in prologue_math(0, vm):
        a(s_)
    for s_ in raw_loads(1, vm):
        a(s_)
    stamp_n(4)
    conv(0, vm)


def cmul(d, x, y):
    a("v_pk_mul_f32 %s, %s, %s op_sel_hi:[1,0]" % (vr(d, 2), vr(x, 2), vr(y, 2)))
    a("v_pk_fma_f32 %s, %s, %s, %s op_sel:[1,1,0] op_sel_hi:[0,1,1] neg_lo:[1,0,0]" % (vr(d, 2), vr(x, 2), vr(y, 2), vr(d, 2)))


def path_B():
    vm = VM()
    a.lab("L_pathB")
    a.c("================= path B : S4D =================")
    srd(SRD_X, PTR(6), 2048 * 1280)
    PRM = 236
    a("s_add_u32 %s, %s, %s" % (sr(S_T0), sr(S_CH0), sr(S_WAVE)))
    a("s_lshl_b32 %s, %s, 8" % (sr(S_T1), sr(S_T0)))
    a("v_lshl_add_u32 %s, %s, 2, %s" % (vr(V_TMP), vr(V_LANE), sr(S_T1)))
    for k in range(6):
        a("global_load_dword %s, %s, %s" % (vr(PRM + k), vr(V_TMP), sr(PTR(7 + k), 2)))
    a("s_lshl_b32 %s, %s, 1" % (sr(S_T1), sr(S_T0)))
    a("s_and_b32 %s, %s, -4" % (sr(S_T1), sr(S_T1)))
    a("s_add_u32 %s, %s, %s" % (sr(S_W), sr(PTR(13)), sr(S_T1)))
    a("s_addc_u32 %s, %s, 0" % (sr(S_W + 1), sr(PTR(13) + 1)))
    a("s_load_dword %s, %s, 0" % (sr(S_W + 2), sr(S_W, 2)))
    a("s_and_b32 %s, %s, 1" % (sr(S_W + 4), sr(S_T0)))
    d_load(14)
    a("s_lshl_b32 %s, %s, 8" % (sr(S_T1), sr(S_WAVE)))
    a("s_lshl_b32 %s, %s, 5" % (sr(S_T2), sr(S_I)))
    a("s_add_u32 %s, %s, %s" % (sr(S_T1), sr(S_T1), sr(S_T2)))
    a("v_and_b32 %s, 31, %s" % (vr(V_TMP + 2), vr(V_LANE)))
    a("v_add_u32 %s, %s, %s" % (vr(V_TMP + 2), sr(S_T1), vr(V_TMP + 2)))
    a("v_mul_u32_u24 %s, 1280, %s" % (vr(V_TMP + 2), vr(V_TMP + 2)))
    a("s_lshl_b32 %s, %s, 7" % (sr(S_T1), sr(S_COL)))
    a("v_add_u32 %s, %s, %s" % (vr(V_TMP + 2), sr(S_T1), vr(V_TMP + 2)))
    a("buffer_load_dword %s, %s, %s, 0 offen" % (vr(V_TMP + 4), vr(V_TMP + 2), sr(SRD_X, 4)))
    a("s_waitcnt lgkmcnt(0)")
    a("s_lshl_b32 %s, %s, 16" % (sr(S_W + 3), sr(S_W + 2)))
    a("s_and_b32 %s, %s, 0xffff0000" % (sr(S_W + 2), sr(S_W + 2)))
    a("s_cmp_eq_u32 %s, 1" % sr(S_W + 4))
    a("s_cselect_b32 %s, %s, %s" % (sr(S_W + 2), sr(S_W + 2), sr(S_W + 3)))
    d_selectors()
    step_offsets()
    DT = 242
    a("v_mov_b32 %s, 0x3fb8aa3b" % vr(DT))
    a("v_mul_f32 %s, %s, %s" % (vr(DT), sr(S_W + 2), vr(DT)))
    a("v_exp_f32 %s, %s" % (vr(DT), vr(DT)))
    AW = V_TMP + 1
    AR = V_TMP + 2
    a("s_mul_i32 %s, %s, %d" % (sr(S_T0), sr(S_WAVE), TSZ))
    a("v_cvt_pk_bf16_f32 %s, 0, %s" % (vr(DT), vr(DT)))
    a("v_lshl_add_u32 %s, %s, 3, %s" % (vr(AW), vr(V_LANE), sr(S_T0)))
    a("v_and_b32 %s, 15, %s" % (vr(AR), vr(V_LANE)))
    a("v_mul_u32_u24 %s, %d, %s" % (vr(AR), LROW, vr(AR)))
    a("v_lshrrev_b32 %s, 4, %s" % (vr(V_TMP + 3), vr(V_LANE)))
    a("v_lshl_add_u32 %s, %s, 4, %s" % (vr(AR), vr(V_TMP + 3), vr(AR)))
    a("v_add_u32 %s, %s, %s" % (vr(AR), sr(S_T0), vr(AR)))
    M = [V_S, V_S + 46]
    def AR2(m): return M[m]
    def AI2(m): return M[m] + 1
    def Wv(m): return M[m] + 2
    def Ep(m, phi): return M[m] + 4 + 2 * (phi - 1)
    def Rr(m, j): return M[m] + 18 + 2 * (j - 1)
    def E128(m): return M[m] + 34
    def G(m, i): return M[m] + 36 + 2 * (i & 1)
    def TA(m, n): return M[m] + 40 + 2 * (n % 3)
    CV = V_ACC + 16
    FRB = V_TC
    FRA = V_TC + 32
    FRC = V_X
    KACC = V_ACC
    stamp_n(1)
    a("s_waitcnt vmcnt(1)")
    stamp_n(2)
    for m in range(2):
        def un(dst, src):
            if m == 0:
                a("v_lshlrev_b32 %s, 16, %s" % (vr(dst), vr(src)))
            else:
                a("v_and_b32 %s, 0xffff0000, %s" % (vr(dst), vr(src)))
        un(AR2(m), PRM + 0)
        un(AI2(m), PRM + 1)
        un(TA(m, 0), PRM + 2)
        un(TA(m, 0) + 1, PRM + 3)
        un(TA(m, 1), PRM + 4)
        un(TA(m, 1) + 1, PRM + 5)
    for m in range(2):
        a("v_mul_f32 %s, %s, %s" % (vr(AR2(m)), vr(DT), vr(AR2(m))))
        a("v_mul_f32 %s, %s, %s" % (vr(AI2(m)), vr(DT), vr(AI2(m))))
        a("v_mul_f32 %s, 0x3fb8aa3b, %s" % (vr(AR2(m)), vr(AR2(m))))
        a("v_mul_f32 %s, 0.15915494, %s" % (vr(AI2(m)), vr(AI2(m))))
        a("v_mul_f32 %s, %s, %s" % (vr(TA(m, 0)), vr(DT), vr(TA(m, 0))))
        a("v_mul_f32 %s, %s, %s" % (vr(TA(m, 0) + 1), vr(DT), vr(TA(m, 0) + 1)))
        cmul(Wv(m), TA(m, 1), TA(m, 0))
    mx = CV
    a("v_max_f32 %s, |%s|, |%s|" % (vr(mx), vr(Wv(0)), vr(Wv(0) + 1)))
    a("v_max3_f32 %s, |%s|, |%s|, %s" % (vr(mx), vr(Wv(1)), vr(Wv(1) + 1), vr(mx)))
    dpp = ["row_shr:1 row_mask:0xf", "row_shr:2 row_mask:0xf", "row_shr:4 row_mask:0xf", "row_shr:8 row_mask:0xf", "row_bcast:15 row_mask:0xa", "row_bcast:31 row_mask:0xc"]
    k = 0
    for x, lit in ((1, "1.0"), (8, "0x41000000"), (128, "0x43000000")):
        for m in range(2):
            dst = Ep(m, 1) if x == 1 else Rr(m, 1) if x == 8 else E128(m)
            t = TA(m, 0)
            a("v_mul_f32 %s, %s, %s" % (vr(t), lit, vr(AR2(m))))
            a("v_mul_f32 %s, %s, %s" % (vr(t + 1), lit, vr(AI2(m))))
            a("v_max_f32_dpp %s, %s, %s %s bank_mask:0xf" % (vr(mx), vr(mx), vr(mx), dpp[k])); k += 1
            a("v_exp_f32 %s, %s" % (vr(t), vr(t)))
            a("v_fract_f32 %s, %s" % (vr(t + 1), vr(t + 1)))
            a("v_cos_f32 %s, %s" % (vr(t + 2), vr(t + 1)))
            a("v_sin_f32 %s, %s" % (vr(t + 3), vr(t + 1)))
            a("s_nop 0")
            a("v_mul_f32 %s, %s, %s" % (vr(dst), vr(t), vr(t + 2)))
            a("v_mul_f32 %s, %s, %s" % (vr(dst + 1), vr(t), vr(t + 3)))
    a("v_readlane_b32 %s, %s, 63" % (sr(S_SC), vr(mx)))
    cvi = [0]
    def put(off, p0, p1, neg):
        c = CV + 2 * (cvi[0] & 3); cvi[0] += 1
        n = "-" if neg else ""
        a("v_cvt_pk_f16_f32 %s, %s, %s%s" % (vr(c), vr(p0), n, vr(p0 + 1)))
        a("v_cvt_pk_f16_f32 %s, %s, %s%s" % (vr(c + 1), vr(p1), n, vr(p1 + 1)))
        a("ds_write_b64 %s, %s offset:%d" % (vr(AW), vr(c, 2), off))
    a("v_mov_b32 %s, 0x3c00" % vr(CV + 6))
    a("v_mov_b32 %s, 0x3c00" % vr(CV + 7))
    a("ds_write_b64 %s, %s offset:0" % (vr(AW), vr(CV + 6, 2)))
    a("s_and_b32 %s, %s, 0x7f800000" % (sr(S_SC), sr(S_SC)))
    a("s_sub_u32 %s, 0x7f000000, %s" % (sr(S_T0), sr(S_SC)))
    for m in range(2):
        a("v_mul_f32 %s, %s, %s" % (vr(Wv(m)), sr(S_T0), vr(Wv(m))))
        a("v_mul_f32 %s, %s, %s" % (vr(Wv(m) + 1), sr(S_T0), vr(Wv(m) + 1)))
    put(LROW, Rr(0, 1), Rr(1, 1), True)
    for j in range(2, 9):
        for m in range(2):
            cmul(Rr(m, j), Rr(m, j // 2), Rr(m, j - j // 2))
        put(j * LROW, Rr(0, j), Rr(1, j), True)
    for j in range(9, 16):
        for m in range(2):
            cmul(TA(m, j), Rr(m, 8), Rr(m, j - 8))
        put(j * LROW, TA(0, j), TA(1, j), True)
    for phi in range(2, 8):
        for m in range(2):
            cmul(Ep(m, phi), Ep(m, phi // 2), Ep(m, phi - phi // 2))
    def lrow_off(row):
        return (KBUF if (row >> 4) != 1 else 0) + (row & 15) * LROW
    cur = [Wv(0), Wv(1)]
    tn = [0]
    for i in range(17):
        if i < 2:
            rows = [(8 * i + phi, phi) for phi in range(8)]
        elif i < 4:
            rows = [(16 + 4 * (i - 2) + f, 2 * f) for f in range(4)]
        elif i < 8:
            rows = [(24 + 2 * (i - 4) + f, 4 * f) for f in range(2)]
        else:
            rows = [(32 + (i - 8), 0)]
        if i == 2:
            a("s_waitcnt lgkmcnt(0)")
            for kp in range(8):
                a("ds_read_b128 %s, %s offset:%d" % (vr(FRB + 4 * kp, 4), vr(AR), 64 * kp))
            for kp in range(8):
                a("ds_read_b128 %s, %s offset:%d" % (vr(FRA + 4 * kp, 4), vr(AR), KBUF + 64 * kp))
        nxt = [G(0, i), G(1, i)]
        if i < 16:
            for m in range(2):
                cmul(nxt[m], cur[m], E128(m))
        if i == 2:
            a("s_waitcnt lgkmcnt(0)")
        for n, (row, phi) in enumerate(rows):
            if phi == 0:
                put(lrow_off(row), cur[0], cur[1], False)
            else:
                for m in range(2):
                    cmul(TA(m, tn[0]), cur[m], Ep(m, phi))
                put(lrow_off(row), TA(0, tn[0]), TA(1, tn[0]), False)
                tn[0] += 1
            if 16 <= row < 24:
                kp = row - 16
                a("v_mfma_f32_16x16x32_f16 %s, %s, %s, %s" % (vr(KACC, 4), vr(FRA + 4 * kp, 4), vr(FRB + 4 * kp, 4), "0" if kp == 0 else vr(KACC, 4)))
        cur = nxt
    a("s_waitcnt lgkmcnt(0)")
    for kp in range(8):
        a("ds_read_b128 %s, %s offset:%d" % (vr(FRA + 4 * kp, 4), vr(AR), 64 * kp))
    for kp in range(8):
        a("ds_read_b128 %s, %s offset:%d" % (vr(FRC + 4 * kp, 4), vr(AR), KBUF + 64 * kp))
    j, g = V_TMP, V_TMP + 3
    A0, A1, A1b, A2 = V_S, V_S + 1, V_S + 2, V_S + 3
    a("v_and_b32 %s, 15, %s" % (vr(j), vr(V_LANE)))
    a("s_mul_i32 %s, %s, %d" % (sr(S_T1), sr(S_WAVE), PCH))
    a("s_add_u32 %s, %s, %d" % (sr(S_T1), sr(S_T1), P0 + PBUF))
    a("v_lshrrev_b32 %s, 1, %s" % (vr(A0), vr(g)))
    a("v_lshlrev_b32 %s, 7, %s" % (vr(A0), vr(A0)))
    a("v_and_b32 %s, 1, %s" % (vr(A1), vr(g)))
    a("v_lshl_add_u32 %s, %s, 2, %s" % (vr(A0), vr(A1), vr(A0)))
    a("v_lshl_add_u32 %s, %s, 3, %s" % (vr(A0), vr(j), vr(A0)))
    a("v_lshl_add_u32 %s, %s, 1, %s" % (vr(A0), vr(A0), sr(S_T1)))
    a("v_lshlrev_b32 %s, 6, %s" % (vr(A2), vr(g)))
    a("v_cmp_gt_u32 vcc, 2, %s" % vr(g))
    a("v_lshlrev_b32 %s, 2, %s" % (vr(A1), vr(j)))
    a("v_lshlrev_b32 %s, 1, %s" % (vr(A1b), vr(j)))
    a("v_cndmask_b32 %s, %s, %s, vcc" % (vr(A1), vr(A1b), vr(A1)))
    a("s_waitcnt lgkmcnt(8)")
    for kp in range(8):
        a("v_mfma_f32_16x16x32_f16 %s, %s, %s, %s" % (vr(KACC + 4, 4), vr(FRA + 4 * kp, 4), vr(FRB + 4 * kp, 4), "0" if kp == 0 else vr(KACC + 4, 4)))
    a("s_waitcnt lgkmcnt(0)")
    for kp in range(8):
        a("v_mfma_f32_16x16x32_f16 %s, %s, %s, %s" % (vr(KACC + 8, 4), vr(FRC + 4 * kp, 4), vr(FRB + 4 * kp, 4), "0" if kp == 0 else vr(KACC + 8, 4)))
    a("v_add_u32 %s, %s, %s" % (vr(A1), vr(A1), vr(A2)))
    a("v_add_u32 %s, 256, %s" % (vr(A1), vr(A1)))
    a("v_mov_b32 %s, 32" % vr(A1b))
    a("v_cndmask_b32 %s, %s, 2, vcc" % (vr(A1b), vr(A1b)))
    a("v_add_u32 %s, %s, %s" % (vr(A1b), vr(A1b), vr(A1)))
    a("v_lshl_add_u32 %s, %s, 1, %s" % (vr(A1), vr(A1), sr(S_T1)))
    a("v_lshl_add_u32 %s, %s, 1, %s" % (vr(A1b), vr(A1b), sr(S_T1)))
    a("v_add3_u32 %s, %s, %s, %s" % (vr(A2), vr(A2), vr(j), "64"))
    a("v_add_u32 %s, 448, %s" % (vr(A2), vr(A2)))
    a("v_lshl_add_u32 %s, %s, 1, %s" % (vr(A2), vr(A2), sr(S_T1)))
    a("s_waitcnt vmcnt(0)")
    stamp_n(3)
    for k in range(12):
        a("v_mul_f32 %s, %s, %s" % (vr(KACC + k), sr(S_SC), vr(KACC + k)))
    for p in range(4):
        a("buffer_load_dwordx4 %s, %s, %s, %s offen" % (vr(V_X + 4 * p, 4), vr(V_IN), sr(SRD_X, 4), sin(p)))
        vm.issue("u%d" % p)
    pk = KACC + 12
    for k in range(6):
        a("v_cvt_pk_bf16_f32 %s, %s, %s" % (vr(pk + k), vr(KACC + 2 * k), vr(KACC + 2 * k + 1)))
    a("ds_write_b64 %s, %s offset:0" % (vr(A0), vr(pk, 2)))
    a("ds_write_b32 %s, %s offset:0" % (vr(A1), vr(pk + 2)))
    a("ds_write_b32 %s, %s offset:0" % (vr(A1b), vr(pk + 3)))
    a("ds_write_b16 %s, %s offset:0" % (vr(A2), vr(pk + 4)))
    a("ds_write_b16_d16_hi %s, %s offset:32" % (vr(A2), vr(pk + 4)))
    a("ds_write_b16 %s, %s offset:64" % (vr(A2), vr(pk + 5)))
    a("ds_write_b16_d16_hi %s, %s offset:96" % (vr(A2), vr(pk + 5)))
    a.c("---- expand the staircase into the four shifted copies ----")
    tbase_addr()
    D = V_TC
    H = V_TC + 32
    a("v_lshl_add_u32 %s, %s, 4, %s" % (vr(V_TMP), vr(V_LANE), sr(S_T1)))
    a("v_lshl_add_u32 %s, %s, 3, %s" % (vr(V_TMP + 1), vr(V_LANE), sr(S_T1)))
    a("v_lshl_add_u32 %s, %s, 2, %s" % (vr(V_TMP + 2), vr(V_LANE), sr(S_T1)))
    a("v_lshl_add_u32 %s, %s, 1, %s" % (vr(V_TMP + 3), vr(V_LANE), sr(S_T1)))
    a("s_mov_b32 %s, 0x01000100" % sr(S_K0))
    a("s_mov_b32 %s, 0x03020302" % sr(S_K1))
    a("s_waitcnt lgkmcnt(0)")
    a("ds_read_b128 %s, %s" % (vr(D, 4), vr(V_TMP)))
    a("ds_read_b64 %s, %s offset:16" % (vr(D + 4, 2), vr(V_TMP)))
    a("ds_read_b64 %s, %s offset:256" % (vr(H, 2), vr(V_TMP + 1)))
    a("ds_read_b32 %s, %s offset:264" % (vr(H + 2), vr(V_TMP + 1)))
    a("ds_read_b32 %s, %s offset:%d" % (vr(H + 4), vr(V_TMP + 2), 2 * 384))
    a("ds_read_b32 %s, %s offset:%d" % (vr(H + 5), vr(V_TMP + 2), 2 * 384 + 4))
    for n in (2, 3):
        o = 2 * (512 + 64 * (n - 2))
        a("ds_read_u16 %s, %s offset:%d" % (vr(H + 6 + 2 * (n - 2)), vr(V_TMP + 3), o))
        a("ds_read_u16 %s, %s offset:%d" % (vr(H + 7 + 2 * (n - 2)), vr(V_TMP + 3), o + 2))
    a("v_and_b32 %s, 1, %s" % (vr(V_TMP), vr(V_LANE)))
    a("v_cmp_eq_u32 vcc, 0, %s" % vr(V_TMP))
    a("s_waitcnt lgkmcnt(0)")
    a("s_mov_b32 exec_hi, 0")
    a("s_mov_b32 exec_lo, 0x80000000")
    a("v_lshrrev_b32 %s, 16, %s" % (vr(D + 5), vr(D + 4)))
    a("v_perm_b32 %s, %s, %s, %s" % (vr(D + 4), vr(D + 4), vr(D + 4), sr(S_K0)))
    a("s_mov_b32 exec_lo, 0")
    a("s_mov_b32 exec_hi, -1")
    a("v_perm_b32 %s, %s, %s, %s" % (vr(D), vr(H), vr(H), sr(S_K0)))
    a("v_alignbit_b32 %s, %s, %s, 16" % (vr(D + 1), vr(H + 1), vr(H)))
    a("v_perm_b32 %s, %s, %s, %s" % (vr(D + 2), vr(H + 1), vr(H + 1), sr(S_K0)))
    a("v_alignbit_b32 %s, %s, %s, 16" % (vr(D + 3), vr(H + 2), vr(H + 1)))
    a("v_perm_b32 %s, %s, %s, %s" % (vr(D + 4), vr(H + 2), vr(H + 2), sr(S_K0)))
    a("v_lshrrev_b32 %s, 16, %s" % (vr(D + 5), vr(H + 2)))
    a("s_mov_b32 exec_hi, 0x80000000")
    a("v_mov_b32 %s, %s" % (vr(D + 5), vr(D + 4)))
    a("s_mov_b64 exec, -1")
    write_head(D, D + 1, V_S + 8)
    write_copies(D, V_S + 16, 0)
    D2 = D + 8
    a("v_perm_b32 %s, %s, %s, %s" % (vr(D2), vr(H + 4), vr(H + 4), sr(S_K0)))
    a("v_mov_b32 %s, %s" % (vr(D2 + 1), vr(H + 4)))
    a("v_perm_b32 %s, %s, %s, %s" % (vr(D2 + 2), vr(H + 4), vr(H + 4), sr(S_K1)))
    for k in (3, 4, 5):
        a("v_perm_b32 %s, %s, %s, %s" % (vr(D2 + k), vr(H + 5), vr(H + 5), sr(S_K0)))
    write_copies(D2, V_S + 24, 1)
    for n in (2, 3):
        D3 = D + 8 * n
        ra, rb_ = H + 6 + 2 * (n - 2), H + 7 + 2 * (n - 2)
        a("v_lshl_or_b32 %s, %s, 16, %s" % (vr(D3), vr(ra), vr(ra)))
        a("v_lshl_or_b32 %s, %s, 16, %s" % (vr(D3 + 1), vr(ra), vr(ra)))
        for k in (3, 4, 5):
            a("v_lshl_or_b32 %s, %s, 16, %s" % (vr(D3 + k), vr(rb_), vr(rb_)))
        a("v_cndmask_b32 %s, %s, %s, vcc" % (vr(ra), vr(rb_), vr(ra)))
        a("v_lshl_or_b32 %s, %s, 16, %s" % (vr(D3 + 2), vr(rb_), vr(ra)))
        write_copies(D3, V_S + 16 + 8 * (n & 1), n)
    stamp_n(4)
    a(vm.wait("u0"))
    conv(1, vm)


DELAY = [int(x) for x in os.environ.get("DELAY", "45,10,0").split(",")]
MBAR_R = int(os.environ.get("MBAR_R", "1"))


def conv(typ, vm):
    T = "AB"[typ]
    a.c("================= convolution (%s) =================" % T)

    def p_reads(p, r):
        buf = r & 1
        return [("ds_read_b128 %s, %s offset:%d" % (vr(V_PF + 8 * buf + 4 * dl, 4), vr(V_P), (p & 1) * PBUF + 512 * (1 - dl) + 64 * r), ("P", p, r, dl)) for dl in range(2)]

    def treg(r, u):
        return V_TC + 8 * r + 4 * u if u < 2 else V_TF + 24 * (r & 1) + 4 * (u - 2)

    def t_reads(p, r):
        out = []
        for u in range(0 if p == 0 else 2, 8 - 2 * p):
            for hh in range(2):
                out.append(("ds_read_b64 %s, %s offset:%d" % (vr(treg(r, u) + 2 * hh, 2), vr(V_T), 512 * u + 64 * r + 8 * hh), ("T", p, r, u, hh)))
        return out

    def mfmas(p):
        out = []
        for u in range(8 - 2 * p):
            for dl in range(2):
                c = u + 2 * p + dl
                if c <= 7:
                    out.append((c, u, dl))
        return out

    lq = []
    state = {"done": -1}

    def need(*tags):
        idx = -1
        for tag in tags:
            idxs = [i for i, t in enumerate(lq) if t == tag]
            if idxs:
                idx = max(idx, idxs[-1])
        if idx <= state["done"]:
            return
        n = len(lq) - 1 - idx
        a("s_waitcnt lgkmcnt(%d)" % min(n, 15))
        state["done"] = len(lq) - 1 - min(n, 15)

    def drain():
        a("s_waitcnt lgkmcnt(0)")
        state["done"] = len(lq) - 1

    def emit(s_, tag=None):
        if s_ == "@Y":
            need(("Y", 7))
            return
        a(s_)
        if s_.startswith("ds_"):
            lq.append(tag)

    for s_ in p_writes(typ, 0, False):
        emit(s_)
    a("v_mov_b32 %s, 0" % vr(V_PF))
    a("v_mov_b32 %s, 0" % vr(V_PF + 1))
    emit("ds_write_b64 %s, %s offset:1024" % (vr(V_O), vr(V_PF, 2)))
    for s_, tg in t_reads(0, 0):
        emit(s_, tg)
    drain()
    stamp_n(5)
    a("s_barrier")

    touched = set()
    for p in range(4):
        a.c("---- super-step %d ----" % p)
        stamp_n(6 + 2 * p)
        for s_, tg in p_reads(p, 0):
            emit(s_, tg)
        if p > 0:
            for c, s_ in enumerate(out_reads(p - 1)):
                emit(s_, ("Y", c))
        pre = []
        post = []
        if typ == 0:
            pre.append("buffer_load_dwordx4 %s, %s, %s, %s offen" % (vr(QA(p), 4), vr(V_IN), sr(SRD_Q, 4), sin(p)))
            vm.issue("q%d" % p)
        if p > 0:
            pre.append("@Y")
            pre += epilogue_math(typ, p - 1, vm)
        if p < 3:
            if typ == 0:
                pre += ["@S"] * DELAY[p]
                pre += prologue_math(p + 1, vm)
                if p < 2:
                    pre += raw_loads(p + 2, vm)
            else:
                post.append(vm.wait("u%d" % (p + 1)))
            post += p_writes(typ, p, True)
            post += p_writes(typ, p + 1, False)
        fill = pre + ["@M"] + post
        fi = 0
        mdone = (p == 0 or p == 3)
        for r in range(8):
            buf = r & 1
            if r < 7:
                nxt = p_reads(p, r + 1) + t_reads(p, r + 1)
            else:
                nxt = t_reads(p + 1, 0) if p < 3 else []
            ms = mfmas(p)
            if r == MBAR_R + 1 and not mdone:
                need(("Y", 7))
                a("s_barrier")
                mdone = True
            for i, (c, u, dl) in enumerate(ms):
                acc = V_ACC + 4 * c
                src = vr(acc, 4) if c in touched else "0"
                touched.add(c)
                need(("P", p, r, dl), ("T", p, r, u, 1))
                a("v_mfma_f32_16x16x32_bf16 %s, %s, %s, %s" % (vr(acc, 4), vr(treg(r, u), 4), vr(V_PF + 8 * buf + 4 * dl, 4), src))
                lo = (i * len(nxt) + len(ms) - 1) // len(ms)
                hi = len(nxt) if i == len(ms) - 1 else ((i + 1) * len(nxt) + len(ms) - 1) // len(ms)
                for k in range(lo, min(hi, len(nxt))):
                    emit(*nxt[k])
                n = 0
                while fi < len(fill) and (n < FILL or fill[fi - 1].startswith("s_mov_b64 exec, 1") or (fill[fi - 1].startswith("buffer_load") and V_HA_STR in fill[fi - 1])):
                    if fill[fi] == "@S":
                        fi += 1
                        break
                    if fill[fi] == "@M":
                        if not mdone:
                            break
                        fi += 1
                        continue
                    emit(fill[fi], "x"); fi += 1; n += 1
                if r == 7 and p < 3 and i == 6:
                    a("s_nop 3")
                    deposit(p, emit)
        while fi < len(fill):
            if fill[fi] not in ("@M", "@S"):
                emit(fill[fi], "x")
            fi += 1
        stamp_n(7 + 2 * p)
        if p == 3:
            a("s_nop 7")
            a("s_nop 1")
            deposit(p, emit)
        drain()
        a("s_barrier")
    stamp_n(14)
    for s_ in out_reads(3):
        a(s_)
    a("s_waitcnt lgkmcnt(0)")
    for s_ in epilogue_math(typ, 3, vm):
        a(s_)
    stamp_dump()
    a("s_endpgm")


def deposit(p, emit):
    for dl in range(2):
        acc = V_ACC + 4 * (2 * p + dl)
        a("v_cvt_pk_bf16_f32 %s, %s, %s" % (vr(acc), vr(acc), vr(acc + 1)))
        a("v_cvt_pk_bf16_f32 %s, %s, %s" % (vr(acc + 1), vr(acc + 2), vr(acc + 3)))
        emit("ds_write_b64 %s, %s offset:%d" % (vr(V_O), vr(acc, 2), (p & 1) * PBUF + 512 * dl), "x")


V_HA_STR = ", v%d, " % V_HA

header()
prologue_common()
path_A()
path_B()
helper()
footer()
out = sys.argv[1] if len(sys.argv) > 1 else "concat_heads__ssm_conv_h3__ssm_conv_s4__prompt.s"
open(out, "w").write(a.text())
print("wrote", out, len(a.l), "lines")
```

```python
import os
import sys

NAME = "concat_heads__ssm_conv_h3__ssm_conv_s4__prompt_kernel"
MODE = sys.argv[2] if len(sys.argv) > 2 else ""
STAMPS = MODE in ("stamps", "dbgt")
EXACT = int(os.environ.get("EXACT", "1"))
UAT = [int(x) for x in os.environ.get("UAT", "5,8,12,16").split(",")]
TORDER = int(os.environ.get("TORDER", "0"))
CODEPF = int(os.environ.get("CODEPF", "0"))
SPREAD = int(os.environ.get("SPREAD", "1"))
RPM = int(os.environ.get("RPM", "2"))
FILL = int(os.environ.get("FILL", "2"))

TCOPY = 4160
TSZ = 16896
P0 = 8 * TSZ
PCH = 2560
LDS_TOTAL = P0 + 8 * PCH
OUTOFF = 2112
LROW = 528
KBUF = 16 * LROW


class A:
    def __init__(self):
        self.l = []

    def __call__(self, s):
        self.l.append("    " + s)

    def lab(self, s):
        self.l.append(s + ":")

    def c(self, s):
        self.l.append("    ; " + s)

    def text(self):
        return "\n".join(self.l) + "\n"


def vr(b, n=1):
    return "v%d" % b if n == 1 else "v[%d:%d]" % (b, b + n - 1)


def sr(b, n=1):
    return "s%d" % b if n == 1 else "s[%d:%d]" % (b, b + n - 1)


a = A()

S_TYPE = 3
S_PTR = 4
def PTR(i): return S_PTR + 2 * i
S_WAVE = 40
S_COL = 41
S_I = 42
S_CH0 = 43
SRD_X = 44
SRD_V = 48
SRD_Q = 52
SRD_T = 56
SRD_O = 60
S_W = 64
S_D = 4
S_ONES = 96
S_T0 = 99
S_T1 = 100
S_T2 = 101
S_EX = 20
S_SC = 22
S_IN1 = 23
S_OUT1 = 32
S_K0 = 26
S_K1 = 27

V_LANE = 1
V_T = 2
V_P = 3
V_O = 4
V_WM = 5
V_OR = 6
V_GO = 7
V_IN = 8
V_TMP = 9
V_WP = 255
V_X = 16
V_Q = 32
V_OR2 = 40
V_O2 = 41
V_ACC = 48
V_TC = 80
V_TF = 144
V_PF = 192
V_S = 144
V_ST = 254
NVGPR = 256


def stamp_n(n):
    if not STAMPS:
        return
    a("s_memrealtime s[36:37]")
    a("s_waitcnt lgkmcnt(0)")
    a("v_writelane_b32 %s, s36, %d" % (vr(V_ST), n))
    a("s_memtime s[36:37]")
    a("s_waitcnt lgkmcnt(0)")
    a("v_writelane_b32 %s, s36, %d" % (vr(V_ST), n + 16))


_dd = [0]
def stamp_dump():
    if not STAMPS:
        return
    a("s_waitcnt vmcnt(0)")
    stamp_n(15)
    if MODE == "dbgt":
        a("s_load_dwordx2 s[36:37], s[0:1], 128")
        a("s_cmp_lg_u32 %s, 0" % sr(S_WAVE))
        a("s_cbranch_scc1 L_end")
        a("s_cmp_lg_u32 s2, %d" % (0 if _dd[0] == 0 else 130))
        a("s_cbranch_scc1 L_end")
        for k, ln in enumerate((0, 1, 6, 15, 16, 17, 22, 31)):
            a("v_readlane_b32 s38, %s, %d" % (vr(V_ST), ln))
            a("s_nop 3")
            a("v_mov_b32 %s, s38" % vr(V_S + k))
        a("v_mov_b32 %s, %d" % (vr(V_ST + 1), 32 * _dd[0]))
        a("s_waitcnt lgkmcnt(0)")
        a("s_mov_b64 exec, 1")
        a("global_store_dwordx4 %s, %s, s[36:37]" % (vr(V_ST + 1), vr(V_S, 4)))
        a("global_store_dwordx4 %s, %s, s[36:37] offset:16" % (vr(V_ST + 1), vr(V_S + 4, 4)))
        _dd[0] += 1
        return
    a("s_load_dwordx2 s[36:37], s[0:1], 136")
    a("s_lshl_b32 s38, s2, 3")
    a("s_add_u32 s38, s38, %s" % sr(S_WAVE))
    a("s_lshl_b32 s38, s38, 8")
    a("v_lshl_add_u32 %s, %s, 2, s38" % (vr(V_ST + 1), vr(V_LANE)))
    a("s_waitcnt lgkmcnt(0)")
    a("global_store_dword %s, %s, s[36:37]" % (vr(V_ST + 1), vr(V_ST)))


def header():
    a.l.append("; fused H3 (shift-SSM * v -> long conv -> gate) and S4D (kernel generation + long conv), one launch")
    a.l.append("; @launch grid=(256,1,1) block=(512,1,1) lds=%d" % LDS_TOTAL)
    a.l.append('.amdgcn_target "amdgcn-amd-amdhsa--gfx950"')
    a.l.append(".text")
    a.l.append(".globl " + NAME)
    a.l.append(".p2align 8")
    a.l.append(".type %s,@function" % NAME)
    a.lab(NAME)


def footer():
    a.lab("L_end")
    a("s_endpgm")
    a.l.append('.section .rodata,"a"')
    a.l.append(".p2align 6")
    a.l.append(".amdhsa_kernel " + NAME)
    a.l.append("  .amdhsa_next_free_vgpr %d" % NVGPR)
    a.l.append("  .amdhsa_next_free_sgpr 102")
    a.l.append("  .amdhsa_accum_offset %d" % NVGPR)
    a.l.append("  .amdhsa_group_segment_fixed_size 0")
    a.l.append("  .amdhsa_kernarg_size 144")
    a.l.append("  .amdhsa_user_sgpr_count 2")
    a.l.append("  .amdhsa_user_sgpr_kernarg_segment_ptr 1")
    a.l.append("  .amdhsa_system_sgpr_workgroup_id_x 1")
    a.l.append(".end_amdhsa_kernel")


def srd(d, plo, nbytes):
    a("s_mov_b32 %s, %s" % (sr(d), sr(plo)))
    a("s_and_b32 %s, %s, 0xffff" % (sr(d + 1), sr(plo + 1)))
    a("s_mov_b32 %s, 0x%x" % (sr(d + 2), nbytes))
    a("s_mov_b32 %s, 0x00020000" % sr(d + 3))


SLOTS = [
    [0x00, 0x02, 0x04, 0x05, 0x06, 0x07, 0x08, 0x09],
    [0x01, 0x03, 0x24, 0x25, 0x26, 0x27, 0x28, 0x29],
    [0x20, 0x22, 0x10, 0x12, 0x14, 0x16, 0x18, 0xff],
    [0x21, 0x23, 0x11, 0x13, 0x15, 0x17, 0x19, 0xff],
]


def prologue_common():
    a.c("---- decode workgroup -> (type, column, index) ----")
    a("s_cmp_ge_u32 s2, 256")
    a("s_cbranch_scc1 L_end")
    a("s_load_dwordx16 %s, s[0:1], 0" % sr(S_PTR, 16))
    a("s_load_dwordx16 %s, s[0:1], 64" % sr(S_PTR + 16, 16))
    if os.environ.get("BADMAP"):
        a("s_lshr_b32 %s, s2, 5" % sr(S_T0))
        a("s_and_b32 %s, s2, 31" % sr(S_T1))
    else:
        a("s_and_b32 %s, s2, 7" % sr(S_T0))
        a("s_lshr_b32 %s, s2, 3" % sr(S_T1))
    a("s_and_b32 %s, %s, 7" % (sr(S_I), sr(S_T1)))
    a("s_lshr_b32 %s, %s, 3" % (sr(S_T1), sr(S_T1)))
    def pk(t, lo): return sum(t[lo + i] << (8 * i) for i in range(4))
    a("s_mov_b32 %s, 0x%x" % (sr(S_COL), pk(SLOTS[0], 0)))
    a("s_mov_b32 %s, 0x%x" % (sr(S_T2), pk(SLOTS[0], 4)))
    for k in (1, 2, 3):
        a("s_cmp_eq_u32 %s, %d" % (sr(S_T1), k))
        a("s_cselect_b32 %s, 0x%x, %s" % (sr(S_COL), pk(SLOTS[k], 0), sr(S_COL)))
        a("s_cselect_b32 %s, 0x%x, %s" % (sr(S_T2), pk(SLOTS[k], 4), sr(S_T2)))
    a("s_cmp_ge_u32 %s, 4" % sr(S_T0))
    a("s_cselect_b32 %s, %s, %s" % (sr(S_COL), sr(S_T2), sr(S_COL)))
    a("s_and_b32 %s, %s, 3" % (sr(S_T0), sr(S_T0)))
    a("s_lshl_b32 %s, %s, 3" % (sr(S_T0), sr(S_T0)))
    a("s_lshr_b32 %s, %s, %s" % (sr(S_COL), sr(S_COL), sr(S_T0)))
    a("s_and_b32 %s, %s, 0xff" % (sr(S_COL), sr(S_COL)))
    a("s_cmp_eq_u32 %s, 0xff" % sr(S_COL))
    a("s_cbranch_scc1 L_end")
    a("s_lshr_b32 %s, %s, 4" % (sr(S_TYPE), sr(S_COL)))
    a("s_and_b32 %s, %s, 15" % (sr(S_COL), sr(S_COL)))
    a("s_lshl_b32 %s, %s, 6" % (sr(S_CH0), sr(S_COL)))
    a("s_lshl_b32 %s, %s, 3" % (sr(S_T0), sr(S_I)))
    a("s_add_u32 %s, %s, %s" % (sr(S_CH0), sr(S_CH0), sr(S_T0)))
    if CODEPF:
        a("s_cmp_lg_u32 %s, 0" % sr(S_I))
        a("s_cbranch_scc1 L_pcs")
        a("s_getpc_b64 s[36:37]")
        a.lab("L_pc")
        a("v_lshlrev_b32 %s, 7, v0" % vr(V_TMP + 1))
        a("v_mov_b32 %s, s37" % vr(V_TMP + 4))
        a("v_min_u32 %s, L_end-L_pc, %s" % (vr(V_TMP + 1), vr(V_TMP + 1)))
        a("v_add_co_u32 %s, vcc, s36, %s" % (vr(V_TMP + 3), vr(V_TMP + 1)))
        a("s_nop 1")
        a("v_addc_co_u32 %s, vcc, 0, %s, vcc" % (vr(V_TMP + 4), vr(V_TMP + 4)))
        a("v_cmp_gt_u32 vcc, 256, v0")
        a("s_and_saveexec_b64 s[38:39], vcc")
        a("s_cbranch_execz L_pcd")
        a("global_load_dword %s, %s, off" % (vr(253), vr(V_TMP + 3, 2)))
        a.lab("L_pcd")
        a("s_mov_b64 exec, s[38:39]")
        a.lab("L_pcs")
    a("v_lshrrev_b32 %s, 6, v0" % vr(V_TMP))
    a("v_and_b32 %s, 63, v0" % vr(V_LANE))
    a("s_mov_b32 %s, 0x3f803f80" % sr(S_ONES))
    a("v_readfirstlane_b32 %s, %s" % (sr(S_WAVE), vr(V_TMP)))
    a("s_cmp_eq_u32 %s, 2" % sr(S_TYPE))
    a("s_cbranch_scc1 L_helper")
    a.c("---- per-lane addresses ----")
    t0, t1, t2, t3 = V_TMP, V_TMP + 1, V_TMP + 2, V_TMP + 3
    a("v_and_b32 %s, 15, %s" % (vr(t0), vr(V_LANE)))
    a("v_lshrrev_b32 %s, 4, %s" % (vr(t1), vr(V_LANE)))
    a("v_add_u32 %s, 1, %s" % (vr(t2), vr(t0)))
    a("v_and_b32 %s, 3, %s" % (vr(t3), vr(t2)))
    a("v_sub_u32 %s, %s, %s" % (vr(t2), vr(t2), vr(t3)))
    a("v_lshlrev_b32 %s, 1, %s" % (vr(t2), vr(t2)))
    a("v_mul_u32_u24 %s, %d, %s" % (vr(t3), TCOPY, vr(t3)))
    a("v_add_u32 %s, %s, %s" % (vr(t2), vr(t2), vr(t3)))
    a("v_lshl_add_u32 %s, %s, 4, %s" % (vr(t2), vr(t1), vr(t2)))
    a("s_mul_i32 %s, %s, %d" % (sr(S_T0), sr(S_WAVE), TSZ))
    a("v_add_u32 %s, %s, %s" % (vr(V_T), sr(S_T0), vr(t2)))
    a("s_mul_i32 %s, %s, %d" % (sr(S_T0), sr(S_WAVE), PCH))
    a("s_add_u32 %s, %s, %d" % (sr(S_T0), sr(S_T0), P0))
    a("v_lshlrev_b32 %s, 5, %s" % (vr(t2), vr(t0)))
    a("v_lshl_add_u32 %s, %s, 3, %s" % (vr(t3), vr(t1), vr(t2)))
    a("v_add_u32 %s, %s, %s" % (vr(V_O), sr(S_T0), vr(t3)))
    a("v_lshlrev_b32 %s, 4, %s" % (vr(t3), vr(t1)))
    a("v_sub_u32 %s, %s, %s" % (vr(t3), vr(t3), vr(t2)))
    a("s_add_u32 %s, %s, 480" % (sr(S_T0), sr(S_T0)))
    a("v_add_u32 %s, %s, %s" % (vr(V_P), sr(S_T0), vr(t3)))
    a("v_lshlrev_b32 %s, 1, v0" % vr(t0))
    a("v_sub_u32 %s, %d, %s" % (vr(V_WM), P0 + 1022, vr(t0)))
    a("v_add_u32 %s, %d, %s" % (vr(V_OR), OUTOFF, vr(t0)))
    a("v_add_u32 %s, %d, %s" % (vr(V_OR2), OUTOFF + 4 * TSZ, vr(t0)))
    a("s_mul_i32 %s, %s, %d" % (sr(S_T0), sr(S_WAVE), TSZ - PCH))
    a("s_sub_u32 %s, %s, %d" % (sr(S_T0), sr(S_T0), P0 - OUTOFF))
    a("v_add_u32 %s, %s, %s" % (vr(V_O2), sr(S_T0), vr(V_O)))
    a("v_and_b32 %s, 30, %s" % (vr(t2), vr(t0)))
    a("v_add_u32 %s, %d, %s" % (vr(t2), P0 + 2528, vr(t2)))
    a("v_add_u32 %s, 2048, %s" % (vr(V_WP), vr(V_WM)))
    a("v_cmp_gt_u32 vcc, 256, v0")
    a("s_lshl_b32 %s, %s, 1" % (sr(S_T1), sr(S_CH0)))
    a("v_mul_u32_u24 %s, 1280, v0" % vr(t1))
    a("v_cndmask_b32 %s, %s, %s, vcc" % (vr(V_WP), vr(V_WP), vr(t2)))
    a("v_add_u32 %s, %s, %s" % (vr(V_IN), sr(S_T1), vr(t1)))
    a("s_mul_i32 %s, %s, 1280" % (sr(S_T2), sr(S_TYPE)))
    a("s_add_u32 %s, %s, %s" % (sr(S_T2), sr(S_T2), sr(S_T1)))
    a("v_lshl_add_u32 %s, %s, 1, %s" % (vr(V_GO), vr(t1), sr(S_T2)))
    a("s_waitcnt lgkmcnt(0)")
    srd(SRD_O, PTR(15), 2048 * 2560)
    stamp_n(0)
    a("s_cmp_eq_u32 %s, 1" % sr(S_TYPE))
    a("s_cbranch_scc1 L_pathB")


def step_offsets():
    for p in (1, 2, 3):
        a("s_mov_b32 %s, %d" % (sr(S_IN1 + p - 1), p * 512 * 1280))
        a("s_mov_b32 %s, %d" % (sr(S_OUT1 + p - 1), p * 512 * 2560))


def sin(p): return "0" if p == 0 else sr(S_IN1 + p - 1)
def sout(p): return "0" if p == 0 else sr(S_OUT1 + p - 1)


def helper():
    a.lab("L_helper")
    a.c("================= helper : bring v, the later rows of k, and q of one A column into this XCD's L2 =================")
    a("s_waitcnt lgkmcnt(0)")
    srd(SRD_X, PTR(1), 2048 * 1280)
    srd(SRD_V, PTR(2), 2048 * 1280)
    srd(SRD_Q, PTR(0), 2048 * 1280)
    a("s_lshl_b32 %s, %s, 7" % (sr(S_T1), sr(S_COL)))
    a("s_lshl_b32 %s, %s, 7" % (sr(S_T0), sr(S_I)))
    a("s_lshl_b32 %s, %s, 4" % (sr(S_T2), sr(S_WAVE)))
    a("s_add_u32 %s, %s, %s" % (sr(S_T0), sr(S_T0), sr(S_T2)))
    a("v_and_b32 %s, 15, %s" % (vr(V_TMP + 1), vr(V_LANE)))
    a("v_add_u32 %s, %s, %s" % (vr(V_TMP + 1), sr(S_T0), vr(V_TMP + 1)))
    a("v_mul_u32_u24 %s, 1280, %s" % (vr(V_TMP + 1), vr(V_TMP + 1)))
    a("v_add_u32 %s, %s, %s" % (vr(V_TMP + 1), sr(S_T1), vr(V_TMP + 1)))
    a("buffer_load_dword %s, %s, %s, 0 offen" % (vr(V_TMP + 2), vr(V_TMP + 1), sr(SRD_V, 4)))
    srd(SRD_T, PTR(4), 640 * 4096)
    a("s_add_u32 %s, %s, %s" % (sr(S_T0), sr(S_CH0), sr(S_WAVE)))
    a("s_lshl_b32 %s, %s, 12" % (sr(S_T0), sr(S_T0)))
    a("v_and_b32 %s, 15, %s" % (vr(V_TMP + 3), vr(V_LANE)))
    a("v_lshlrev_b32 %s, 7, %s" % (vr(V_TMP + 3), vr(V_TMP + 3)))
    a("buffer_load_dword %s, %s, %s, %s offen offset:2048" % (vr(V_TMP + 4), vr(V_TMP + 3), sr(SRD_T, 4), sr(S_T0)))
    a("v_mul_u32_u24 %s, 1280, %s" % (vr(V_TMP), vr(V_LANE)))
    a("v_add_u32 %s, %s, %s" % (vr(V_TMP), sr(S_T1), vr(V_TMP)))
    a("s_cmp_ge_u32 %s, 4" % sr(S_WAVE))
    a("s_cbranch_scc1 L_hq")
    a("s_lshr_b32 %s, %s, 1" % (sr(S_T0), sr(S_I)))
    a("s_lshl_b32 %s, %s, 2" % (sr(S_T1), sr(S_WAVE)))
    a("s_add_u32 %s, %s, %s" % (sr(S_T0), sr(S_T0), sr(S_T1)))
    a("s_add_u32 %s, %s, 16" % (sr(S_T0), sr(S_T0)))
    a("s_mul_i32 %s, %s, %d" % (sr(S_T0), sr(S_T0), 64 * 1280))
    a("s_and_b32 %s, %s, 1" % (sr(S_T1), sr(S_I)))
    a("s_cmp_eq_u32 %s, 1" % sr(S_T1))
    a("s_waitcnt vmcnt(0)")
    a("s_cbranch_scc1 L_hv")
    a("buffer_load_dword %s, %s, %s, %s offen" % (vr(V_TMP + 1), vr(V_TMP), sr(SRD_X, 4), sr(S_T0)))
    a("s_branch L_hend")
    a.lab("L_hv")
    a("buffer_load_dword %s, %s, %s, %s offen" % (vr(V_TMP + 1), vr(V_TMP), sr(SRD_V, 4), sr(S_T0)))
    a("s_branch L_hend")
    a.lab("L_hq")
    a("s_sub_u32 %s, %s, 4" % (sr(S_T0), sr(S_WAVE)))
    a("s_lshl_b32 %s, %s, 3" % (sr(S_T0), sr(S_T0)))
    a("s_add_u32 %s, %s, %s" % (sr(S_T0), sr(S_T0), sr(S_I)))
    a("s_mul_i32 %s, %s, %d" % (sr(S_T0), sr(S_T0), 64 * 1280))
    a("s_waitcnt vmcnt(0)")
    a("s_barrier")
    a("buffer_load_dword %s, %s, %s, %s offen" % (vr(V_TMP + 2), vr(V_TMP), sr(SRD_Q, 4), sr(S_T0)))
    a("s_waitcnt vmcnt(0)")
    a("s_endpgm")
    a.lab("L_hend")
    a("s_waitcnt vmcnt(0)")
    a("s_barrier")
    a("s_endpgm")


V_TA = V_TMP + 5
V_TA2 = V_TMP + 6


def write_copies(d, tmp, n):
    imm = 32 + 1024 * n
    a("v_add_u32 %s, %d, %s" % (vr(V_TA2), imm + 2 * TCOPY, vr(V_TA)))
    for k in range(4):
        a("v_alignbit_b32 %s, %s, %s, 16" % (vr(tmp + k), vr(d + k + 1), vr(d + k)))
    for k in range(4):
        a("v_alignbit_b32 %s, %s, %s, 16" % (vr(tmp + 4 + k), vr(d + k + 2), vr(d + k + 1)))
    a("ds_write_b128 %s, %s offset:%d" % (vr(V_TA), vr(d, 4), imm))
    a("ds_write2_b32 %s, %s, %s offset0:0 offset1:1" % (vr(V_TA2), vr(d + 1), vr(d + 2)))
    a("ds_write2_b32 %s, %s, %s offset0:2 offset1:3" % (vr(V_TA2), vr(d + 3), vr(d + 4)))
    a("ds_write_b128 %s, %s offset:%d" % (vr(V_TA), vr(tmp, 4), imm + TCOPY))
    a("ds_write_b128 %s, %s offset:%d" % (vr(V_TA), vr(tmp + 4, 4), imm + 3 * TCOPY))


def write_head(d0, d1, tmp):
    for k in range(4):
        a("v_mov_b32 %s, 0" % vr(tmp + k))
    a("v_lshlrev_b32 %s, 16, %s" % (vr(tmp + 4), vr(d0)))
    a("v_alignbit_b32 %s, %s, %s, 16" % (vr(tmp + 5), vr(d1), vr(d0)))
    a("s_mov_b64 %s, exec" % sr(S_EX, 2))
    a("s_mov_b64 exec, 3")
    for s in range(4):
        a("ds_write_b128 %s, %s offset:%d" % (vr(V_TA), vr(tmp, 4), s * TCOPY))
    a("s_mov_b64 exec, 1")
    a("ds_write_b32 %s, %s offset:%d" % (vr(V_TA), vr(tmp + 4), TCOPY + 28))
    a("ds_write_b32 %s, %s offset:%d" % (vr(V_TA), vr(d0), 2 * TCOPY + 28))
    a("ds_write_b64 %s, %s offset:%d" % (vr(V_TA), vr(tmp + 4, 2), 3 * TCOPY + 24))
    a("s_mov_b64 exec, %s" % sr(S_EX, 2))


def tbase_addr():
    a("s_mul_i32 %s, %s, %d" % (sr(S_T0), sr(S_WAVE), TSZ))
    a("v_lshl_add_u32 %s, %s, 4, %s" % (vr(V_TA), vr(V_LANE), sr(S_T0)))


def d_load(ptr_idx):
    a("s_lshl_b32 %s, %s, 1" % (sr(S_T0), sr(S_CH0)))
    a("s_add_u32 %s, %s, %s" % (sr(S_T0 + 1), sr(PTR(ptr_idx)), sr(S_T0)))
    a("s_addc_u32 %s, %s, 0" % (sr(S_T0 + 2), sr(PTR(ptr_idx) + 1)))
    a("s_load_dwordx4 s[92:95], %s, 0" % sr(S_T0 + 1, 2))


def d_selectors():
    for c in range(8):
        src = 92 + (c >> 1)
        if c & 1:
            a("s_and_b32 %s, %s, 0xffff0000" % (sr(S_D + c), sr(src)))
        else:
            a("s_lshl_b32 %s, %s, 16" % (sr(S_D + c), sr(src)))


class VM:
    def __init__(self):
        self.q = []

    def issue(self, tag):
        self.q.append(tag)

    def wait(self, tag):
        idx = max(i for i, t in enumerate(self.q) if t == tag)
        return "s_waitcnt vmcnt(%d)" % (len(self.q) - 1 - idx)


RAW = [224, 224]
V_PA = 244
V_U = 42
UL = [42, 43, 44, 45, 46, 47, 252, 253]
V_Y = 244
def QA(p): return V_Q + 4 * (p & 1)
V_HA = V_TMP + 4


def unpack(dst, src, c):
    if c & 1:
        return "v_and_b32 %s, 0xffff0000, %s" % (vr(dst), vr(src))
    return "v_lshlrev_b32 %s, 16, %s" % (vr(dst), vr(src))


def raw_loads(p, vm):
    R = RAW[p & 1]
    out = []
    out.append("v_add_u32 %s, %d, %s" % (vr(V_HA), p * 512 * 1280 - 3 * 1280, vr(V_IN)))
    out.append("s_mov_b64 exec, 1")
    for j in range(3):
        out.append("buffer_load_dwordx4 %s, %s, %s, 0 offen offset:%d" % (vr(R + 4 * j, 4), vr(V_HA), sr(SRD_X, 4), 1280 * j))
        vm.issue("raw%d" % p)
    out.append("s_mov_b64 exec, -1")
    out.append("buffer_load_dwordx4 %s, %s, %s, %s offen" % (vr(R + 12, 4), vr(V_IN), sr(SRD_X, 4), sin(p)))
    vm.issue("raw%d" % p)
    out.append("buffer_load_dwordx4 %s, %s, %s, %s offen" % (vr(R + 16, 4), vr(V_IN), sr(SRD_V, 4), sin(p)))
    vm.issue("raw%d" % p)
    return out


def prologue_math(p, vm):
    R = RAW[p & 1]
    out = [vm.wait("raw%d" % p)]
    for j in (2, 1, 0):
        for d in range(4):
            out.append("v_mov_b32_dpp %s, %s wave_shr:1 row_mask:0xf bank_mask:0xf" % (vr(R + 4 * j + d), vr(R + 4 * j + 4 + d)))
    VV = R + 16
    rnd = lambda x: "v_cvt_pk_bf16_f32 %s, 0, %s" % (vr(x), vr(x))
    for t in range(4):
        for c in range(8):
            out.append(unpack(UL[c], R + 4 * t + (c >> 1), c))
        w = lambda c: sr(S_W + 4 * c + 3 - t)
        if EXACT:
            if t == 0:
                for c in range(8):
                    out.append("v_mul_f32 %s, %s, %s" % (vr(V_PA + c), w(c), vr(UL[c])))
                for c in range(8):
                    out.append(rnd(V_PA + c))
            else:
                for c in range(8):
                    out.append("v_mul_f32 %s, %s, %s" % (vr(UL[c]), w(c), vr(UL[c])))
                for c in range(8):
                    out.append(rnd(UL[c]))
                for c in range(8):
                    out.append("v_add_f32 %s, %s, %s" % (vr(V_PA + c), vr(V_PA + c), vr(UL[c])))
                for c in range(8):
                    out.append(rnd(V_PA + c))
        else:
            for c in range(8):
                if t == 0:
                    out.append("v_mul_f32 %s, %s, %s" % (vr(V_PA + c), w(c), vr(UL[c])))
                else:
                    out.append("v_fmac_f32 %s, %s, %s" % (vr(V_PA + c), w(c), vr(UL[c])))
    for c in range(8):
        out.append(unpack(UL[c], VV + (c >> 1), c))
    for c in range(8):
        out.append("v_mul_f32 %s, %s, %s" % (vr(V_PA + c), vr(V_PA + c), vr(UL[c])))
    for d in range(4):
        out.append("v_cvt_pk_bf16_f32 %s, %s, %s" % (vr(V_X + 4 * p + d), vr(V_PA + 2 * d), vr(V_PA + 2 * d + 1)))
    return out


def p_writes(p, prev):
    out = []
    for c in range(8):
        off = c * PCH + (0 if prev else 1024 * (1 - (p & 1)))
        out.append("ds_write_b16%s %s, %s offset:%d" % ("_d16_hi" if c & 1 else "", vr(V_WP if prev else V_WM), vr(V_X + 4 * p + (c >> 1)), off))
    return out


def out_reads(p, Y):
    return ["ds_read_u16_d16_hi %s, %s offset:%d" % (vr(Y + c), vr(V_OR if c < 4 else V_OR2), (c & 3) * TSZ + (p >> 1) * TCOPY + 1024 * (p & 1)) for c in range(8)]


def YB(p): return V_Y if (p & 1) == 0 else RAW[0]


def epilogue_math(typ, p, vm):
    Y = YB(p)
    out = []
    rnd = lambda x: "v_cvt_pk_bf16_f32 %s, 0, %s" % (vr(x), vr(x))
    for c in range(8):
        out.append(unpack(UL[c], V_X + 4 * p + (c >> 1), c))
    out.append("@Y%d" % p)
    if EXACT:
        for c in range(8):
            out.append("v_mul_f32 %s, %s, %s" % (vr(UL[c]), sr(S_D + c), vr(UL[c])))
        for c in range(8):
            out.append(rnd(UL[c]))
        for c in range(8):
            out.append("v_add_f32 %s, %s, %s" % (vr(Y + c), vr(Y + c), vr(UL[c])))
        if typ == 0:
            for c in range(8):
                out.append(rnd(Y + c))
    else:
        for c in range(8):
            out.append("v_fmac_f32 %s, %s, %s" % (vr(Y + c), sr(S_D + c), vr(UL[c])))
    if typ == 0:
        out.append(vm.wait("q%d" % p))
        for c in range(8):
            out.append(unpack(UL[c], QA(p) + (c >> 1), c))
        for c in range(8):
            out.append("v_mul_f32 %s, %s, %s" % (vr(Y + c), vr(Y + c), vr(UL[c])))
    for d in range(4):
        out.append("v_cvt_pk_bf16_f32 %s, %s, %s" % (vr(Y + d), vr(Y + 2 * d), vr(Y + 2 * d + 1)))
    out.append("buffer_store_dwordx4 %s, %s, %s, %s offen" % (vr(Y, 4), vr(V_GO), sr(SRD_O, 4), sout(p)))
    vm.issue("st%d" % p)
    return out


def q_load(p, vm):
    vm.issue("q%d" % p)
    return "buffer_load_dwordx4 %s, %s, %s, %s offen" % (vr(QA(p), 4), vr(V_IN), sr(SRD_Q, 4), sin(p))


def path_A():
    vm = VM()
    a.c("================= path A : H3 =================")
    srd(SRD_X, PTR(1), 2048 * 1280)
    srd(SRD_V, PTR(2), 2048 * 1280)
    a("s_cmp_ge_u32 %s, 2" % sr(S_WAVE))
    a("s_cbranch_scc1 L_pfd")
    a("s_lshl_b32 %s, %s, 7" % (sr(S_T0), sr(S_I)))
    a("v_add_u32 %s, %s, v0" % (vr(V_TMP + 2), sr(S_T0)))
    a("v_mul_u32_u24 %s, 1280, %s" % (vr(V_TMP + 2), vr(V_TMP + 2)))
    a("s_lshl_b32 %s, %s, 7" % (sr(S_T1), sr(S_COL)))
    a("v_add_u32 %s, %s, %s" % (vr(V_TMP + 2), sr(S_T1), vr(V_TMP + 2)))
    a("buffer_load_dword %s, %s, %s, 0 offen" % (vr(V_TMP + 3), vr(V_TMP + 2), sr(SRD_X, 4)))
    a.lab("L_pfd")
    srd(SRD_Q, PTR(0), 2048 * 1280)
    a("s_add_u32 %s, %s, %s" % (sr(S_T0), sr(S_CH0), sr(S_WAVE)))
    a("s_lshl_b32 %s, %s, 12" % (sr(S_T0), sr(S_T0)))
    a("s_add_u32 %s, %s, %s" % (sr(SRD_T), sr(PTR(4)), sr(S_T0)))
    a("s_addc_u32 %s, %s, 0" % (sr(SRD_T + 1), sr(PTR(4) + 1)))
    a("s_and_b32 %s, %s, 0xffff" % (sr(SRD_T + 1), sr(SRD_T + 1)))
    a("s_mov_b32 %s, 4096" % sr(SRD_T + 2))
    a("s_mov_b32 %s, 0x00020000" % sr(SRD_T + 3))
    TD = V_TC
    a("v_lshlrev_b32 %s, 4, %s" % (vr(V_TMP), vr(V_LANE)))
    def t_load(n):
        a("buffer_load_dwordx4 %s, %s, %s, 0 offen offset:%d" % (vr(TD + 8 * n, 4), vr(V_TMP), sr(SRD_T, 4), 1024 * n))
        a("buffer_load_dwordx2 %s, %s, %s, 0 offen offset:%d" % (vr(TD + 8 * n + 4, 2), vr(V_TMP), sr(SRD_T, 4), 1024 * n + 16))
    t_load(0)
    t_load(1)
    a("s_lshl_b32 %s, %s, 3" % (sr(S_T0), sr(S_CH0)))
    a("s_add_u32 %s, %s, %s" % (sr(S_T0 + 1), sr(PTR(3)), sr(S_T0)))
    a("s_addc_u32 %s, %s, 0" % (sr(S_T0 + 2), sr(PTR(3) + 1)))
    a("s_load_dwordx16 s[20:35], %s, 0" % sr(S_T0 + 1, 2))
    d_load(5)
    tbase_addr()
    a("s_waitcnt lgkmcnt(0)")
    d_selectors()
    for c in range(8):
        for j in range(4):
            src = 20 + 2 * c + (j >> 1)
            dst = S_W + 4 * c + j
            if j & 1:
                a("s_and_b32 %s, %s, 0xffff0000" % (sr(dst), sr(src)))
            else:
                a("s_lshl_b32 %s, %s, 16" % (sr(dst), sr(src)))
    step_offsets()
    RAW[1] = V_PF
    a("s_waitcnt vmcnt(0)")
    stamp_n(1)
    a("s_barrier")
    t_load(2)
    t_load(3)
    for s_ in raw_loads(0, vm):
        a(s_)
    write_head(TD, TD + 1, V_ACC)
    for n in range(2):
        write_copies(TD + 8 * n, V_ACC + 8 + 8 * (n & 1), n)
    for s_ in raw_loads(1, vm):
        a(s_)
    stamp_n(2)
    a("s_waitcnt vmcnt(10)")
    for n in range(2, 4):
        write_copies(TD + 8 * n, V_ACC + 8 + 8 * (n & 1), n)
    stamp_n(3)
    for s_ in prologue_math(0, vm):
        a(s_)
    for s_ in raw_loads(2, vm):
        a(s_)
    for s_ in prologue_math(1, vm):
        a(s_)
    RAW[1] = RAW[0]
    stamp_n(4)
    conv(0, vm)


def cmul(d, x, y):
    a("v_pk_mul_f32 %s, %s, %s op_sel_hi:[1,0]" % (vr(d, 2), vr(x, 2), vr(y, 2)))
    a("v_pk_fma_f32 %s, %s, %s, %s op_sel:[1,1,0] op_sel_hi:[0,1,1] neg_lo:[1,0,0]" % (vr(d, 2), vr(x, 2), vr(y, 2), vr(d, 2)))


def path_B():
    vm = VM()
    a.lab("L_pathB")
    a.c("================= path B : S4D =================")
    srd(SRD_X, PTR(6), 2048 * 1280)
    PRM = 236
    a("s_add_u32 %s, %s, %s" % (sr(S_T0), sr(S_CH0), sr(S_WAVE)))
    a("s_lshl_b32 %s, %s, 8" % (sr(S_T1), sr(S_T0)))
    a("v_lshl_add_u32 %s, %s, 2, %s" % (vr(V_TMP), vr(V_LANE), sr(S_T1)))
    for k in range(6):
        a("global_load_dword %s, %s, %s" % (vr(PRM + k), vr(V_TMP), sr(PTR(7 + k), 2)))
    a("s_lshl_b32 %s, %s, 1" % (sr(S_T1), sr(S_T0)))
    a("s_and_b32 %s, %s, -4" % (sr(S_T1), sr(S_T1)))
    a("s_add_u32 %s, %s, %s" % (sr(S_W), sr(PTR(13)), sr(S_T1)))
    a("s_addc_u32 %s, %s, 0" % (sr(S_W + 1), sr(PTR(13) + 1)))
    a("s_load_dword %s, %s, 0" % (sr(S_W + 2), sr(S_W, 2)))
    a("s_and_b32 %s, %s, 1" % (sr(S_W + 4), sr(S_T0)))
    d_load(14)
    a("s_lshl_b32 %s, %s, 8" % (sr(S_T1), sr(S_WAVE)))
    a("s_lshl_b32 %s, %s, 5" % (sr(S_T2), sr(S_I)))
    a("s_add_u32 %s, %s, %s" % (sr(S_T1), sr(S_T1), sr(S_T2)))
    a("v_and_b32 %s, 31, %s" % (vr(V_TMP + 2), vr(V_LANE)))
    a("v_add_u32 %s, %s, %s" % (vr(V_TMP + 2), sr(S_T1), vr(V_TMP + 2)))
    a("v_mul_u32_u24 %s, 1280, %s" % (vr(V_TMP + 2), vr(V_TMP + 2)))
    a("s_lshl_b32 %s, %s, 7" % (sr(S_T1), sr(S_COL)))
    a("v_add_u32 %s, %s, %s" % (vr(V_TMP + 2), sr(S_T1), vr(V_TMP + 2)))
    a("buffer_load_dword %s, %s, %s, 0 offen" % (vr(V_TMP + 4), vr(V_TMP + 2), sr(SRD_X, 4)))
    a("s_waitcnt lgkmcnt(0)")
    a("s_lshl_b32 %s, %s, 16" % (sr(S_W + 3), sr(S_W + 2)))
    a("s_and_b32 %s, %s, 0xffff0000" % (sr(S_W + 2), sr(S_W + 2)))
    a("s_cmp_eq_u32 %s, 1" % sr(S_W + 4))
    a("s_cselect_b32 %s, %s, %s" % (sr(S_W + 2), sr(S_W + 2), sr(S_W + 3)))
    d_selectors()
    step_offsets()
    DT = 242
    a("v_mov_b32 %s, 0x3fb8aa3b" % vr(DT))
    a("v_mul_f32 %s, %s, %s" % (vr(DT), sr(S_W + 2), vr(DT)))
    a("v_exp_f32 %s, %s" % (vr(DT), vr(DT)))
    AW = V_TMP + 1
    AR = V_TMP + 2
    a("s_mul_i32 %s, %s, %d" % (sr(S_T0), sr(S_WAVE), TSZ))
    a("v_cvt_pk_bf16_f32 %s, 0, %s" % (vr(DT), vr(DT)))
    a("v_lshl_add_u32 %s, %s, 3, %s" % (vr(AW), vr(V_LANE), sr(S_T0)))
    a("v_and_b32 %s, 15, %s" % (vr(AR), vr(V_LANE)))
    a("v_mul_u32_u24 %s, %d, %s" % (vr(AR), LROW, vr(AR)))
    a("v_lshrrev_b32 %s, 4, %s" % (vr(V_TMP + 3), vr(V_LANE)))
    a("v_lshl_add_u32 %s, %s, 4, %s" % (vr(AR), vr(V_TMP + 3), vr(AR)))
    a("v_add_u32 %s, %s, %s" % (vr(AR), sr(S_T0), vr(AR)))
    M = [V_S, V_S + 46]
    def AR2(m): return M[m]
    def AI2(m): return M[m] + 1
    def Wv(m): return M[m] + 2
    def Ep(m, phi): return M[m] + 4 + 2 * (phi - 1)
    def Rr(m, j): return M[m] + 18 + 2 * (j - 1)
    def E128(m): return M[m] + 34
    def G(m, i): return M[m] + 36 + 2 * (i & 1)
    def TA(m, n): return M[m] + 40 + 2 * (n % 3)
    CV = V_ACC + 16
    FRB = V_TC
    FRA = V_TC + 32
    FRC = V_S + 4
    KACC = V_ACC
    stamp_n(1)
    a("s_waitcnt vmcnt(1)")
    stamp_n(2)
    for m in range(2):
        def un(dst, src):
            if m == 0:
                a("v_lshlrev_b32 %s, 16, %s" % (vr(dst), vr(src)))
            else:
                a("v_and_b32 %s, 0xffff0000, %s" % (vr(dst), vr(src)))
        un(AR2(m), PRM + 0)
        un(AI2(m), PRM + 1)
        un(TA(m, 0), PRM + 2)
        un(TA(m, 0) + 1, PRM + 3)
        un(TA(m, 1), PRM + 4)
        un(TA(m, 1) + 1, PRM + 5)
    for m in range(2):
        a("v_mul_f32 %s, %s, %s" % (vr(AR2(m)), vr(DT), vr(AR2(m))))
        a("v_mul_f32 %s, %s, %s" % (vr(AI2(m)), vr(DT), vr(AI2(m))))
        a("v_mul_f32 %s, 0x3fb8aa3b, %s" % (vr(AR2(m)), vr(AR2(m))))
        a("v_mul_f32 %s, 0.15915494, %s" % (vr(AI2(m)), vr(AI2(m))))
        a("v_mul_f32 %s, %s, %s" % (vr(TA(m, 0)), vr(DT), vr(TA(m, 0))))
        a("v_mul_f32 %s, %s, %s" % (vr(TA(m, 0) + 1), vr(DT), vr(TA(m, 0) + 1)))
        cmul(Wv(m), TA(m, 1), TA(m, 0))
    mx = CV
    a("v_max_f32 %s, |%s|, |%s|" % (vr(mx), vr(Wv(0)), vr(Wv(0) + 1)))
    a("v_max3_f32 %s, |%s|, |%s|, %s" % (vr(mx), vr(Wv(1)), vr(Wv(1) + 1), vr(mx)))
    dpp = ["row_shr:1 row_mask:0xf", "row_shr:2 row_mask:0xf", "row_shr:4 row_mask:0xf", "row_shr:8 row_mask:0xf", "row_bcast:15 row_mask:0xa", "row_bcast:31 row_mask:0xc"]
    k = 0
    for x, lit in ((1, "1.0"), (8, "0x41000000"), (128, "0x43000000")):
        for m in range(2):
            dst = Ep(m, 1) if x == 1 else Rr(m, 1) if x == 8 else E128(m)
            t = TA(m, 0)
            a("v_mul_f32 %s, %s, %s" % (vr(t), lit, vr(AR2(m))))
            a("v_mul_f32 %s, %s, %s" % (vr(t + 1), lit, vr(AI2(m))))
            a("v_max_f32_dpp %s, %s, %s %s bank_mask:0xf" % (vr(mx), vr(mx), vr(mx), dpp[k])); k += 1
            a("v_exp_f32 %s, %s" % (vr(t), vr(t)))
            a("v_fract_f32 %s, %s" % (vr(t + 1), vr(t + 1)))
            a("v_cos_f32 %s, %s" % (vr(t + 2), vr(t + 1)))
            a("v_sin_f32 %s, %s" % (vr(t + 3), vr(t + 1)))
            a("s_nop 0")
            a("v_mul_f32 %s, %s, %s" % (vr(dst), vr(t), vr(t + 2)))
            a("v_mul_f32 %s, %s, %s" % (vr(dst + 1), vr(t), vr(t + 3)))
    a("v_readlane_b32 %s, %s, 63" % (sr(S_SC), vr(mx)))
    cvi = [0]
    def put(off, p0, p1, neg):
        c = CV + 2 * (cvi[0] & 3); cvi[0] += 1
        n = "-" if neg else ""
        a("v_cvt_pk_f16_f32 %s, %s, %s%s" % (vr(c), vr(p0), n, vr(p0 + 1)))
        a("v_cvt_pk_f16_f32 %s, %s, %s%s" % (vr(c + 1), vr(p1), n, vr(p1 + 1)))
        a("ds_write_b64 %s, %s offset:%d" % (vr(AW), vr(c, 2), off))
    a("v_mov_b32 %s, 0x3c00" % vr(CV + 6))
    a("v_mov_b32 %s, 0x3c00" % vr(CV + 7))
    a("ds_write_b64 %s, %s offset:0" % (vr(AW), vr(CV + 6, 2)))
    a("s_and_b32 %s, %s, 0x7f800000" % (sr(S_SC), sr(S_SC)))
    a("s_sub_u32 %s, 0x7f000000, %s" % (sr(S_T0), sr(S_SC)))
    for m in range(2):
        a("v_mul_f32 %s, %s, %s" % (vr(Wv(m)), sr(S_T0), vr(Wv(m))))
        a("v_mul_f32 %s, %s, %s" % (vr(Wv(m) + 1), sr(S_T0), vr(Wv(m) + 1)))
    put(LROW, Rr(0, 1), Rr(1, 1), True)
    for j in range(2, 9):
        for m in range(2):
            cmul(Rr(m, j), Rr(m, j // 2), Rr(m, j - j // 2))
        put(j * LROW, Rr(0, j), Rr(1, j), True)
    for j in range(9, 16):
        for m in range(2):
            cmul(TA(m, j), Rr(m, 8), Rr(m, j - 8))
        put(j * LROW, TA(0, j), TA(1, j), True)
    for phi in range(2, 8):
        for m in range(2):
            cmul(Ep(m, phi), Ep(m, phi // 2), Ep(m, phi - phi // 2))
    def lrow_off(row):
        return (KBUF if (row >> 4) != 1 else 0) + (row & 15) * LROW
    cur = [Wv(0), Wv(1)]
    tn = [0]
    for i in range(17):
        if i < 2:
            rows = [(8 * i + phi, phi) for phi in range(8)]
        elif i < 4:
            rows = [(16 + 4 * (i - 2) + f, 2 * f) for f in range(4)]
        elif i < 8:
            rows = [(24 + 2 * (i - 4) + f, 4 * f) for f in range(2)]
        else:
            rows = [(32 + (i - 8), 0)]
        if i == 2:
            a("s_waitcnt lgkmcnt(0)")
            for kp in range(8):
                a("ds_read_b128 %s, %s offset:%d" % (vr(FRB + 4 * kp, 4), vr(AR), 64 * kp))
            for kp in range(8):
                a("ds_read_b128 %s, %s offset:%d" % (vr(FRA + 4 * kp, 4), vr(AR), KBUF + 64 * kp))
        if i in UAT:
            p = UAT.index(i)
            if p == 0:
                a("s_waitcnt vmcnt(0)")
            a("buffer_load_dwordx4 %s, %s, %s, %s offen" % (vr(V_X + 4 * p, 4), vr(V_IN), sr(SRD_X, 4), sin(p)))
            vm.issue("u%d" % p)
        nxt = [G(0, i), G(1, i)]
        if i < 16:
            for m in range(2):
                cmul(nxt[m], cur[m], E128(m))
        if i == 2:
            a("s_waitcnt lgkmcnt(0)")
        for n, (row, phi) in enumerate(rows):
            if phi == 0:
                put(lrow_off(row), cur[0], cur[1], False)
            else:
                for m in range(2):
                    cmul(TA(m, tn[0]), cur[m], Ep(m, phi))
                put(lrow_off(row), TA(0, tn[0]), TA(1, tn[0]), False)
                tn[0] += 1
            if 16 <= row < 24:
                kp = row - 16
                a("v_mfma_f32_16x16x32_f16 %s, %s, %s, %s" % (vr(KACC, 4), vr(FRA + 4 * kp, 4), vr(FRB + 4 * kp, 4), "0" if kp == 0 else vr(KACC, 4)))
        cur = nxt
    a("s_waitcnt lgkmcnt(0)")
    for kp in range(8):
        a("ds_read_b128 %s, %s offset:%d" % (vr(FRA + 4 * kp, 4), vr(AR), 64 * kp))
    for kp in range(8):
        a("ds_read_b128 %s, %s offset:%d" % (vr(FRC + 4 * kp, 4), vr(AR), KBUF + 64 * kp))
    j, g = V_TMP, V_TMP + 3
    A0, A1, A1b, A2 = V_S, V_S + 1, V_S + 2, V_S + 3
    a("v_and_b32 %s, 15, %s" % (vr(j), vr(V_LANE)))
    a("s_mul_i32 %s, %s, %d" % (sr(S_T1), sr(S_WAVE), TSZ))
    a("v_lshrrev_b32 %s, 1, %s" % (vr(A0), vr(g)))
    a("v_lshlrev_b32 %s, 7, %s" % (vr(A0), vr(A0)))
    a("v_and_b32 %s, 1, %s" % (vr(A1), vr(g)))
    a("v_lshl_add_u32 %s, %s, 2, %s" % (vr(A0), vr(A1), vr(A0)))
    a("v_lshl_add_u32 %s, %s, 3, %s" % (vr(A0), vr(j), vr(A0)))
    a("v_lshl_add_u32 %s, %s, 1, %s" % (vr(A0), vr(A0), sr(S_T1)))
    a("v_lshlrev_b32 %s, 6, %s" % (vr(A2), vr(g)))
    a("v_cmp_gt_u32 vcc, 2, %s" % vr(g))
    a("v_lshlrev_b32 %s, 2, %s" % (vr(A1), vr(j)))
    a("v_lshlrev_b32 %s, 1, %s" % (vr(A1b), vr(j)))
    a("v_cndmask_b32 %s, %s, %s, vcc" % (vr(A1), vr(A1b), vr(A1)))
    a("s_waitcnt lgkmcnt(8)")
    for kp in range(8):
        a("v_mfma_f32_16x16x32_f16 %s, %s, %s, %s" % (vr(KACC + 4, 4), vr(FRA + 4 * kp, 4), vr(FRB + 4 * kp, 4), "0" if kp == 0 else vr(KACC + 4, 4)))
    a("s_waitcnt lgkmcnt(0)")
    for kp in range(8):
        a("v_mfma_f32_16x16x32_f16 %s, %s, %s, %s" % (vr(KACC + 8, 4), vr(FRC + 4 * kp, 4), vr(FRB + 4 * kp, 4), "0" if kp == 0 else vr(KACC + 8, 4)))
    a("v_add_u32 %s, %s, %s" % (vr(A1), vr(A1), vr(A2)))
    a("v_add_u32 %s, 256, %s" % (vr(A1), vr(A1)))
    a("v_mov_b32 %s, 32" % vr(A1b))
    a("v_cndmask_b32 %s, %s, 2, vcc" % (vr(A1b), vr(A1b)))
    a("v_add_u32 %s, %s, %s" % (vr(A1b), vr(A1b), vr(A1)))
    a("v_lshl_add_u32 %s, %s, 1, %s" % (vr(A1), vr(A1), sr(S_T1)))
    a("v_lshl_add_u32 %s, %s, 1, %s" % (vr(A1b), vr(A1b), sr(S_T1)))
    a("v_add3_u32 %s, %s, %s, %s" % (vr(A2), vr(A2), vr(j), "64"))
    a("v_add_u32 %s, 448, %s" % (vr(A2), vr(A2)))
    a("v_lshl_add_u32 %s, %s, 1, %s" % (vr(A2), vr(A2), sr(S_T1)))
    stamp_n(3)
    for k in range(12):
        a("v_mul_f32 %s, %s, %s" % (vr(KACC + k), sr(S_SC), vr(KACC + k)))
    pk = KACC + 12
    for k in range(6):
        a("v_cvt_pk_bf16_f32 %s, %s, %s" % (vr(pk + k), vr(KACC + 2 * k), vr(KACC + 2 * k + 1)))
    a("ds_write_b64 %s, %s offset:0" % (vr(A0), vr(pk, 2)))
    a("ds_write_b32 %s, %s offset:0" % (vr(A1), vr(pk + 2)))
    a("ds_write_b32 %s, %s offset:0" % (vr(A1b), vr(pk + 3)))
    a("ds_write_b16 %s, %s offset:0" % (vr(A2), vr(pk + 4)))
    a("ds_write_b16_d16_hi %s, %s offset:32" % (vr(A2), vr(pk + 4)))
    a("ds_write_b16 %s, %s offset:64" % (vr(A2), vr(pk + 5)))
    a("ds_write_b16_d16_hi %s, %s offset:96" % (vr(A2), vr(pk + 5)))
    a.c("---- expand the staircase into the four shifted copies ----")
    tbase_addr()
    D = V_TC
    H = V_TC + 32
    a("v_lshl_add_u32 %s, %s, 4, %s" % (vr(V_TMP), vr(V_LANE), sr(S_T1)))
    a("v_lshl_add_u32 %s, %s, 3, %s" % (vr(V_TMP + 1), vr(V_LANE), sr(S_T1)))
    a("v_lshl_add_u32 %s, %s, 2, %s" % (vr(V_TMP + 2), vr(V_LANE), sr(S_T1)))
    a("v_lshl_add_u32 %s, %s, 1, %s" % (vr(V_TMP + 3), vr(V_LANE), sr(S_T1)))
    a("s_mov_b32 %s, 0x01000100" % sr(S_K0))
    a("s_mov_b32 %s, 0x03020302" % sr(S_K1))
    a("s_waitcnt lgkmcnt(0)")
    a("ds_read_b128 %s, %s" % (vr(D, 4), vr(V_TMP)))
    a("ds_read_b64 %s, %s offset:16" % (vr(D + 4, 2), vr(V_TMP)))
    a("ds_read_b64 %s, %s offset:256" % (vr(H, 2), vr(V_TMP + 1)))
    a("ds_read_b32 %s, %s offset:264" % (vr(H + 2), vr(V_TMP + 1)))
    a("ds_read_b32 %s, %s offset:%d" % (vr(H + 4), vr(V_TMP + 2), 2 * 384))
    a("ds_read_b32 %s, %s offset:%d" % (vr(H + 5), vr(V_TMP + 2), 2 * 384 + 4))
    for n in (2, 3):
        o = 2 * (512 + 64 * (n - 2))
        a("ds_read_u16 %s, %s offset:%d" % (vr(H + 6 + 2 * (n - 2)), vr(V_TMP + 3), o))
        a("ds_read_u16 %s, %s offset:%d" % (vr(H + 7 + 2 * (n - 2)), vr(V_TMP + 3), o + 2))
    a("v_and_b32 %s, 1, %s" % (vr(V_TMP), vr(V_LANE)))
    a("v_cmp_eq_u32 vcc, 0, %s" % vr(V_TMP))
    a("s_waitcnt lgkmcnt(0)")
    a("s_mov_b32 exec_hi, 0")
    a("s_mov_b32 exec_lo, 0x80000000")
    a("v_lshrrev_b32 %s, 16, %s" % (vr(D + 5), vr(D + 4)))
    a("v_perm_b32 %s, %s, %s, %s" % (vr(D + 4), vr(D + 4), vr(D + 4), sr(S_K0)))
    a("s_mov_b32 exec_lo, 0")
    a("s_mov_b32 exec_hi, -1")
    a("v_perm_b32 %s, %s, %s, %s" % (vr(D), vr(H), vr(H), sr(S_K0)))
    a("v_alignbit_b32 %s, %s, %s, 16" % (vr(D + 1), vr(H + 1), vr(H)))
    a("v_perm_b32 %s, %s, %s, %s" % (vr(D + 2), vr(H + 1), vr(H + 1), sr(S_K0)))
    a("v_alignbit_b32 %s, %s, %s, 16" % (vr(D + 3), vr(H + 2), vr(H + 1)))
    a("v_perm_b32 %s, %s, %s, %s" % (vr(D + 4), vr(H + 2), vr(H + 2), sr(S_K0)))
    a("v_lshrrev_b32 %s, 16, %s" % (vr(D + 5), vr(H + 2)))
    a("s_mov_b32 exec_hi, 0x80000000")
    a("v_mov_b32 %s, %s" % (vr(D + 5), vr(D + 4)))
    a("s_mov_b64 exec, -1")
    write_head(D, D + 1, V_S + 8)
    write_copies(D, V_S + 16, 0)
    D2 = D + 8
    a("v_perm_b32 %s, %s, %s, %s" % (vr(D2), vr(H + 4), vr(H + 4), sr(S_K0)))
    a("v_mov_b32 %s, %s" % (vr(D2 + 1), vr(H + 4)))
    a("v_perm_b32 %s, %s, %s, %s" % (vr(D2 + 2), vr(H + 4), vr(H + 4), sr(S_K1)))
    for k in (3, 4, 5):
        a("v_perm_b32 %s, %s, %s, %s" % (vr(D2 + k), vr(H + 5), vr(H + 5), sr(S_K0)))
    write_copies(D2, V_S + 24, 1)
    for n in (2, 3):
        D3 = D + 8 * n
        ra, rb_ = H + 6 + 2 * (n - 2), H + 7 + 2 * (n - 2)
        a("v_lshl_or_b32 %s, %s, 16, %s" % (vr(D3), vr(ra), vr(ra)))
        a("v_lshl_or_b32 %s, %s, 16, %s" % (vr(D3 + 1), vr(ra), vr(ra)))
        for k in (3, 4, 5):
            a("v_lshl_or_b32 %s, %s, 16, %s" % (vr(D3 + k), vr(rb_), vr(rb_)))
        a("v_cndmask_b32 %s, %s, %s, vcc" % (vr(ra), vr(rb_), vr(ra)))
        a("v_lshl_or_b32 %s, %s, 16, %s" % (vr(D3 + 2), vr(rb_), vr(ra)))
        write_copies(D3, V_S + 16 + 8 * (n & 1), n)
    stamp_n(4)
    a(vm.wait("u1"))
    conv(1, vm)


DELAY = [int(x) for x in os.environ.get("DELAY", "30,20").split(",")]
MBAR_R = int(os.environ.get("MBAR_R", "1"))


def conv(typ, vm):
    T = "AB"[typ]
    a.c("================= convolution (%s) =================" % T)

    def preg(r, d): return V_PF + 16 * (r & 1) + 4 * d

    def p_reads(s, r):
        return [("ds_read_b128 %s, %s offset:%d" % (vr(preg(r, d), 4), vr(V_P), 1536 - 512 * d + 64 * r), ("P", s, r, d)) for d in range(4)]

    def treg(r, u):
        return V_TC + 8 * r + 4 * u if u < 2 else V_TF + 24 * (r & 1) + 4 * (u - 2)

    def t_reads(s, r):
        out = []
        for u in range(0 if s == 0 else 2, 8 - 4 * s):
            for hh in range(2):
                out.append(("ds_read_b64 %s, %s offset:%d" % (vr(treg(r, u) + 2 * hh, 2), vr(V_T), 512 * u + 64 * r + 8 * hh), ("T", s, r, u, hh)))
        return out

    lq = []
    state = {"done": -1}

    def need(*tags):
        idx = -1
        for tag in tags:
            idxs = [i for i, t in enumerate(lq) if t == tag]
            if idxs:
                idx = max(idx, idxs[-1])
        if idx <= state["done"]:
            return
        n = len(lq) - 1 - idx
        a("s_waitcnt lgkmcnt(%d)" % min(n, 15))
        state["done"] = len(lq) - 1 - min(n, 15)

    def drain():
        a("s_waitcnt lgkmcnt(0)")
        state["done"] = len(lq) - 1

    def emit(s_, tag=None):
        if s_.startswith("@Y"):
            need(("Y", int(s_[2:]), 7))
            return
        a(s_)
        if s_.startswith("ds_"):
            lq.append(tag)

    def deposit(s):
        for d in range(4):
            acc = V_ACC + 4 * (4 * s + d)
            a("v_cvt_pk_bf16_f32 %s, %s, %s" % (vr(acc), vr(acc), vr(acc + 1)))
            a("v_cvt_pk_bf16_f32 %s, %s, %s" % (vr(acc + 1), vr(acc + 2), vr(acc + 3)))
            emit("ds_write_b64 %s, %s offset:%d" % (vr(V_O2), vr(acc, 2), s * TCOPY + 512 * d), "x")

    for p in (0, 1):
        for s_ in p_writes(p, False):
            emit(s_)
    a("v_mov_b32 %s, 0" % vr(V_ACC))
    a("v_mov_b32 %s, 0" % vr(V_ACC + 1))
    emit("ds_write_b64 %s, %s offset:2048" % (vr(V_O), vr(V_ACC, 2)))
    for s_, tg in t_reads(0, 0):
        emit(s_, tg)
    drain()
    stamp_n(5)
    a("s_barrier")

    touched = set()
    for s in range(2):
        a.c("---- step %d ----" % s)
        stamp_n(6 + 2 * s)
        for x in p_reads(s, 0):
            emit(*x)
        if s == 1:
            for p in (0, 1):
                for c, s_ in enumerate(out_reads(p, YB(p))):
                    emit(s_, ("Y", p, c))
        fill = []
        if s == 0:
            if typ == 0:
                fill += ["@S"] * DELAY[0]
                fill += prologue_math(2, vm)
                fill += raw_loads(3, vm)
                fill.append(q_load(0, vm))
                fill.append(q_load(1, vm))
                fill += ["@S"] * DELAY[1]
                fill += prologue_math(3, vm)
        else:
            fill += epilogue_math(typ, 0, vm)
            if typ == 0:
                fill.append(q_load(2, vm))
            fill += epilogue_math(typ, 1, vm)
            if typ == 0:
                fill.append(q_load(3, vm))
        fi = 0
        ms = [(u + 4 * s + d, u, d) for u in range(8 - 4 * s) for d in range(4) if u + 4 * s + d <= 7]
        for r in range(8):
            if r < 7:
                nxt = p_reads(s, r + 1) + t_reads(s, r + 1)
            else:
                nxt = t_reads(1, 0) if s == 0 else []
            for i, (c, u, d) in enumerate(ms):
                acc = V_ACC + 4 * c
                src = vr(acc, 4) if c in touched else "0"
                touched.add(c)
                need(("P", s, r, d), ("T", s, r, u, 1))
                a("v_mfma_f32_16x16x32_bf16 %s, %s, %s, %s" % (vr(acc, 4), vr(treg(r, u), 4), vr(preg(r, d), 4), src))
                if i < len(nxt):
                    emit(*nxt[i])
                n = 0
                while fi < len(fill) and (n < FILL or fill[fi - 1].startswith("s_mov_b64 exec, 1") or (fill[fi - 1].startswith("buffer_load") and V_HA_STR in fill[fi - 1])):
                    if fill[fi] == "@S":
                        fi += 1
                        break
                    emit(fill[fi], "x"); fi += 1; n += 1
                if r == 7 and s == 0 and i == 21:
                    deposit(0)
        while fi < len(fill):
            if fill[fi] != "@S":
                emit(fill[fi], "x")
            fi += 1
        stamp_n(7 + 2 * s)
        if s == 1:
            a("s_nop 7")
            a("s_nop 1")
            deposit(1)
        elif typ == 1:
            a(vm.wait("u3"))
        drain()
        a("s_barrier")
        if s == 0:
            for p in (2, 3):
                for s_ in p_writes(p, False):
                    emit(s_)
            for s_ in p_writes(1, True):
                emit(s_)
            drain()
            a("s_barrier")
    stamp_n(14)
    for p in (2, 3):
        for c, s_ in enumerate(out_reads(p, YB(p))):
            emit(s_, ("Y", p, c))
    for p in (2, 3):
        for s_ in epilogue_math(typ, p, vm):
            emit(s_, "x")
    stamp_dump()
    a("s_endpgm")


V_HA_STR = ", v%d, " % V_HA

header()
prologue_common()
path_A()
path_B()
helper()
footer()
out = sys.argv[1] if len(sys.argv) > 1 else "concat_heads__ssm_conv_h3__ssm_conv_s4__prompt.s"
open(out, "w").write(a.text())
print("wrote", out, len(a.l), "lines")
```

```python
import os
import sys

NAME = "concat_heads__ssm_conv_h3__ssm_conv_s4__prompt_kernel"
MODE = sys.argv[2] if len(sys.argv) > 2 else ""
STAMPS = MODE in ("stamps", "dbgt")
EXACT = int(os.environ.get("EXACT", "1"))
UAT = [int(x) for x in os.environ.get("UAT", "8,11,14,16").split(",")]
TORDER = int(os.environ.get("TORDER", "0"))
CODEPF = int(os.environ.get("CODEPF", "0"))
SPREAD = int(os.environ.get("SPREAD", "1"))
RPM = int(os.environ.get("RPM", "2"))
FILL = int(os.environ.get("FILL", "2"))

TCOPY = 4160
TSZ = 16896
P0 = 8 * TSZ
PCH = 2560
LDS_TOTAL = P0 + 8 * PCH
OUTOFF = 3136
LROW = 528
KBUF = 16 * LROW


class A:
    def __init__(self):
        self.l = []

    def __call__(self, s):
        self.l.append("    " + s)

    def lab(self, s):
        self.l.append(s + ":")

    def c(self, s):
        self.l.append("    ; " + s)

    def text(self):
        return "\n".join(self.l) + "\n"


def vr(b, n=1):
    return "v%d" % b if n == 1 else "v[%d:%d]" % (b, b + n - 1)


def sr(b, n=1):
    return "s%d" % b if n == 1 else "s[%d:%d]" % (b, b + n - 1)


a = A()

S_TYPE = 3
S_PTR = 4
def PTR(i): return S_PTR + 2 * i
S_WAVE = 40
S_COL = 41
S_I = 42
S_CH0 = 43
SRD_X = 44
SRD_V = 48
SRD_Q = 52
SRD_T = 56
SRD_O = 60
S_W = 64
S_D = 4
S_ONES = 96
S_HJ = 97
S_T0 = 99
S_T1 = 100
S_T2 = 101
S_EX = 20
S_SC = 22
S_IN1 = 23
S_OUT1 = 32
S_K0 = 26
S_K1 = 27

V_LANE = 1
V_T = 2
V_P = 3
V_O = 4
V_WM = 5
V_OR = 6
V_GO = 7
V_IN = 8
V_TMP = 9
V_WP = 255
V_X = 16
V_Q = 32
V_OR2 = 40
V_O2 = 41
V_ACC = 48
V_TC = 80
V_TF = 144
V_PF = 192
V_S = 144
V_ST = 254
NVGPR = 256


def stamp_n(n):
    if not STAMPS:
        return
    a("s_memrealtime s[36:37]")
    a("s_waitcnt lgkmcnt(0)")
    a("v_writelane_b32 %s, s36, %d" % (vr(V_ST), n))
    a("s_memtime s[36:37]")
    a("s_waitcnt lgkmcnt(0)")
    a("v_writelane_b32 %s, s36, %d" % (vr(V_ST), n + 16))


_dd = [0]
def stamp_dump():
    if not STAMPS:
        return
    a("s_waitcnt vmcnt(0)")
    stamp_n(15)
    if MODE == "dbgt":
        a("s_load_dwordx2 s[36:37], s[0:1], 128")
        a("s_cmp_lg_u32 %s, 0" % sr(S_WAVE))
        a("s_cbranch_scc1 L_end")
        a("s_cmp_lg_u32 s2, %d" % (0 if _dd[0] == 0 else 130))
        a("s_cbranch_scc1 L_end")
        for k, ln in enumerate((0, 1, 6, 15, 16, 17, 22, 31)):
            a("v_readlane_b32 s38, %s, %d" % (vr(V_ST), ln))
            a("s_nop 3")
            a("v_mov_b32 %s, s38" % vr(V_S + k))
        a("v_mov_b32 %s, %d" % (vr(V_ST + 1), 32 * _dd[0]))
        a("s_waitcnt lgkmcnt(0)")
        a("s_mov_b64 exec, 1")
        a("global_store_dwordx4 %s, %s, s[36:37]" % (vr(V_ST + 1), vr(V_S, 4)))
        a("global_store_dwordx4 %s, %s, s[36:37] offset:16" % (vr(V_ST + 1), vr(V_S + 4, 4)))
        _dd[0] += 1
        return
    a("s_load_dwordx2 s[36:37], s[0:1], 136")
    a("s_lshl_b32 s38, s2, 3")
    a("s_add_u32 s38, s38, %s" % sr(S_WAVE))
    a("s_lshl_b32 s38, s38, 8")
    a("v_lshl_add_u32 %s, %s, 2, s38" % (vr(V_ST + 1), vr(V_LANE)))
    a("s_waitcnt lgkmcnt(0)")
    a("global_store_dword %s, %s, s[36:37]" % (vr(V_ST + 1), vr(V_ST)))


def header():
    a.l.append("; fused H3 (shift-SSM * v -> long conv -> gate) and S4D (kernel generation + long conv), one launch")
    a.l.append("; @launch grid=(256,1,1) block=(512,1,1) lds=%d" % LDS_TOTAL)
    a.l.append('.amdgcn_target "amdgcn-amd-amdhsa--gfx950"')
    a.l.append(".text")
    a.l.append(".globl " + NAME)
    a.l.append(".p2align 8")
    a.l.append(".type %s,@function" % NAME)
    a.lab(NAME)


def footer():
    a.lab("L_end")
    a("s_endpgm")
    a.l.append('.section .rodata,"a"')
    a.l.append(".p2align 6")
    a.l.append(".amdhsa_kernel " + NAME)
    a.l.append("  .amdhsa_next_free_vgpr %d" % NVGPR)
    a.l.append("  .amdhsa_next_free_sgpr 102")
    a.l.append("  .amdhsa_accum_offset %d" % NVGPR)
    a.l.append("  .amdhsa_group_segment_fixed_size 0")
    a.l.append("  .amdhsa_kernarg_size 144")
    a.l.append("  .amdhsa_user_sgpr_count 2")
    a.l.append("  .amdhsa_user_sgpr_kernarg_segment_ptr 1")
    a.l.append("  .amdhsa_system_sgpr_workgroup_id_x 1")
    a.l.append(".end_amdhsa_kernel")


def srd(d, plo, nbytes):
    a("s_mov_b32 %s, %s" % (sr(d), sr(plo)))
    a("s_and_b32 %s, %s, 0xffff" % (sr(d + 1), sr(plo + 1)))
    a("s_mov_b32 %s, 0x%x" % (sr(d + 2), nbytes))
    a("s_mov_b32 %s, 0x00020000" % sr(d + 3))


SLOTS = [
    [0x00, 0x02, 0x04, 0x05, 0x06, 0x07, 0x08, 0x09],
    [0x01, 0x03, 0x22, 0x24, 0x26, 0x28, 0x2a, 0x2c],
    [0x20, 0x21, 0x23, 0x25, 0x27, 0x29, 0x2b, 0x2d],
    [0x40, 0x40, 0x30, 0x31, 0x32, 0x33, 0x2e, 0x2f],
]
HJOB = [
    [0, 0, 0, 0, 0, 0, 0, 0],
    [0, 0, 4 * 8 + 1, 5 * 8 + 1, 6 * 8 + 1, 7 * 8 + 1, 8 * 8 + 1, 9 * 8 + 1],
    [0 * 8 + 7, 2 * 8 + 7, 4 * 8 + 2, 5 * 8 + 2, 6 * 8 + 2, 7 * 8 + 2, 8 * 8 + 2, 9 * 8 + 2],
    [1 * 8 + 7, 3 * 8 + 7, 4 * 8 + 4, 5 * 8 + 4, 6 * 8 + 4, 7 * 8 + 4, 8 * 8 + 4, 9 * 8 + 4],
]


def prologue_common():
    a.c("---- decode workgroup -> (type, column, index) ----")
    a("s_cmp_ge_u32 s2, 256")
    a("s_cbranch_scc1 L_end")
    a("s_load_dwordx16 %s, s[0:1], 0" % sr(S_PTR, 16))
    a("s_load_dwordx16 %s, s[0:1], 64" % sr(S_PTR + 16, 16))
    if os.environ.get("BADMAP"):
        a("s_lshr_b32 %s, s2, 5" % sr(S_T0))
        a("s_and_b32 %s, s2, 31" % sr(S_T1))
    else:
        a("s_and_b32 %s, s2, 7" % sr(S_T0))
        a("s_lshr_b32 %s, s2, 3" % sr(S_T1))
    a("s_and_b32 %s, %s, 7" % (sr(S_I), sr(S_T1)))
    a("s_lshr_b32 %s, %s, 3" % (sr(S_T1), sr(S_T1)))
    def pk(t, lo): return sum(t[lo + i] << (8 * i) for i in range(4))
    a("s_and_b32 %s, %s, 3" % (sr(S_TYPE), sr(S_T0)))
    a("s_lshl_b32 %s, %s, 3" % (sr(S_TYPE), sr(S_TYPE)))
    for dst, tab in ((S_COL, SLOTS), (S_HJ, HJOB)):
        a("s_mov_b32 %s, 0x%x" % (sr(dst), pk(tab[0], 0)))
        a("s_mov_b32 %s, 0x%x" % (sr(S_T2), pk(tab[0], 4)))
        for k in (1, 2, 3):
            a("s_cmp_eq_u32 %s, %d" % (sr(S_T1), k))
            a("s_cselect_b32 %s, 0x%x, %s" % (sr(dst), pk(tab[k], 0), sr(dst)))
            a("s_cselect_b32 %s, 0x%x, %s" % (sr(S_T2), pk(tab[k], 4), sr(S_T2)))
        a("s_cmp_ge_u32 %s, 4" % sr(S_T0))
        a("s_cselect_b32 %s, %s, %s" % (sr(dst), sr(S_T2), sr(dst)))
        a("s_lshr_b32 %s, %s, %s" % (sr(dst), sr(dst), sr(S_TYPE)))
        a("s_and_b32 %s, %s, 0xff" % (sr(dst), sr(dst)))
    a("s_lshr_b32 %s, %s, 5" % (sr(S_TYPE), sr(S_COL)))
    a("s_and_b32 %s, %s, 31" % (sr(S_COL), sr(S_COL)))
    a("s_lshl_b32 %s, %s, 3" % (sr(S_CH0), sr(S_COL)))
    a("s_add_u32 %s, %s, %s" % (sr(S_CH0), sr(S_CH0), sr(S_I)))
    a("s_cmp_eq_u32 %s, 1" % sr(S_TYPE))
    a("s_cselect_b32 %s, 2, 3" % sr(S_T0))
    a("s_lshl_b32 %s, %s, %s" % (sr(S_CH0), sr(S_CH0), sr(S_T0)))
    if CODEPF:
        a("s_cmp_lg_u32 %s, 0" % sr(S_I))
        a("s_cbranch_scc1 L_pcs")
        a("s_getpc_b64 s[36:37]")
        a.lab("L_pc")
        a("v_lshlrev_b32 %s, 7, v0" % vr(V_TMP + 1))
        a("v_mov_b32 %s, s37" % vr(V_TMP + 4))
        a("v_min_u32 %s, L_end-L_pc, %s" % (vr(V_TMP + 1), vr(V_TMP + 1)))
        a("v_add_co_u32 %s, vcc, s36, %s" % (vr(V_TMP + 3), vr(V_TMP + 1)))
        a("s_nop 1")
        a("v_addc_co_u32 %s, vcc, 0, %s, vcc" % (vr(V_TMP + 4), vr(V_TMP + 4)))
        a("v_cmp_gt_u32 vcc, 256, v0")
        a("s_and_saveexec_b64 s[38:39], vcc")
        a("s_cbranch_execz L_pcd")
        a("global_load_dword %s, %s, off" % (vr(253), vr(V_TMP + 3, 2)))
        a.lab("L_pcd")
        a("s_mov_b64 exec, s[38:39]")
        a.lab("L_pcs")
    a("v_lshrrev_b32 %s, 6, v0" % vr(V_TMP))
    a("v_and_b32 %s, 63, v0" % vr(V_LANE))
    a("s_mov_b32 %s, 0x3f803f80" % sr(S_ONES))
    a("v_readfirstlane_b32 %s, %s" % (sr(S_WAVE), vr(V_TMP)))
    a("s_nop 3")
    a("s_cmp_eq_u32 %s, 0" % sr(S_TYPE))
    a("s_cbranch_scc1 L_addr")
    a("s_cmp_ge_u32 %s, 4" % sr(S_WAVE))
    a("s_cbranch_scc1 L_helper")
    a("s_cmp_eq_u32 %s, 2" % sr(S_TYPE))
    a("s_cbranch_scc1 L_end")
    a.lab("L_addr")
    a.c("---- per-lane addresses ----")
    t0, t1, t2, t3 = V_TMP, V_TMP + 1, V_TMP + 2, V_TMP + 3
    a("v_and_b32 %s, 15, %s" % (vr(t0), vr(V_LANE)))
    a("v_lshrrev_b32 %s, 4, %s" % (vr(t1), vr(V_LANE)))
    a("v_add_u32 %s, 1, %s" % (vr(t2), vr(t0)))
    a("v_and_b32 %s, 3, %s" % (vr(t3), vr(t2)))
    a("v_sub_u32 %s, %s, %s" % (vr(t2), vr(t2), vr(t3)))
    a("v_lshlrev_b32 %s, 1, %s" % (vr(t2), vr(t2)))
    a("v_mul_u32_u24 %s, %d, %s" % (vr(t3), TCOPY, vr(t3)))
    a("v_add_u32 %s, %s, %s" % (vr(t2), vr(t2), vr(t3)))
    a("v_lshl_add_u32 %s, %s, 4, %s" % (vr(t2), vr(t1), vr(t2)))
    a("s_mul_i32 %s, %s, %d" % (sr(S_T0), sr(S_WAVE), TSZ))
    a("v_add_u32 %s, %s, %s" % (vr(V_T), sr(S_T0), vr(t2)))
    a("s_mul_i32 %s, %s, %d" % (sr(S_T0), sr(S_WAVE), PCH))
    a("s_add_u32 %s, %s, %d" % (sr(S_T0), sr(S_T0), P0))
    a("v_lshlrev_b32 %s, 5, %s" % (vr(t2), vr(t0)))
    a("v_lshl_add_u32 %s, %s, 3, %s" % (vr(t3), vr(t1), vr(t2)))
    a("v_add_u32 %s, %s, %s" % (vr(V_O), sr(S_T0), vr(t3)))
    a("v_lshlrev_b32 %s, 4, %s" % (vr(t3), vr(t1)))
    a("v_sub_u32 %s, %s, %s" % (vr(t3), vr(t3), vr(t2)))
    a("s_add_u32 %s, %s, 480" % (sr(S_T0), sr(S_T0)))
    a("v_add_u32 %s, %s, %s" % (vr(V_P), sr(S_T0), vr(t3)))
    a("v_lshlrev_b32 %s, 1, v0" % vr(t0))
    a("v_sub_u32 %s, %d, %s" % (vr(V_WM), P0 + 1022, vr(t0)))
    a("v_add_u32 %s, %d, %s" % (vr(V_OR), OUTOFF, vr(t0)))
    a("v_add_u32 %s, %d, %s" % (vr(V_OR2), OUTOFF + 4 * TSZ, vr(t0)))
    a("s_mul_i32 %s, %s, %d" % (sr(S_T0), sr(S_WAVE), TSZ - PCH))
    a("s_sub_u32 %s, %s, %d" % (sr(S_T0), sr(S_T0), P0 - OUTOFF))
    a("v_add_u32 %s, %s, %s" % (vr(V_O2), sr(S_T0), vr(V_O)))
    a("v_and_b32 %s, 30, %s" % (vr(t2), vr(t0)))
    a("v_add_u32 %s, %d, %s" % (vr(t2), P0 + 2528, vr(t2)))
    a("v_add_u32 %s, 2048, %s" % (vr(V_WP), vr(V_WM)))
    a("v_cmp_gt_u32 vcc, 256, v0")
    a("s_lshl_b32 %s, %s, 1" % (sr(S_T1), sr(S_CH0)))
    a("v_mul_u32_u24 %s, 1280, v0" % vr(t1))
    a("v_cndmask_b32 %s, %s, %s, vcc" % (vr(V_WP), vr(V_WP), vr(t2)))
    a("v_add_u32 %s, %s, %s" % (vr(V_IN), sr(S_T1), vr(t1)))
    a("s_mul_i32 %s, %s, 1280" % (sr(S_T2), sr(S_TYPE)))
    a("s_add_u32 %s, %s, %s" % (sr(S_T2), sr(S_T2), sr(S_T1)))
    a("v_lshl_add_u32 %s, %s, 1, %s" % (vr(V_GO), vr(t1), sr(S_T2)))
    a("s_waitcnt lgkmcnt(0)")
    srd(SRD_O, PTR(15), 2048 * 2560)
    stamp_n(0)
    a("s_cmp_eq_u32 %s, 1" % sr(S_TYPE))
    a("s_cbranch_scc1 L_pathB")


def step_offsets():
    for p in (1, 2, 3):
        a("s_mov_b32 %s, %d" % (sr(S_IN1 + p - 1), p * 512 * 1280))
        a("s_mov_b32 %s, %d" % (sr(S_OUT1 + p - 1), p * 512 * 2560))


def sin(p): return "0" if p == 0 else sr(S_IN1 + p - 1)
def sout(p): return "0" if p == 0 else sr(S_OUT1 + p - 1)


PFULL = 4576
PB0 = 4 * TSZ
OB0 = PB0 + 4 * PFULL


def helper():
    a.lab("L_helper")
    a.c("================= waves 4..7 of B / helper workgroups: warm the L2 for an A column =================")
    W4 = S_WAVE
    a("s_sub_u32 %s, %s, 4" % (sr(W4), sr(S_WAVE)))
    a("v_subrev_u32 v0, 256, v0")
    a("s_waitcnt lgkmcnt(0)")
    srd(SRD_X, PTR(1), 2048 * 1280)
    srd(SRD_V, PTR(2), 2048 * 1280)
    srd(SRD_Q, PTR(0), 2048 * 1280)
    srd(SRD_T, PTR(4), 640 * 4096)
    a("s_lshr_b32 %s, %s, 3" % (sr(S_W), sr(S_HJ)))
    a("s_lshl_b32 %s, %s, 7" % (sr(S_T1), sr(S_W)))
    a("v_mul_u32_u24 %s, 1280, v0" % vr(V_TMP))
    a("v_add_u32 %s, %s, %s" % (vr(V_TMP), sr(S_T1), vr(V_TMP)))
    a("s_cmp_eq_u32 %s, 2" % sr(S_TYPE))
    a("s_cbranch_scc1 L_h0")
    a("s_barrier")
    a.lab("L_h0")
    a("s_bitcmp1_b32 %s, 0" % sr(S_HJ))
    a("s_cbranch_scc0 L_h2")
    a("s_cmp_ge_u32 %s, 2" % sr(W4))
    a("s_cbranch_scc1 L_h1t")
    a("s_mul_i32 %s, %s, %d" % (sr(S_T0), sr(S_I), 128 * 1280))
    a("buffer_load_dword %s, %s, %s, %s offen" % (vr(V_TMP + 1), vr(V_TMP), sr(SRD_V, 4), sr(S_T0)))
    a("s_branch L_h1e")
    a.lab("L_h1t")
    a("v_and_b32 %s, 15, v0" % vr(V_TMP + 2))
    a("v_bfe_u32 %s, v0, 4, 3" % vr(V_TMP + 3))
    a("v_lshlrev_b32 %s, 7, %s" % (vr(V_TMP + 2), vr(V_TMP + 2)))
    a("v_lshl_add_u32 %s, %s, 12, %s" % (vr(V_TMP + 2), vr(V_TMP + 3), vr(V_TMP + 2)))
    a("s_lshl_b32 %s, %s, 3" % (sr(S_T0), sr(S_W)))
    a("s_add_u32 %s, %s, %s" % (sr(S_T0), sr(S_T0), sr(S_I)))
    a("s_lshl_b32 %s, %s, 15" % (sr(S_T0), sr(S_T0)))
    a("buffer_load_dword %s, %s, %s, %s offen offset:2048" % (vr(V_TMP + 1), vr(V_TMP + 2), sr(SRD_T, 4), sr(S_T0)))
    a.lab("L_h1e")
    a("s_waitcnt vmcnt(0)")
    a.lab("L_h2")
    a("s_cmp_eq_u32 %s, 2" % sr(S_TYPE))
    a("s_cbranch_scc1 L_h2b")
    srd(SRD_O, PTR(6), 2048 * 1280)
    a("s_lshl_b32 %s, %s, 1" % (sr(S_T0), sr(S_CH0)))
    a("v_mul_u32_u24 %s, 1280, v0" % vr(V_IN))
    a("v_add_u32 %s, %s, %s" % (vr(V_IN), sr(S_T0), vr(V_IN)))
    a("s_mul_i32 %s, %s, %d" % (sr(S_T0), sr(S_I), 256 * 1280))
    a("buffer_load_dword %s, %s, %s, %s offen" % (vr(V_TMP + 1), vr(V_IN), sr(SRD_O, 4), sr(S_T0)))
    a("s_waitcnt vmcnt(0)")
    a.lab("L_h2b")
    a("s_bitcmp1_b32 %s, 1" % sr(S_HJ))
    a("s_cbranch_scc0 L_h3")
    a("s_lshr_b32 %s, %s, 1" % (sr(S_T0), sr(S_I)))
    a("s_add_u32 %s, %s, 4" % (sr(S_T0), sr(S_T0)))
    a("s_mul_i32 %s, %s, %d" % (sr(S_T0), sr(S_T0), 256 * 1280))
    a("s_bitcmp1_b32 %s, 0" % sr(S_I))
    a("s_cbranch_scc1 L_h2v")
    a("buffer_load_dword %s, %s, %s, %s offen" % (vr(V_TMP + 1), vr(V_TMP), sr(SRD_X, 4), sr(S_T0)))
    a("s_branch L_h2e")
    a.lab("L_h2v")
    a("buffer_load_dword %s, %s, %s, %s offen" % (vr(V_TMP + 1), vr(V_TMP), sr(SRD_V, 4), sr(S_T0)))
    a.lab("L_h2e")
    a("s_bitcmp1_b32 %s, 2" % sr(S_HJ))
    a("s_cbranch_scc0 L_h4")
    a("s_waitcnt vmcnt(0)")
    a.lab("L_h3")
    a("s_bitcmp1_b32 %s, 2" % sr(S_HJ))
    a("s_cbranch_scc0 L_h4")
    a("s_mul_i32 %s, %s, %d" % (sr(S_T0), sr(S_I), 256 * 1280))
    a("buffer_load_dword %s, %s, %s, %s offen" % (vr(V_TMP + 1), vr(V_TMP), sr(SRD_Q, 4), sr(S_T0)))
    a.lab("L_h4")
    a("s_cmp_eq_u32 %s, 2" % sr(S_TYPE))
    a("s_cbranch_scc1 L_end")
    a.c("================= B service waves: u in, y out =================")
    srd(SRD_X, PTR(6), 2048 * 1280)
    srd(SRD_O, PTR(15), 2048 * 2560)
    a("s_lshl_b32 %s, %s, 1" % (sr(S_T0), sr(S_CH0)))
    a("s_add_u32 %s, %s, %s" % (sr(S_T0 + 1), sr(PTR(14)), sr(S_T0)))
    a("s_addc_u32 %s, %s, 0" % (sr(S_T0 + 2), sr(PTR(14) + 1)))
    a("s_load_dwordx2 s[92:93], %s, 0" % sr(S_T0 + 1, 2))
    a("v_mul_u32_u24 %s, 1280, v0" % vr(V_TMP))
    a("v_add_u32 %s, %s, %s" % (vr(V_IN), sr(S_T0), vr(V_TMP)))
    a("s_add_u32 %s, %s, 1280" % (sr(S_T2), sr(S_T0)))
    a("v_lshl_add_u32 %s, %s, 1, %s" % (vr(V_GO), vr(V_TMP), sr(S_T2)))
    a("v_lshlrev_b32 %s, 1, v0" % vr(V_TMP + 2))
    a("v_sub_u32 %s, %d, %s" % (vr(V_WM), PB0 + 510, vr(V_TMP + 2)))
    a("v_add_u32 %s, %d, %s" % (vr(V_OR), OB0, vr(V_TMP + 2)))
    for e in range(1, 8):
        a("s_mov_b32 %s, %d" % (sr(S_W + e), e * 256 * 1280))
        a("s_mov_b32 %s, %d" % (sr(S_W + 8 + e), e * 256 * 2560))
    a("s_waitcnt lgkmcnt(0)")
    for c in range(4):
        if c & 1:
            a("s_and_b32 %s, %s, 0xffff0000" % (sr(S_D + c), sr(92 + (c >> 1))))
        else:
            a("s_lshl_b32 %s, %s, 16" % (sr(S_D + c), sr(92 + (c >> 1))))
    for e in range(8):
        a("buffer_load_dwordx2 %s, %s, %s, %s offen" % (vr(V_X + 2 * e, 2), vr(V_IN), sr(SRD_X, 4), "0" if e == 0 else sr(S_W + e)))
    for e in range(8):
        a("s_waitcnt vmcnt(%d)" % (7 - e))
        for c in range(4):
            a("ds_write_b16%s %s, %s offset:%d" % ("_d16_hi" if c & 1 else "", vr(V_WM), vr(V_X + 2 * e + (c >> 1)), c * PFULL + 512 * (7 - e)))
    U = 64
    for e in range(8):
        for c in range(4):
            a(unpack(U + 4 * e + c, V_X + 2 * e + (c >> 1), c))
    if EXACT:
        for k in range(32):
            a("v_mul_f32 %s, %s, %s" % (vr(U + k), sr(S_D + (k & 3)), vr(U + k)))
        for k in range(32):
            a("v_cvt_pk_bf16_f32 %s, 0, %s" % (vr(U + k), vr(U + k)))
    a("s_waitcnt lgkmcnt(0)")
    a("s_barrier")
    Y = 100
    for st in B_STEPS:
        a("s_barrier")
        for e in st:
            for c in range(4):
                a("ds_read_u16_d16_hi %s, %s offset:%d" % (vr(Y + 4 * e + c), vr(V_OR), c * 4096 + 512 * e))
        for n, e in enumerate(st):
            a("s_waitcnt lgkmcnt(%d)" % min(15, 4 * (len(st) - 1 - n)))
            for c in range(4):
                if EXACT:
                    a("v_add_f32 %s, %s, %s" % (vr(Y + 4 * e + c), vr(Y + 4 * e + c), vr(U + 4 * e + c)))
                else:
                    a("v_fmac_f32 %s, %s, %s" % (vr(Y + 4 * e + c), sr(S_D + c), vr(U + 4 * e + c)))
            a("v_cvt_pk_bf16_f32 %s, %s, %s" % (vr(Y + 4 * e), vr(Y + 4 * e), vr(Y + 4 * e + 1)))
            a("v_cvt_pk_bf16_f32 %s, %s, %s" % (vr(Y + 4 * e + 1), vr(Y + 4 * e + 2), vr(Y + 4 * e + 3)))
            a("buffer_store_dwordx2 %s, %s, %s, %s offen" % (vr(Y + 4 * e, 2), vr(V_GO), sr(SRD_O, 4), "0" if e == 0 else sr(S_W + 8 + e)))
    if STAMPS:
        a("s_add_u32 %s, %s, 4" % (sr(S_WAVE), sr(S_WAVE)))
    stamp_dump()
    a("s_endpgm")


B_STEPS = [[0, 1, 2, 3], [4, 5], [6, 7]]


V_TA = V_TMP + 5
V_TA2 = V_TMP + 6


def write_copies(d, tmp, n):
    imm = 32 + 1024 * n
    a("ds_write_b128 %s, %s offset:%d" % (vr(V_TA), vr(d, 4), imm))
    for k in range(4):
        a("v_alignbit_b32 %s, %s, %s, 16" % (vr(tmp + k), vr(d + k + 1), vr(d + k)))
    a("ds_write_b128 %s, %s offset:%d" % (vr(V_TA), vr(tmp, 4), imm + TCOPY))
    for k in range(4):
        a("v_mov_b32 %s, %s" % (vr(tmp + 8 + k), vr(d + k + 1)))
    a("ds_write_b128 %s, %s offset:%d" % (vr(V_TA), vr(tmp + 8, 4), imm + 2 * TCOPY))
    for k in range(4):
        a("v_alignbit_b32 %s, %s, %s, 16" % (vr(tmp + 4 + k), vr(d + k + 2), vr(d + k + 1)))
    a("ds_write_b128 %s, %s offset:%d" % (vr(V_TA), vr(tmp + 4, 4), imm + 3 * TCOPY))


def write_head(d0, d1, tmp):
    for k in range(4):
        a("v_mov_b32 %s, 0" % vr(tmp + k))
    a("v_lshlrev_b32 %s, 16, %s" % (vr(tmp + 4), vr(d0)))
    a("v_alignbit_b32 %s, %s, %s, 16" % (vr(tmp + 5), vr(d1), vr(d0)))
    a("s_mov_b64 %s, exec" % sr(S_EX, 2))
    a("s_mov_b64 exec, 3")
    for s in range(4):
        a("ds_write_b128 %s, %s offset:%d" % (vr(V_TA), vr(tmp, 4), s * TCOPY))
    a("s_mov_b64 exec, 1")
    a("ds_write_b32 %s, %s offset:%d" % (vr(V_TA), vr(tmp + 4), TCOPY + 28))
    a("ds_write_b32 %s, %s offset:%d" % (vr(V_TA), vr(d0), 2 * TCOPY + 28))
    a("ds_write_b64 %s, %s offset:%d" % (vr(V_TA), vr(tmp + 4, 2), 3 * TCOPY + 24))
    a("s_mov_b64 exec, %s" % sr(S_EX, 2))


def tbase_addr():
    a("s_mul_i32 %s, %s, %d" % (sr(S_T0), sr(S_WAVE), TSZ))
    a("v_lshl_add_u32 %s, %s, 4, %s" % (vr(V_TA), vr(V_LANE), sr(S_T0)))


def d_load(ptr_idx):
    a("s_lshl_b32 %s, %s, 1" % (sr(S_T0), sr(S_CH0)))
    a("s_add_u32 %s, %s, %s" % (sr(S_T0 + 1), sr(PTR(ptr_idx)), sr(S_T0)))
    a("s_addc_u32 %s, %s, 0" % (sr(S_T0 + 2), sr(PTR(ptr_idx) + 1)))
    a("s_load_dwordx4 s[92:95], %s, 0" % sr(S_T0 + 1, 2))


def d_selectors():
    for c in range(8):
        src = 92 + (c >> 1)
        if c & 1:
            a("s_and_b32 %s, %s, 0xffff0000" % (sr(S_D + c), sr(src)))
        else:
            a("s_lshl_b32 %s, %s, 16" % (sr(S_D + c), sr(src)))


class VM:
    def __init__(self):
        self.q = []

    def issue(self, tag):
        self.q.append(tag)

    def wait(self, tag):
        idx = max(i for i, t in enumerate(self.q) if t == tag)
        return "s_waitcnt vmcnt(%d)" % (len(self.q) - 1 - idx)


RAW = [224, 224]
V_PA = 244
V_U = 42
UL = [42, 43, 44, 45, 46, 47, 252, 253]
V_Y = 244
def QA(p): return V_Q + 4 * (p & 1)
V_HA = V_TMP + 4


def unpack(dst, src, c):
    if c & 1:
        return "v_and_b32 %s, 0xffff0000, %s" % (vr(dst), vr(src))
    return "v_lshlrev_b32 %s, 16, %s" % (vr(dst), vr(src))


def raw_loads(p, vm):
    R = RAW[p & 1]
    out = []
    out.append("v_add_u32 %s, %d, %s" % (vr(V_HA), p * 512 * 1280 - 3 * 1280, vr(V_IN)))
    out.append("s_mov_b64 exec, 1")
    for j in range(3):
        out.append("buffer_load_dwordx4 %s, %s, %s, 0 offen offset:%d" % (vr(R + 4 * j, 4), vr(V_HA), sr(SRD_X, 4), 1280 * j))
        vm.issue("raw%d" % p)
    out.append("s_mov_b64 exec, -1")
    out.append("buffer_load_dwordx4 %s, %s, %s, %s offen" % (vr(R + 12, 4), vr(V_IN), sr(SRD_X, 4), sin(p)))
    vm.issue("raw%d" % p)
    out.append("buffer_load_dwordx4 %s, %s, %s, %s offen" % (vr(R + 16, 4), vr(V_IN), sr(SRD_V, 4), sin(p)))
    vm.issue("raw%d" % p)
    return out


def prologue_math(p, vm):
    R = RAW[p & 1]
    out = [vm.wait("raw%d" % p)]
    for j in (2, 1, 0):
        for d in range(4):
            out.append("v_mov_b32_dpp %s, %s wave_shr:1 row_mask:0xf bank_mask:0xf" % (vr(R + 4 * j + d), vr(R + 4 * j + 4 + d)))
    VV = R + 16
    rnd = lambda x: "v_cvt_pk_bf16_f32 %s, 0, %s" % (vr(x), vr(x))
    for t in range(4):
        for c in range(8):
            out.append(unpack(UL[c], R + 4 * t + (c >> 1), c))
        w = lambda c: sr(S_W + 4 * c + 3 - t)
        if EXACT:
            if t == 0:
                for c in range(8):
                    out.append("v_mul_f32 %s, %s, %s" % (vr(V_PA + c), w(c), vr(UL[c])))
                for c in range(8):
                    out.append(rnd(V_PA + c))
            else:
                for c in range(8):
                    out.append("v_mul_f32 %s, %s, %s" % (vr(UL[c]), w(c), vr(UL[c])))
                for c in range(8):
                    out.append(rnd(UL[c]))
                for c in range(8):
                    out.append("v_add_f32 %s, %s, %s" % (vr(V_PA + c), vr(V_PA + c), vr(UL[c])))
                for c in range(8):
                    out.append(rnd(V_PA + c))
        else:
            for c in range(8):
                if t == 0:
                    out.append("v_mul_f32 %s, %s, %s" % (vr(V_PA + c), w(c), vr(UL[c])))
                else:
                    out.append("v_fmac_f32 %s, %s, %s" % (vr(V_PA + c), w(c), vr(UL[c])))
    for c in range(8):
        out.append(unpack(UL[c], VV + (c >> 1), c))
    for c in range(8):
        out.append("v_mul_f32 %s, %s, %s" % (vr(V_PA + c), vr(V_PA + c), vr(UL[c])))
    for d in range(4):
        out.append("v_cvt_pk_bf16_f32 %s, %s, %s" % (vr(V_X + 4 * p + d), vr(V_PA + 2 * d), vr(V_PA + 2 * d + 1)))
    return out


def p_writes(p, prev):
    out = []
    for c in range(8):
        off = c * PCH + (0 if prev else 1024 * (1 - (p & 1)))
        out.append("ds_write_b16%s %s, %s offset:%d" % ("_d16_hi" if c & 1 else "", vr(V_WP if prev else V_WM), vr(V_X + 4 * p + (c >> 1)), off))
    return out


def out_reads(p, Y):
    return ["ds_read_u16_d16_hi %s, %s offset:%d" % (vr(Y + c), vr(V_OR if c < 4 else V_OR2), (c & 3) * TSZ + p * TCOPY) for c in range(8)]


YREG = [0, 0]
def YB(p): return YREG[p & 1]


def epilogue_math(typ, p, vm):
    Y = YB(p)
    out = []
    rnd = lambda x: "v_cvt_pk_bf16_f32 %s, 0, %s" % (vr(x), vr(x))
    for c in range(8):
        out.append(unpack(UL[c], V_X + 4 * p + (c >> 1), c))
    out.append("@Y%d" % p)
    if EXACT:
        for c in range(8):
            out.append("v_mul_f32 %s, %s, %s" % (vr(UL[c]), sr(S_D + c), vr(UL[c])))
        for c in range(8):
            out.append(rnd(UL[c]))
        for c in range(8):
            out.append("v_add_f32 %s, %s, %s" % (vr(Y + c), vr(Y + c), vr(UL[c])))
        if typ == 0:
            for c in range(8):
                out.append(rnd(Y + c))
    else:
        for c in range(8):
            out.append("v_fmac_f32 %s, %s, %s" % (vr(Y + c), sr(S_D + c), vr(UL[c])))
    if typ == 0:
        out.append(vm.wait("q%d" % p))
        for c in range(8):
            out.append(unpack(UL[c], QA(p) + (c >> 1), c))
        for c in range(8):
            out.append("v_mul_f32 %s, %s, %s" % (vr(Y + c), vr(Y + c), vr(UL[c])))
    for d in range(4):
        out.append("v_cvt_pk_bf16_f32 %s, %s, %s" % (vr(Y + d), vr(Y + 2 * d), vr(Y + 2 * d + 1)))
    out.append("buffer_store_dwordx4 %s, %s, %s, %s offen" % (vr(Y, 4), vr(V_GO), sr(SRD_O, 4), sout(p)))
    vm.issue("st%d" % p)
    return out


def q_load(p, vm):
    vm.issue("q%d" % p)
    return "buffer_load_dwordx4 %s, %s, %s, %s offen" % (vr(QA(p), 4), vr(V_IN), sr(SRD_Q, 4), sin(p))


def path_A():
    vm = VM()
    a.c("================= path A : H3 =================")
    srd(SRD_X, PTR(1), 2048 * 1280)
    srd(SRD_V, PTR(2), 2048 * 1280)
    a("s_cmp_ge_u32 %s, 2" % sr(S_WAVE))
    a("s_cbranch_scc1 L_pfd")
    a("s_lshl_b32 %s, %s, 7" % (sr(S_T0), sr(S_I)))
    a("v_add_u32 %s, %s, v0" % (vr(V_TMP + 2), sr(S_T0)))
    a("v_mul_u32_u24 %s, 1280, %s" % (vr(V_TMP + 2), vr(V_TMP + 2)))
    a("s_lshl_b32 %s, %s, 7" % (sr(S_T1), sr(S_COL)))
    a("v_add_u32 %s, %s, %s" % (vr(V_TMP + 2), sr(S_T1), vr(V_TMP + 2)))
    a("buffer_load_dword %s, %s, %s, 0 offen" % (vr(V_TMP + 3), vr(V_TMP + 2), sr(SRD_X, 4)))
    a.lab("L_pfd")
    srd(SRD_Q, PTR(0), 2048 * 1280)
    a("s_add_u32 %s, %s, %s" % (sr(S_T0), sr(S_CH0), sr(S_WAVE)))
    a("s_lshl_b32 %s, %s, 12" % (sr(S_T0), sr(S_T0)))
    a("s_add_u32 %s, %s, %s" % (sr(SRD_T), sr(PTR(4)), sr(S_T0)))
    a("s_addc_u32 %s, %s, 0" % (sr(SRD_T + 1), sr(PTR(4) + 1)))
    a("s_and_b32 %s, %s, 0xffff" % (sr(SRD_T + 1), sr(SRD_T + 1)))
    a("s_mov_b32 %s, 4096" % sr(SRD_T + 2))
    a("s_mov_b32 %s, 0x00020000" % sr(SRD_T + 3))
    TD = V_TC
    a("v_lshlrev_b32 %s, 4, %s" % (vr(V_TMP), vr(V_LANE)))
    def t_load(n):
        a("buffer_load_dwordx4 %s, %s, %s, 0 offen offset:%d" % (vr(TD + 8 * n, 4), vr(V_TMP), sr(SRD_T, 4), 1024 * n))
        a("buffer_load_dwordx2 %s, %s, %s, 0 offen offset:%d" % (vr(TD + 8 * n + 4, 2), vr(V_TMP), sr(SRD_T, 4), 1024 * n + 16))
    t_load(0)
    t_load(1)
    a("s_lshl_b32 %s, %s, 3" % (sr(S_T0), sr(S_CH0)))
    a("s_add_u32 %s, %s, %s" % (sr(S_T0 + 1), sr(PTR(3)), sr(S_T0)))
    a("s_addc_u32 %s, %s, 0" % (sr(S_T0 + 2), sr(PTR(3) + 1)))
    a("s_load_dwordx16 s[20:35], %s, 0" % sr(S_T0 + 1, 2))
    d_load(5)
    tbase_addr()
    a("s_waitcnt lgkmcnt(0)")
    d_selectors()
    for c in range(8):
        for j in range(4):
            src = 20 + 2 * c + (j >> 1)
            dst = S_W + 4 * c + j
            if j & 1:
                a("s_and_b32 %s, %s, 0xffff0000" % (sr(dst), sr(src)))
            else:
                a("s_lshl_b32 %s, %s, 16" % (sr(dst), sr(src)))
    step_offsets()
    RAW[1] = V_PF + 12
    a("s_waitcnt vmcnt(0)")
    stamp_n(1)
    a("s_barrier")
    t_load(2)
    t_load(3)
    for s_ in raw_loads(0, vm):
        a(s_)
    write_head(TD, TD + 1, V_ACC)
    for n in range(2):
        write_copies(TD + 8 * n, V_ACC + 8 + 12 * (n & 1), n)
    stamp_n(2)
    a("s_waitcnt vmcnt(5)")
    for n in range(2, 4):
        write_copies(TD + 8 * n, V_ACC + 8 + 12 * (n & 1), n)
    stamp_n(3)
    for s_ in prologue_math(0, vm):
        a(s_)
    stamp_n(4)
    conv(0, vm)


def cmul(d, x, y):
    a("v_pk_mul_f32 %s, %s, %s op_sel_hi:[1,0]" % (vr(d, 2), vr(x, 2), vr(y, 2)))
    a("v_pk_fma_f32 %s, %s, %s, %s op_sel:[1,1,0] op_sel_hi:[0,1,1] neg_lo:[1,0,0]" % (vr(d, 2), vr(x, 2), vr(y, 2), vr(d, 2)))


def path_B():
    vm = VM()
    a.lab("L_pathB")
    a.c("================= path B : S4D =================")
    a("s_mul_i32 %s, %s, %d" % (sr(S_T1), sr(S_WAVE), PFULL - PCH))
    a("s_sub_u32 %s, %s, %d" % (sr(S_T1), sr(S_T1), P0 - PB0))
    a("v_add_u32 %s, %s, %s" % (vr(V_P), sr(S_T1), vr(V_P)))
    a("v_add_u32 %s, %s, %s" % (vr(V_O), sr(S_T1), vr(V_O)))
    a("s_mul_i32 %s, %s, %d" % (sr(S_T1), sr(S_WAVE), 4096 - PFULL))
    a("s_add_u32 %s, %s, %d" % (sr(S_T1), sr(S_T1), OB0 - PB0))
    a("v_add_u32 %s, %s, %s" % (vr(V_O2), sr(S_T1), vr(V_O)))
    PRM = 236
    a("s_add_u32 %s, %s, %s" % (sr(S_T0), sr(S_CH0), sr(S_WAVE)))
    a("s_lshl_b32 %s, %s, 8" % (sr(S_T1), sr(S_T0)))
    a("v_lshl_add_u32 %s, %s, 2, %s" % (vr(V_TMP), vr(V_LANE), sr(S_T1)))
    for k in range(6):
        a("global_load_dword %s, %s, %s" % (vr(PRM + k), vr(V_TMP), sr(PTR(7 + k), 2)))
    a("s_barrier")
    a("s_lshl_b32 %s, %s, 1" % (sr(S_T1), sr(S_T0)))
    a("s_and_b32 %s, %s, -4" % (sr(S_T1), sr(S_T1)))
    a("s_add_u32 %s, %s, %s" % (sr(S_W), sr(PTR(13)), sr(S_T1)))
    a("s_addc_u32 %s, %s, 0" % (sr(S_W + 1), sr(PTR(13) + 1)))
    a("s_load_dword %s, %s, 0" % (sr(S_W + 2), sr(S_W, 2)))
    a("s_and_b32 %s, %s, 1" % (sr(S_W + 4), sr(S_T0)))
    a("s_waitcnt lgkmcnt(0)")
    a("s_lshl_b32 %s, %s, 16" % (sr(S_W + 3), sr(S_W + 2)))
    a("s_and_b32 %s, %s, 0xffff0000" % (sr(S_W + 2), sr(S_W + 2)))
    a("s_cmp_eq_u32 %s, 1" % sr(S_W + 4))
    a("s_cselect_b32 %s, %s, %s" % (sr(S_W + 2), sr(S_W + 2), sr(S_W + 3)))
    DT = 242
    a("v_mov_b32 %s, 0x3fb8aa3b" % vr(DT))
    a("v_mul_f32 %s, %s, %s" % (vr(DT), sr(S_W + 2), vr(DT)))
    a("v_exp_f32 %s, %s" % (vr(DT), vr(DT)))
    AW = V_TMP + 1
    AR = V_TMP + 2
    a("s_mul_i32 %s, %s, %d" % (sr(S_T0), sr(S_WAVE), TSZ))
    a("v_cvt_pk_bf16_f32 %s, 0, %s" % (vr(DT), vr(DT)))
    a("v_lshl_add_u32 %s, %s, 3, %s" % (vr(AW), vr(V_LANE), sr(S_T0)))
    a("v_and_b32 %s, 15, %s" % (vr(AR), vr(V_LANE)))
    a("v_mul_u32_u24 %s, %d, %s" % (vr(AR), LROW, vr(AR)))
    a("v_lshrrev_b32 %s, 4, %s" % (vr(V_TMP + 3), vr(V_LANE)))
    a("v_lshl_add_u32 %s, %s, 4, %s" % (vr(AR), vr(V_TMP + 3), vr(AR)))
    a("v_add_u32 %s, %s, %s" % (vr(AR), sr(S_T0), vr(AR)))
    M = [V_S, V_S + 46]
    def AR2(m): return M[m]
    def AI2(m): return M[m] + 1
    def Wv(m): return M[m] + 2
    def Ep(m, phi): return M[m] + 4 + 2 * (phi - 1)
    def Rr(m, j): return M[m] + 18 + 2 * (j - 1)
    def E128(m): return M[m] + 34
    def G(m, i): return M[m] + 36 + 2 * (i & 1)
    def TA(m, n): return M[m] + 40 + 2 * (n % 3)
    CV = V_ACC + 16
    FRB = V_TC
    FRA = V_TC + 32
    FRC = V_S + 4
    KACC = V_ACC
    stamp_n(1)
    a("s_waitcnt vmcnt(0)")
    stamp_n(2)
    for m in range(2):
        def un(dst, src):
            if m == 0:
                a("v_lshlrev_b32 %s, 16, %s" % (vr(dst), vr(src)))
            else:
                a("v_and_b32 %s, 0xffff0000, %s" % (vr(dst), vr(src)))
        un(AR2(m), PRM + 0)
        un(AI2(m), PRM + 1)
        un(TA(m, 0), PRM + 2)
        un(TA(m, 0) + 1, PRM + 3)
        un(TA(m, 1), PRM + 4)
        un(TA(m, 1) + 1, PRM + 5)
    for m in range(2):
        a("v_mul_f32 %s, %s, %s" % (vr(AR2(m)), vr(DT), vr(AR2(m))))
        a("v_mul_f32 %s, %s, %s" % (vr(AI2(m)), vr(DT), vr(AI2(m))))
        a("v_mul_f32 %s, 0x3fb8aa3b, %s" % (vr(AR2(m)), vr(AR2(m))))
        a("v_mul_f32 %s, 0.15915494, %s" % (vr(AI2(m)), vr(AI2(m))))
        a("v_mul_f32 %s, %s, %s" % (vr(TA(m, 0)), vr(DT), vr(TA(m, 0))))
        a("v_mul_f32 %s, %s, %s" % (vr(TA(m, 0) + 1), vr(DT), vr(TA(m, 0) + 1)))
        cmul(Wv(m), TA(m, 1), TA(m, 0))
    mx = CV
    a("v_max_f32 %s, |%s|, |%s|" % (vr(mx), vr(Wv(0)), vr(Wv(0) + 1)))
    a("v_max3_f32 %s, |%s|, |%s|, %s" % (vr(mx), vr(Wv(1)), vr(Wv(1) + 1), vr(mx)))
    dpp = ["row_shr:1 row_mask:0xf", "row_shr:2 row_mask:0xf", "row_shr:4 row_mask:0xf", "row_shr:8 row_mask:0xf", "row_bcast:15 row_mask:0xa", "row_bcast:31 row_mask:0xc"]
    k = 0
    for x, lit in ((1, "1.0"), (8, "0x41000000"), (128, "0x43000000")):
        for m in range(2):
            dst = Ep(m, 1) if x == 1 else Rr(m, 1) if x == 8 else E128(m)
            t = TA(m, 0)
            a("v_mul_f32 %s, %s, %s" % (vr(t), lit, vr(AR2(m))))
            a("v_mul_f32 %s, %s, %s" % (vr(t + 1), lit, vr(AI2(m))))
            a("v_max_f32_dpp %s, %s, %s %s bank_mask:0xf" % (vr(mx), vr(mx), vr(mx), dpp[k])); k += 1
            a("v_exp_f32 %s, %s" % (vr(t), vr(t)))
            a("v_fract_f32 %s, %s" % (vr(t + 1), vr(t + 1)))
            a("v_cos_f32 %s, %s" % (vr(t + 2), vr(t + 1)))
            a("v_sin_f32 %s, %s" % (vr(t + 3), vr(t + 1)))
            a("s_nop 0")
            a("v_mul_f32 %s, %s, %s" % (vr(dst), vr(t), vr(t + 2)))
            a("v_mul_f32 %s, %s, %s" % (vr(dst + 1), vr(t), vr(t + 3)))
    a("v_readlane_b32 %s, %s, 63" % (sr(S_SC), vr(mx)))
    cvi = [0]
    def put(off, p0, p1, neg):
        c = CV + 2 * (cvi[0] & 3); cvi[0] += 1
        n = "-" if neg else ""
        a("v_cvt_pk_f16_f32 %s, %s, %s%s" % (vr(c), vr(p0), n, vr(p0 + 1)))
        a("v_cvt_pk_f16_f32 %s, %s, %s%s" % (vr(c + 1), vr(p1), n, vr(p1 + 1)))
        a("ds_write_b64 %s, %s offset:%d" % (vr(AW), vr(c, 2), off))
    a("v_mov_b32 %s, 0x3c00" % vr(CV + 6))
    a("v_mov_b32 %s, 0x3c00" % vr(CV + 7))
    a("ds_write_b64 %s, %s offset:0" % (vr(AW), vr(CV + 6, 2)))
    a("s_and_b32 %s, %s, 0x7f800000" % (sr(S_SC), sr(S_SC)))
    a("s_sub_u32 %s, 0x7f000000, %s" % (sr(S_T0), sr(S_SC)))
    for m in range(2):
        a("v_mul_f32 %s, %s, %s" % (vr(Wv(m)), sr(S_T0), vr(Wv(m))))
        a("v_mul_f32 %s, %s, %s" % (vr(Wv(m) + 1), sr(S_T0), vr(Wv(m) + 1)))
    put(LROW, Rr(0, 1), Rr(1, 1), True)
    for j in range(2, 9):
        for m in range(2):
            cmul(Rr(m, j), Rr(m, j // 2), Rr(m, j - j // 2))
        put(j * LROW, Rr(0, j), Rr(1, j), True)
    for j in range(9, 16):
        for m in range(2):
            cmul(TA(m, j), Rr(m, 8), Rr(m, j - 8))
        put(j * LROW, TA(0, j), TA(1, j), True)
    for kp in range(8):
        a("ds_read_b128 %s, %s offset:%d" % (vr(FRB + 4 * kp, 4), vr(AR), 64 * kp))
    for phi in range(2, 8):
        for m in range(2):
            cmul(Ep(m, phi), Ep(m, phi // 2), Ep(m, phi - phi // 2))
    def lrow_off(row):
        return (KBUF if (row >> 4) != 1 else 0) + (row & 15) * LROW
    cur = [Wv(0), Wv(1)]
    tn = [0]
    for i in range(17):
        if i < 2:
            rows = [(8 * i + phi, phi) for phi in range(8)]
        elif i < 4:
            rows = [(16 + 4 * (i - 2) + f, 2 * f) for f in range(4)]
        elif i < 8:
            rows = [(24 + 2 * (i - 4) + f, 4 * f) for f in range(2)]
        else:
            rows = [(32 + (i - 8), 0)]
        if i == 2:
            for kp in range(8):
                a("ds_read_b128 %s, %s offset:%d" % (vr(FRA + 4 * kp, 4), vr(AR), KBUF + 64 * kp))
        if i == 8:
            for kp in range(8):
                a("ds_read_b128 %s, %s offset:%d" % (vr(FRA + 4 * kp, 4), vr(AR), 64 * kp))
        nxt = [G(0, i), G(1, i)]
        if i < 16:
            for m in range(2):
                cmul(nxt[m], cur[m], E128(m))
        for n, (row, phi) in enumerate(rows):
            if phi == 0:
                put(lrow_off(row), cur[0], cur[1], False)
            else:
                for m in range(2):
                    cmul(TA(m, tn[0]), cur[m], Ep(m, phi))
                put(lrow_off(row), TA(0, tn[0]), TA(1, tn[0]), False)
                tn[0] += 1
            if 22 <= row < 30:
                kp = row - 22
                if kp == 0:
                    a("s_waitcnt lgkmcnt(7)")
                a("v_mfma_f32_16x16x32_f16 %s, %s, %s, %s" % (vr(KACC, 4), vr(FRA + 4 * kp, 4), vr(FRB + 4 * kp, 4), "0" if kp == 0 else vr(KACC, 4)))
        cur = nxt
    for kp in range(8):
        a("ds_read_b128 %s, %s offset:%d" % (vr(FRC + 4 * kp, 4), vr(AR), KBUF + 64 * kp))
    j, g = V_TMP, V_TMP + 3
    A0, A1, A1b, A2 = V_S, V_S + 1, V_S + 2, V_S + 3
    a("v_and_b32 %s, 15, %s" % (vr(j), vr(V_LANE)))
    a("s_mul_i32 %s, %s, %d" % (sr(S_T1), sr(S_WAVE), TSZ))
    a("v_lshrrev_b32 %s, 1, %s" % (vr(A0), vr(g)))
    a("v_lshlrev_b32 %s, 7, %s" % (vr(A0), vr(A0)))
    a("v_and_b32 %s, 1, %s" % (vr(A1), vr(g)))
    a("v_lshl_add_u32 %s, %s, 2, %s" % (vr(A0), vr(A1), vr(A0)))
    a("v_lshl_add_u32 %s, %s, 3, %s" % (vr(A0), vr(j), vr(A0)))
    a("v_lshl_add_u32 %s, %s, 1, %s" % (vr(A0), vr(A0), sr(S_T1)))
    a("v_lshlrev_b32 %s, 6, %s" % (vr(A2), vr(g)))
    a("v_cmp_gt_u32 vcc, 2, %s" % vr(g))
    a("v_lshlrev_b32 %s, 2, %s" % (vr(A1), vr(j)))
    a("v_lshlrev_b32 %s, 1, %s" % (vr(A1b), vr(j)))
    a("v_cndmask_b32 %s, %s, %s, vcc" % (vr(A1), vr(A1b), vr(A1)))
    a("s_waitcnt lgkmcnt(8)")
    for kp in range(8):
        a("v_mfma_f32_16x16x32_f16 %s, %s, %s, %s" % (vr(KACC + 4, 4), vr(FRA + 4 * kp, 4), vr(FRB + 4 * kp, 4), "0" if kp == 0 else vr(KACC + 4, 4)))
    a("s_waitcnt lgkmcnt(0)")
    for kp in range(8):
        a("v_mfma_f32_16x16x32_f16 %s, %s, %s, %s" % (vr(KACC + 8, 4), vr(FRC + 4 * kp, 4), vr(FRB + 4 * kp, 4), "0" if kp == 0 else vr(KACC + 8, 4)))
    a("v_add_u32 %s, %s, %s" % (vr(A1), vr(A1), vr(A2)))
    a("v_add_u32 %s, 256, %s" % (vr(A1), vr(A1)))
    a("v_mov_b32 %s, 32" % vr(A1b))
    a("v_cndmask_b32 %s, %s, 2, vcc" % (vr(A1b), vr(A1b)))
    a("v_add_u32 %s, %s, %s" % (vr(A1b), vr(A1b), vr(A1)))
    a("v_lshl_add_u32 %s, %s, 1, %s" % (vr(A1), vr(A1), sr(S_T1)))
    a("v_lshl_add_u32 %s, %s, 1, %s" % (vr(A1b), vr(A1b), sr(S_T1)))
    a("v_add3_u32 %s, %s, %s, %s" % (vr(A2), vr(A2), vr(j), "64"))
    a("v_add_u32 %s, 448, %s" % (vr(A2), vr(A2)))
    a("v_lshl_add_u32 %s, %s, 1, %s" % (vr(A2), vr(A2), sr(S_T1)))
    stamp_n(3)
    for k in range(12):
        a("v_mul_f32 %s, %s, %s" % (vr(KACC + k), sr(S_SC), vr(KACC + k)))
    pk = KACC + 12
    for k in range(6):
        a("v_cvt_pk_bf16_f32 %s, %s, %s" % (vr(pk + k), vr(KACC + 2 * k), vr(KACC + 2 * k + 1)))
    a("ds_write_b64 %s, %s offset:0" % (vr(A0), vr(pk, 2)))
    a("ds_write_b32 %s, %s offset:0" % (vr(A1), vr(pk + 2)))
    a("ds_write_b32 %s, %s offset:0" % (vr(A1b), vr(pk + 3)))
    a("ds_write_b16 %s, %s offset:0" % (vr(A2), vr(pk + 4)))
    a("ds_write_b16_d16_hi %s, %s offset:32" % (vr(A2), vr(pk + 4)))
    a("ds_write_b16 %s, %s offset:64" % (vr(A2), vr(pk + 5)))
    a("ds_write_b16_d16_hi %s, %s offset:96" % (vr(A2), vr(pk + 5)))
    a.c("---- expand the staircase into the four shifted copies ----")
    tbase_addr()
    D = V_TC
    H = V_TC + 32
    a("v_lshl_add_u32 %s, %s, 4, %s" % (vr(V_TMP), vr(V_LANE), sr(S_T1)))
    a("v_lshl_add_u32 %s, %s, 3, %s" % (vr(V_TMP + 1), vr(V_LANE), sr(S_T1)))
    a("v_lshl_add_u32 %s, %s, 2, %s" % (vr(V_TMP + 2), vr(V_LANE), sr(S_T1)))
    a("v_lshl_add_u32 %s, %s, 1, %s" % (vr(V_TMP + 3), vr(V_LANE), sr(S_T1)))
    a("s_mov_b32 %s, 0x01000100" % sr(S_K0))
    a("s_mov_b32 %s, 0x03020302" % sr(S_K1))
    a("ds_read_b128 %s, %s" % (vr(D, 4), vr(V_TMP)))
    a("ds_read_b64 %s, %s offset:16" % (vr(D + 4, 2), vr(V_TMP)))
    a("ds_read_b64 %s, %s offset:256" % (vr(H, 2), vr(V_TMP + 1)))
    a("ds_read_b32 %s, %s offset:264" % (vr(H + 2), vr(V_TMP + 1)))
    a("ds_read_b32 %s, %s offset:%d" % (vr(H + 4), vr(V_TMP + 2), 2 * 384))
    a("ds_read_b32 %s, %s offset:%d" % (vr(H + 5), vr(V_TMP + 2), 2 * 384 + 4))
    for n in (2, 3):
        o = 2 * (512 + 64 * (n - 2))
        a("ds_read_u16 %s, %s offset:%d" % (vr(H + 6 + 2 * (n - 2)), vr(V_TMP + 3), o))
        a("ds_read_u16 %s, %s offset:%d" % (vr(H + 7 + 2 * (n - 2)), vr(V_TMP + 3), o + 2))
    a("v_and_b32 %s, 1, %s" % (vr(V_TMP), vr(V_LANE)))
    a("v_cmp_eq_u32 vcc, 0, %s" % vr(V_TMP))
    a("s_waitcnt lgkmcnt(0)")
    a("s_mov_b32 exec_hi, 0")
    a("s_mov_b32 exec_lo, 0x80000000")
    a("v_lshrrev_b32 %s, 16, %s" % (vr(D + 5), vr(D + 4)))
    a("v_perm_b32 %s, %s, %s, %s" % (vr(D + 4), vr(D + 4), vr(D + 4), sr(S_K0)))
    a("s_mov_b32 exec_lo, 0")
    a("s_mov_b32 exec_hi, -1")
    a("v_perm_b32 %s, %s, %s, %s" % (vr(D), vr(H), vr(H), sr(S_K0)))
    a("v_alignbit_b32 %s, %s, %s, 16" % (vr(D + 1), vr(H + 1), vr(H)))
    a("v_perm_b32 %s, %s, %s, %s" % (vr(D + 2), vr(H + 1), vr(H + 1), sr(S_K0)))
    a("v_alignbit_b32 %s, %s, %s, 16" % (vr(D + 3), vr(H + 2), vr(H + 1)))
    a("v_perm_b32 %s, %s, %s, %s" % (vr(D + 4), vr(H + 2), vr(H + 2), sr(S_K0)))
    a("v_lshrrev_b32 %s, 16, %s" % (vr(D + 5), vr(H + 2)))
    a("s_mov_b32 exec_hi, 0x80000000")
    a("v_mov_b32 %s, %s" % (vr(D + 5), vr(D + 4)))
    a("s_mov_b64 exec, -1")
    write_head(D, D + 1, V_S + 8)
    write_copies(D, V_S + 16, 0)
    D2 = D + 8
    a("v_perm_b32 %s, %s, %s, %s" % (vr(D2), vr(H + 4), vr(H + 4), sr(S_K0)))
    a("v_mov_b32 %s, %s" % (vr(D2 + 1), vr(H + 4)))
    a("v_perm_b32 %s, %s, %s, %s" % (vr(D2 + 2), vr(H + 4), vr(H + 4), sr(S_K1)))
    for k in (3, 4, 5):
        a("v_perm_b32 %s, %s, %s, %s" % (vr(D2 + k), vr(H + 5), vr(H + 5), sr(S_K0)))
    write_copies(D2, V_S + 28, 1)
    for n in (2, 3):
        D3 = D + 8 * n
        ra, rb_ = H + 6 + 2 * (n - 2), H + 7 + 2 * (n - 2)
        a("v_lshl_or_b32 %s, %s, 16, %s" % (vr(D3), vr(ra), vr(ra)))
        a("v_lshl_or_b32 %s, %s, 16, %s" % (vr(D3 + 1), vr(ra), vr(ra)))
        for k in (3, 4, 5):
            a("v_lshl_or_b32 %s, %s, 16, %s" % (vr(D3 + k), vr(rb_), vr(rb_)))
        a("v_cndmask_b32 %s, %s, %s, vcc" % (vr(ra), vr(rb_), vr(ra)))
        a("v_lshl_or_b32 %s, %s, 16, %s" % (vr(D3 + 2), vr(rb_), vr(ra)))
        write_copies(D3, V_S + 16 + 12 * (n & 1), n)
    stamp_n(4)
    conv(1, vm)


DELAY = [int(x) for x in os.environ.get("DELAY", "12,0").split(",")]
MBAR_R = int(os.environ.get("MBAR_R", "1"))


def conv(typ, vm):
    T = "AB"[typ]
    a.c("================= convolution (%s) =================" % T)
    steps = [[0, 1], [2, 3], [4, 5], [6, 7]] if typ == 0 else B_STEPS
    pstride = 8 if typ == 0 else 16
    if typ == 0:
        RAW[1] = RAW[0]
        YREG[0], YREG[1] = V_PF + 16, V_PF + 24
    else:
        YREG[0], YREG[1] = V_Y, RAW[0]

    def preg(r, d): return V_PF + pstride * (r & 1) + 4 * d

    def p_reads(si, r):
        return [("ds_read_b128 %s, %s offset:%d" % (vr(preg(r, d), 4), vr(V_P), (1536 - 512 * (w & 3) if typ == 0 else 3584 - 512 * w) + 64 * r), ("P", si, r, d)) for d, w in enumerate(steps[si])]

    def treg(r, u):
        return V_TC + 8 * r + 4 * u if u < 2 else V_TF + 24 * (r & 1) + 4 * (u - 2)

    def t_reads(si, r):
        out = []
        for u in range(0 if si == 0 else 2, 8 - steps[si][0]):
            for hh in range(2):
                out.append(("ds_read_b64 %s, %s offset:%d" % (vr(treg(r, u) + 2 * hh, 2), vr(V_T), 512 * u + 64 * r + 8 * hh), ("T", si, r, u, hh)))
        return out

    lq = []
    state = {"done": -1}

    def need(*tags):
        idx = -1
        for tag in tags:
            idxs = [i for i, t in enumerate(lq) if t == tag]
            if idxs:
                idx = max(idx, idxs[-1])
        if idx <= state["done"]:
            return
        n = len(lq) - 1 - idx
        a("s_waitcnt lgkmcnt(%d)" % min(n, 15))
        state["done"] = len(lq) - 1 - min(n, 15)

    def drain():
        a("s_waitcnt lgkmcnt(0)")
        state["done"] = len(lq) - 1

    def emit(s_, tag=None):
        if s_.startswith("@Y"):
            need(("Y", int(s_[2:]), 7))
            return
        a(s_)
        if s_.startswith("ds_"):
            lq.append(tag)

    def deposit(si):
        for c in steps[si]:
            acc = V_ACC + 4 * c
            a("v_cvt_pk_bf16_f32 %s, %s, %s" % (vr(acc), vr(acc), vr(acc + 1)))
            a("v_cvt_pk_bf16_f32 %s, %s, %s" % (vr(acc + 1), vr(acc + 2), vr(acc + 3)))
            emit("ds_write_b64 %s, %s offset:%d" % (vr(V_O2), vr(acc, 2), (c >> 1) * TCOPY + 512 * (c & 1) if typ == 0 else 512 * c), "D")

    a("v_mov_b32 %s, 0" % vr(V_ACC))
    a("v_mov_b32 %s, 0" % vr(V_ACC + 1))
    if typ == 0:
        for s_ in p_writes(0, False):
            emit(s_)
        emit("ds_write_b64 %s, %s offset:2048" % (vr(V_O), vr(V_ACC, 2)))
    else:
        a("v_and_b32 %s, 15, %s" % (vr(V_TMP + 3), vr(V_LANE)))
        a("v_cmp_gt_u32 vcc, 15, %s" % vr(V_TMP + 3))
        a("s_and_saveexec_b64 %s, vcc" % sr(S_EX, 2))
        emit("ds_write_b64 %s, %s offset:4096" % (vr(V_O), vr(V_ACC, 2)))
        a("s_mov_b64 exec, %s" % sr(S_EX, 2))
    for s_, tg in t_reads(0, 0):
        emit(s_, tg)
    if typ == 0:
        for s_ in raw_loads(1, vm):
            a(s_)
    drain()
    stamp_n(5)
    a("s_barrier")
    for x in p_reads(0, 0):
        emit(*x)

    touched = set()
    pending = []
    for si, st in enumerate(steps):
        a.c("---- step %d ----" % si)
        stamp_n(6 + 2 * si)
        for p in pending:
            for c, s_ in enumerate(out_reads(p, YB(p))):
                emit(s_, ("Y", p, c))
        fill = []
        if typ == 0:
            if si == 0:
                fill.append(q_load(0, vm))
                fill += ["@S"] * DELAY[0]
                fill += prologue_math(1, vm)
                fill += raw_loads(2, vm)
                fill += p_writes(1, False)
                fill += ["@S"] * DELAY[1]
                fill += prologue_math(2, vm)
                fill += raw_loads(3, vm)
            elif si == 1:
                fill.append(q_load(1, vm))
                fill += epilogue_math(typ, 0, vm)
                fill += prologue_math(3, vm)
            else:
                fill.append(q_load(si, vm))
                fill += epilogue_math(typ, si - 1, vm)
        pending = sorted(set(c >> 1 for c in st)) if typ == 0 else []
        fi = 0
        ms = [(u + w, u, d) for u in range(8 - st[0]) for d, w in enumerate(st) if u + w <= 7]
        lastdep = max(i for i, m in enumerate(ms) if m[0] in st)
        early = lastdep + 5 < len(ms)
        rewrite = st[-1] == 3 and typ == 0
        vis = st[0] >= 4 or typ == 1
        last = si == len(steps) - 1
        for r in range(8):
            if r < 7:
                nxt = p_reads(si, r + 1) + t_reads(si, r + 1)
            elif last:
                nxt = []
            else:
                nxt = t_reads(si + 1, 0)
                if vis:
                    nxt = p_reads(si + 1, 0) + nxt
            for i, (c, u, d) in enumerate(ms):
                acc = V_ACC + 4 * c
                src = vr(acc, 4) if c in touched else "0"
                touched.add(c)
                need(("P", si, r, d), ("T", si, r, u, 1))
                a("v_mfma_f32_16x16x32_bf16 %s, %s, %s, %s" % (vr(acc, 4), vr(treg(r, u), 4), vr(preg(r, d), 4), src))
                lo = (i * len(nxt) + len(ms) - 1) // len(ms) if len(nxt) > len(ms) else i
                hi = len(nxt) if i == len(ms) - 1 else (((i + 1) * len(nxt) + len(ms) - 1) // len(ms) if len(nxt) > len(ms) else i + 1)
                for k in range(lo, min(hi, len(nxt))):
                    emit(*nxt[k])
                n = 0
                while fi < len(fill) and (n < FILL or fill[fi - 1].startswith("s_mov_b64 exec, 1") or (fill[fi - 1].startswith("buffer_load") and V_HA_STR in fill[fi - 1])):
                    if fill[fi] == "@S":
                        fi += 1
                        break
                    emit(fill[fi], "x"); fi += 1; n += 1
                if r == 7 and early and i == lastdep + 4:
                    a("s_nop 3")
                    deposit(si)
        while fi < len(fill):
            if fill[fi] != "@S":
                emit(fill[fi], "x")
            fi += 1
        stamp_n(7 + 2 * si)
        if not early:
            a("s_nop 7")
            a("s_nop 1")
            deposit(si)
        if vis:
            need("D")
        else:
            drain()
        a("s_barrier")
        if rewrite:
            for p in (2, 3):
                for s_ in p_writes(p, False):
                    emit(s_)
            for s_ in p_writes(1, True):
                emit(s_)
            drain()
            a("s_barrier")
        if not vis:
            for x in p_reads(si + 1, 0):
                emit(*x)
    stamp_n(14)
    for p in pending:
        for c, s_ in enumerate(out_reads(p, YB(p))):
            emit(s_, ("Y", p, c))
    for p in pending:
        for s_ in epilogue_math(typ, p, vm):
            emit(s_, "x")
    stamp_dump()
    a("s_endpgm")


V_HA_STR = ", v%d, " % V_HA

header()
prologue_common()
path_A()
path_B()
helper()
footer()
out = sys.argv[1] if len(sys.argv) > 1 else "concat_heads__ssm_conv_h3__ssm_conv_s4__prompt.s"
open(out, "w").write(a.text())
print("wrote", out, len(a.l), "lines")
```

```python
import os
import sys

NAME = "concat_heads__ssm_conv_h3__ssm_conv_s4__prompt_kernel"
MODE = sys.argv[2] if len(sys.argv) > 2 else ""
STAMPS = MODE in ("stamps", "dbgt")
EXACT = int(os.environ.get("EXACT", "1"))
A3 = int(os.environ.get("A3", "0"))
UAT = [int(x) for x in os.environ.get("UAT", "8,11,14,16").split(",")]
TORDER = int(os.environ.get("TORDER", "0"))
CODEPF = int(os.environ.get("CODEPF", "0"))
SPREAD = int(os.environ.get("SPREAD", "1"))
RPM = int(os.environ.get("RPM", "2"))
FILL = int(os.environ.get("FILL", "2"))

TCOPY = 4160
TSZ = 16896
P0 = 8 * TSZ
PCH = 2560
LDS_TOTAL = P0 + 8 * PCH
OUTOFF = 3136
LROW = 528
KBUF = 16 * LROW


class A:
    def __init__(self):
        self.l = []

    def __call__(self, s):
        self.l.append("    " + s)

    def lab(self, s):
        self.l.append(s + ":")

    def c(self, s):
        self.l.append("    ; " + s)

    def text(self):
        return "\n".join(self.l) + "\n"


def vr(b, n=1):
    return "v%d" % b if n == 1 else "v[%d:%d]" % (b, b + n - 1)


def sr(b, n=1):
    return "s%d" % b if n == 1 else "s[%d:%d]" % (b, b + n - 1)


a = A()

S_TYPE = 3
S_PTR = 4
def PTR(i): return S_PTR + 2 * i
S_WAVE = 40
S_COL = 41
S_I = 42
S_CH0 = 43
SRD_X = 44
SRD_V = 48
SRD_Q = 52
SRD_T = 56
SRD_O = 60
S_W = 64
S_D = 4
S_ONES = 96
S_HJ = 97
S_T0 = 99
S_T1 = 100
S_T2 = 101
S_EX = 20
S_SC = 22
S_IN1 = 23
S_OUT1 = 32
S_K0 = 26
S_K1 = 27

V_LANE = 1
V_T = 2
V_P = 3
V_O = 4
V_WM = 5
V_OR = 6
V_GO = 7
V_IN = 8
V_TMP = 9
V_WP = 255
V_X = 16
V_Q = 32
V_OR2 = 40
V_O2 = 41
V_ACC = 48
V_TC = 80
V_TF = 144
V_PF = 192
V_S = 144
V_ST = 254
NVGPR = 256


def stamp_n(n):
    if not STAMPS:
        return
    a("s_memrealtime s[36:37]")
    a("s_waitcnt lgkmcnt(0)")
    a("v_writelane_b32 %s, s36, %d" % (vr(V_ST), n))
    a("s_memtime s[36:37]")
    a("s_waitcnt lgkmcnt(0)")
    a("v_writelane_b32 %s, s36, %d" % (vr(V_ST), n + 16))


_dd = [0]
def stamp_dump():
    if not STAMPS:
        return
    a("s_waitcnt vmcnt(0)")
    stamp_n(15)
    if MODE == "dbgt":
        a("s_load_dwordx2 s[36:37], s[0:1], 128")
        a("s_cmp_lg_u32 %s, 0" % sr(S_WAVE))
        a("s_cbranch_scc1 L_end")
        a("s_cmp_lg_u32 s2, %d" % (0 if _dd[0] == 0 else 130))
        a("s_cbranch_scc1 L_end")
        for k, ln in enumerate((0, 1, 6, 15, 16, 17, 22, 31)):
            a("v_readlane_b32 s38, %s, %d" % (vr(V_ST), ln))
            a("s_nop 3")
            a("v_mov_b32 %s, s38" % vr(V_S + k))
        a("v_mov_b32 %s, %d" % (vr(V_ST + 1), 32 * _dd[0]))
        a("s_waitcnt lgkmcnt(0)")
        a("s_mov_b64 exec, 1")
        a("global_store_dwordx4 %s, %s, s[36:37]" % (vr(V_ST + 1), vr(V_S, 4)))
        a("global_store_dwordx4 %s, %s, s[36:37] offset:16" % (vr(V_ST + 1), vr(V_S + 4, 4)))
        _dd[0] += 1
        return
    a("s_load_dwordx2 s[36:37], s[0:1], 136")
    a("s_lshl_b32 s38, s2, 3")
    a("s_add_u32 s38, s38, %s" % sr(S_WAVE))
    a("s_lshl_b32 s38, s38, 8")
    a("v_lshl_add_u32 %s, %s, 2, s38" % (vr(V_ST + 1), vr(V_LANE)))
    a("s_waitcnt lgkmcnt(0)")
    a("global_store_dword %s, %s, s[36:37]" % (vr(V_ST + 1), vr(V_ST)))


def header():
    a.l.append("; fused H3 (shift-SSM * v -> long conv -> gate) and S4D (kernel generation + long conv), one launch")
    a.l.append("; @launch grid=(256,1,1) block=(512,1,1) lds=%d" % LDS_TOTAL)
    a.l.append('.amdgcn_target "amdgcn-amd-amdhsa--gfx950"')
    a.l.append(".text")
    a.l.append(".globl " + NAME)
    a.l.append(".p2align 8")
    a.l.append(".type %s,@function" % NAME)
    a.lab(NAME)


def footer():
    a.lab("L_end")
    a("s_endpgm")
    a.l.append('.section .rodata,"a"')
    a.l.append(".p2align 6")
    a.l.append(".amdhsa_kernel " + NAME)
    a.l.append("  .amdhsa_next_free_vgpr %d" % NVGPR)
    a.l.append("  .amdhsa_next_free_sgpr 102")
    a.l.append("  .amdhsa_accum_offset %d" % NVGPR)
    a.l.append("  .amdhsa_group_segment_fixed_size 0")
    a.l.append("  .amdhsa_kernarg_size 144")
    a.l.append("  .amdhsa_user_sgpr_count 2")
    a.l.append("  .amdhsa_user_sgpr_kernarg_segment_ptr 1")
    a.l.append("  .amdhsa_system_sgpr_workgroup_id_x 1")
    a.l.append(".end_amdhsa_kernel")


def srd(d, plo, nbytes):
    a("s_mov_b32 %s, %s" % (sr(d), sr(plo)))
    a("s_and_b32 %s, %s, 0xffff" % (sr(d + 1), sr(plo + 1)))
    a("s_mov_b32 %s, 0x%x" % (sr(d + 2), nbytes))
    a("s_mov_b32 %s, 0x00020000" % sr(d + 3))


SLOTS = [
    [0x00, 0x02, 0x04, 0x05, 0x06, 0x07, 0x08, 0x09],
    [0x01, 0x03, 0x22, 0x24, 0x26, 0x28, 0x2a, 0x2c],
    [0x20, 0x21, 0x23, 0x25, 0x27, 0x29, 0x2b, 0x2d],
    [0x40, 0x40, 0x30, 0x31, 0x32, 0x33, 0x2e, 0x2f],
]
HJOB = [
    [0, 0, 0, 0, 0, 0, 0, 0],
    [0, 0, 4 * 8 + 1, 5 * 8 + 1, 6 * 8 + 1, 7 * 8 + 1, 8 * 8 + 1, 9 * 8 + 1],
    [0 * 8 + 7, 2 * 8 + 7, 4 * 8 + 2, 5 * 8 + 2, 6 * 8 + 2, 7 * 8 + 2, 8 * 8 + 2, 9 * 8 + 2],
    [1 * 8 + 7, 3 * 8 + 7, 4 * 8 + 4, 5 * 8 + 4, 6 * 8 + 4, 7 * 8 + 4, 8 * 8 + 4, 9 * 8 + 4],
]


def prologue_common():
    a.c("---- decode workgroup -> (type, column, index) ----")
    a("s_cmp_ge_u32 s2, 256")
    a("s_cbranch_scc1 L_end")
    a("s_load_dwordx16 %s, s[0:1], 0" % sr(S_PTR, 16))
    a("s_load_dwordx16 %s, s[0:1], 64" % sr(S_PTR + 16, 16))
    if os.environ.get("BADMAP"):
        a("s_lshr_b32 %s, s2, 5" % sr(S_T0))
        a("s_and_b32 %s, s2, 31" % sr(S_T1))
    else:
        a("s_and_b32 %s, s2, 7" % sr(S_T0))
        a("s_lshr_b32 %s, s2, 3" % sr(S_T1))
    a("s_and_b32 %s, %s, 7" % (sr(S_I), sr(S_T1)))
    a("s_lshr_b32 %s, %s, 3" % (sr(S_T1), sr(S_T1)))
    def pk(t, lo): return sum(t[lo + i] << (8 * i) for i in range(4))
    a("s_and_b32 %s, %s, 3" % (sr(S_TYPE), sr(S_T0)))
    a("s_lshl_b32 %s, %s, 3" % (sr(S_TYPE), sr(S_TYPE)))
    for dst, tab in ((S_COL, SLOTS), (S_HJ, HJOB)):
        a("s_mov_b32 %s, 0x%x" % (sr(dst), pk(tab[0], 0)))
        a("s_mov_b32 %s, 0x%x" % (sr(S_T2), pk(tab[0], 4)))
        for k in (1, 2, 3):
            a("s_cmp_eq_u32 %s, %d" % (sr(S_T1), k))
            a("s_cselect_b32 %s, 0x%x, %s" % (sr(dst), pk(tab[k], 0), sr(dst)))
            a("s_cselect_b32 %s, 0x%x, %s" % (sr(S_T2), pk(tab[k], 4), sr(S_T2)))
        a("s_cmp_ge_u32 %s, 4" % sr(S_T0))
        a("s_cselect_b32 %s, %s, %s" % (sr(dst), sr(S_T2), sr(dst)))
        a("s_lshr_b32 %s, %s, %s" % (sr(dst), sr(dst), sr(S_TYPE)))
        a("s_and_b32 %s, %s, 0xff" % (sr(dst), sr(dst)))
    a("s_lshr_b32 %s, %s, 5" % (sr(S_TYPE), sr(S_COL)))
    a("s_and_b32 %s, %s, 31" % (sr(S_COL), sr(S_COL)))
    a("s_lshl_b32 %s, %s, 3" % (sr(S_CH0), sr(S_COL)))
    a("s_add_u32 %s, %s, %s" % (sr(S_CH0), sr(S_CH0), sr(S_I)))
    a("s_cmp_eq_u32 %s, 1" % sr(S_TYPE))
    a("s_cselect_b32 %s, 2, 3" % sr(S_T0))
    a("s_lshl_b32 %s, %s, %s" % (sr(S_CH0), sr(S_CH0), sr(S_T0)))
    if CODEPF:
        a("s_cmp_lg_u32 %s, 0" % sr(S_I))
        a("s_cbranch_scc1 L_pcs")
        a("s_getpc_b64 s[36:37]")
        a.lab("L_pc")
        a("v_lshlrev_b32 %s, 7, v0" % vr(V_TMP + 1))
        a("v_mov_b32 %s, s37" % vr(V_TMP + 4))
        a("v_min_u32 %s, L_end-L_pc, %s" % (vr(V_TMP + 1), vr(V_TMP + 1)))
        a("v_add_co_u32 %s, vcc, s36, %s" % (vr(V_TMP + 3), vr(V_TMP + 1)))
        a("s_nop 1")
        a("v_addc_co_u32 %s, vcc, 0, %s, vcc" % (vr(V_TMP + 4), vr(V_TMP + 4)))
        a("v_cmp_gt_u32 vcc, 256, v0")
        a("s_and_saveexec_b64 s[38:39], vcc")
        a("s_cbranch_execz L_pcd")
        a("global_load_dword %s, %s, off" % (vr(253), vr(V_TMP + 3, 2)))
        a.lab("L_pcd")
        a("s_mov_b64 exec, s[38:39]")
        a.lab("L_pcs")
    a("v_lshrrev_b32 %s, 6, v0" % vr(V_TMP))
    a("v_and_b32 %s, 63, v0" % vr(V_LANE))
    a("s_mov_b32 %s, 0x3f803f80" % sr(S_ONES))
    a("v_readfirstlane_b32 %s, %s" % (sr(S_WAVE), vr(V_TMP)))
    a("s_nop 3")
    a("s_cmp_eq_u32 %s, 0" % sr(S_TYPE))
    a("s_cbranch_scc1 L_addr")
    a("s_cmp_ge_u32 %s, 4" % sr(S_WAVE))
    a("s_cbranch_scc1 L_helper")
    a("s_cmp_eq_u32 %s, 2" % sr(S_TYPE))
    a("s_cbranch_scc1 L_end")
    a.lab("L_addr")
    a.c("---- per-lane addresses ----")
    t0, t1, t2, t3 = V_TMP, V_TMP + 1, V_TMP + 2, V_TMP + 3
    a("v_and_b32 %s, 15, %s" % (vr(t0), vr(V_LANE)))
    a("v_lshrrev_b32 %s, 4, %s" % (vr(t1), vr(V_LANE)))
    a("v_add_u32 %s, 1, %s" % (vr(t2), vr(t0)))
    a("v_and_b32 %s, 3, %s" % (vr(t3), vr(t2)))
    a("v_sub_u32 %s, %s, %s" % (vr(t2), vr(t2), vr(t3)))
    a("v_lshlrev_b32 %s, 1, %s" % (vr(t2), vr(t2)))
    a("v_mul_u32_u24 %s, %d, %s" % (vr(t3), TCOPY, vr(t3)))
    a("v_add_u32 %s, %s, %s" % (vr(t2), vr(t2), vr(t3)))
    a("v_lshl_add_u32 %s, %s, 4, %s" % (vr(t2), vr(t1), vr(t2)))
    a("s_mul_i32 %s, %s, %d" % (sr(S_T0), sr(S_WAVE), TSZ))
    a("v_add_u32 %s, %s, %s" % (vr(V_T), sr(S_T0), vr(t2)))
    a("s_mul_i32 %s, %s, %d" % (sr(S_T0), sr(S_WAVE), PCH))
    a("s_add_u32 %s, %s, %d" % (sr(S_T0), sr(S_T0), P0))
    a("v_lshlrev_b32 %s, 5, %s" % (vr(t2), vr(t0)))
    a("v_lshl_add_u32 %s, %s, 3, %s" % (vr(t3), vr(t1), vr(t2)))
    a("v_add_u32 %s, %s, %s" % (vr(V_O), sr(S_T0), vr(t3)))
    a("v_lshlrev_b32 %s, 4, %s" % (vr(t3), vr(t1)))
    a("v_sub_u32 %s, %s, %s" % (vr(t3), vr(t3), vr(t2)))
    a("s_add_u32 %s, %s, 480" % (sr(S_T0), sr(S_T0)))
    a("v_add_u32 %s, %s, %s" % (vr(V_P), sr(S_T0), vr(t3)))
    a("v_lshlrev_b32 %s, 1, v0" % vr(t0))
    a("v_sub_u32 %s, %d, %s" % (vr(V_WM), P0 + 1022, vr(t0)))
    a("v_add_u32 %s, %d, %s" % (vr(V_OR), OUTOFF, vr(t0)))
    a("v_add_u32 %s, %d, %s" % (vr(V_OR2), OUTOFF + 4 * TSZ, vr(t0)))
    a("s_mul_i32 %s, %s, %d" % (sr(S_T0), sr(S_WAVE), TSZ - PCH))
    a("s_sub_u32 %s, %s, %d" % (sr(S_T0), sr(S_T0), P0 - OUTOFF))
    a("v_add_u32 %s, %s, %s" % (vr(V_O2), sr(S_T0), vr(V_O)))
    a("v_and_b32 %s, 30, %s" % (vr(t2), vr(t0)))
    a("v_add_u32 %s, %d, %s" % (vr(t2), P0 + 2528, vr(t2)))
    a("v_add_u32 %s, 2048, %s" % (vr(V_WP), vr(V_WM)))
    a("v_cmp_gt_u32 vcc, 256, v0")
    a("s_lshl_b32 %s, %s, 1" % (sr(S_T1), sr(S_CH0)))
    a("v_mul_u32_u24 %s, 1280, v0" % vr(t1))
    a("v_cndmask_b32 %s, %s, %s, vcc" % (vr(V_WP), vr(V_WP), vr(t2)))
    a("v_add_u32 %s, %s, %s" % (vr(V_IN), sr(S_T1), vr(t1)))
    a("s_mul_i32 %s, %s, 1280" % (sr(S_T2), sr(S_TYPE)))
    a("s_add_u32 %s, %s, %s" % (sr(S_T2), sr(S_T2), sr(S_T1)))
    a("v_lshl_add_u32 %s, %s, 1, %s" % (vr(V_GO), vr(t1), sr(S_T2)))
    a("s_waitcnt lgkmcnt(0)")
    srd(SRD_O, PTR(15), 2048 * 2560)
    stamp_n(0)
    a("s_cmp_eq_u32 %s, 1" % sr(S_TYPE))
    a("s_cbranch_scc1 L_pathB")


def step_offsets():
    for p in (1, 2, 3):
        a("s_mov_b32 %s, %d" % (sr(S_IN1 + p - 1), p * 512 * 1280))
        a("s_mov_b32 %s, %d" % (sr(S_OUT1 + p - 1), p * 512 * 2560))


def sin(p): return "0" if p == 0 else sr(S_IN1 + p - 1)
def sout(p): return "0" if p == 0 else sr(S_OUT1 + p - 1)


PFULL = 4576
PB0 = 4 * TSZ
OB0 = PB0 + 4 * PFULL


def helper():
    a.lab("L_helper")
    a.c("================= waves 4..7 of B / helper workgroups: warm the L2 for an A column =================")
    W4 = S_WAVE
    a("s_sub_u32 %s, %s, 4" % (sr(W4), sr(S_WAVE)))
    a("v_subrev_u32 v0, 256, v0")
    a("s_waitcnt lgkmcnt(0)")
    srd(SRD_X, PTR(1), 2048 * 1280)
    srd(SRD_V, PTR(2), 2048 * 1280)
    srd(SRD_Q, PTR(0), 2048 * 1280)
    srd(SRD_T, PTR(4), 640 * 4096)
    a("s_lshr_b32 %s, %s, 3" % (sr(S_W), sr(S_HJ)))
    a("s_lshl_b32 %s, %s, 7" % (sr(S_T1), sr(S_W)))
    a("v_mul_u32_u24 %s, 1280, v0" % vr(V_TMP))
    a("v_add_u32 %s, %s, %s" % (vr(V_TMP), sr(S_T1), vr(V_TMP)))
    a("s_cmp_eq_u32 %s, 2" % sr(S_TYPE))
    a("s_cbranch_scc1 L_h0")
    a("s_barrier")
    a.lab("L_h0")
    a("s_bitcmp1_b32 %s, 0" % sr(S_HJ))
    a("s_cbranch_scc0 L_h2")
    a("s_cmp_ge_u32 %s, 2" % sr(W4))
    a("s_cbranch_scc1 L_h1t")
    a("s_mul_i32 %s, %s, %d" % (sr(S_T0), sr(S_I), 128 * 1280))
    a("buffer_load_dword %s, %s, %s, %s offen" % (vr(V_TMP + 1), vr(V_TMP), sr(SRD_V, 4), sr(S_T0)))
    a("s_branch L_h1e")
    a.lab("L_h1t")
    a("v_and_b32 %s, 15, v0" % vr(V_TMP + 2))
    a("v_bfe_u32 %s, v0, 4, 3" % vr(V_TMP + 3))
    a("v_lshlrev_b32 %s, 7, %s" % (vr(V_TMP + 2), vr(V_TMP + 2)))
    a("v_lshl_add_u32 %s, %s, 12, %s" % (vr(V_TMP + 2), vr(V_TMP + 3), vr(V_TMP + 2)))
    a("s_lshl_b32 %s, %s, 3" % (sr(S_T0), sr(S_W)))
    a("s_add_u32 %s, %s, %s" % (sr(S_T0), sr(S_T0), sr(S_I)))
    a("s_lshl_b32 %s, %s, 15" % (sr(S_T0), sr(S_T0)))
    a("buffer_load_dword %s, %s, %s, %s offen offset:2048" % (vr(V_TMP + 1), vr(V_TMP + 2), sr(SRD_T, 4), sr(S_T0)))
    a.lab("L_h1e")
    a("s_waitcnt vmcnt(0)")
    a.lab("L_h2")
    a("s_cmp_eq_u32 %s, 2" % sr(S_TYPE))
    a("s_cbranch_scc1 L_h2b")
    srd(SRD_O, PTR(6), 2048 * 1280)
    a("s_lshl_b32 %s, %s, 1" % (sr(S_T0), sr(S_CH0)))
    a("v_mul_u32_u24 %s, 1280, v0" % vr(V_IN))
    a("v_add_u32 %s, %s, %s" % (vr(V_IN), sr(S_T0), vr(V_IN)))
    a("s_mul_i32 %s, %s, %d" % (sr(S_T0), sr(S_I), 256 * 1280))
    a("buffer_load_dword %s, %s, %s, %s offen" % (vr(V_TMP + 1), vr(V_IN), sr(SRD_O, 4), sr(S_T0)))
    a("s_waitcnt vmcnt(0)")
    a.lab("L_h2b")
    a("s_bitcmp1_b32 %s, 1" % sr(S_HJ))
    a("s_cbranch_scc0 L_h3")
    a("s_lshr_b32 %s, %s, 1" % (sr(S_T0), sr(S_I)))
    a("s_add_u32 %s, %s, 4" % (sr(S_T0), sr(S_T0)))
    a("s_mul_i32 %s, %s, %d" % (sr(S_T0), sr(S_T0), 256 * 1280))
    a("s_bitcmp1_b32 %s, 0" % sr(S_I))
    a("s_cbranch_scc1 L_h2v")
    a("buffer_load_dword %s, %s, %s, %s offen" % (vr(V_TMP + 1), vr(V_TMP), sr(SRD_X, 4), sr(S_T0)))
    a("s_branch L_h2e")
    a.lab("L_h2v")
    a("buffer_load_dword %s, %s, %s, %s offen" % (vr(V_TMP + 1), vr(V_TMP), sr(SRD_V, 4), sr(S_T0)))
    a.lab("L_h2e")
    a("s_bitcmp1_b32 %s, 2" % sr(S_HJ))
    a("s_cbranch_scc0 L_h4")
    a("s_waitcnt vmcnt(0)")
    a.lab("L_h3")
    a("s_bitcmp1_b32 %s, 2" % sr(S_HJ))
    a("s_cbranch_scc0 L_h4")
    a("s_mul_i32 %s, %s, %d" % (sr(S_T0), sr(S_I), 256 * 1280))
    a("buffer_load_dword %s, %s, %s, %s offen" % (vr(V_TMP + 1), vr(V_TMP), sr(SRD_Q, 4), sr(S_T0)))
    a.lab("L_h4")
    a("s_cmp_eq_u32 %s, 2" % sr(S_TYPE))
    a("s_cbranch_scc1 L_end")
    a.c("================= B service waves: u in, y out =================")
    srd(SRD_X, PTR(6), 2048 * 1280)
    srd(SRD_O, PTR(15), 2048 * 2560)
    a("s_lshl_b32 %s, %s, 1" % (sr(S_T0), sr(S_CH0)))
    a("s_add_u32 %s, %s, %s" % (sr(S_T0 + 1), sr(PTR(14)), sr(S_T0)))
    a("s_addc_u32 %s, %s, 0" % (sr(S_T0 + 2), sr(PTR(14) + 1)))
    a("s_load_dwordx2 s[92:93], %s, 0" % sr(S_T0 + 1, 2))
    a("v_mul_u32_u24 %s, 1280, v0" % vr(V_TMP))
    a("v_add_u32 %s, %s, %s" % (vr(V_IN), sr(S_T0), vr(V_TMP)))
    a("s_add_u32 %s, %s, 1280" % (sr(S_T2), sr(S_T0)))
    a("v_lshl_add_u32 %s, %s, 1, %s" % (vr(V_GO), vr(V_TMP), sr(S_T2)))
    a("v_lshlrev_b32 %s, 1, v0" % vr(V_TMP + 2))
    a("v_sub_u32 %s, %d, %s" % (vr(V_WM), PB0 + 510, vr(V_TMP + 2)))
    a("v_add_u32 %s, %d, %s" % (vr(V_OR), OB0, vr(V_TMP + 2)))
    for e in range(1, 8):
        a("s_mov_b32 %s, %d" % (sr(S_W + e), e * 256 * 1280))
        a("s_mov_b32 %s, %d" % (sr(S_W + 8 + e), e * 256 * 2560))
    a("s_waitcnt lgkmcnt(0)")
    for c in range(4):
        if c & 1:
            a("s_and_b32 %s, %s, 0xffff0000" % (sr(S_D + c), sr(92 + (c >> 1))))
        else:
            a("s_lshl_b32 %s, %s, 16" % (sr(S_D + c), sr(92 + (c >> 1))))
    for e in range(8):
        a("buffer_load_dwordx2 %s, %s, %s, %s offen" % (vr(V_X + 2 * e, 2), vr(V_IN), sr(SRD_X, 4), "0" if e == 0 else sr(S_W + e)))
    for e in range(8):
        a("s_waitcnt vmcnt(%d)" % (7 - e))
        for c in range(4):
            a("ds_write_b16%s %s, %s offset:%d" % ("_d16_hi" if c & 1 else "", vr(V_WM), vr(V_X + 2 * e + (c >> 1)), c * PFULL + 512 * (7 - e)))
    U = 64
    for e in range(8):
        for c in range(4):
            a(unpack(U + 4 * e + c, V_X + 2 * e + (c >> 1), c))
    if EXACT:
        for k in range(32):
            a("v_mul_f32 %s, %s, %s" % (vr(U + k), sr(S_D + (k & 3)), vr(U + k)))
        for k in range(32):
            a("v_cvt_pk_bf16_f32 %s, 0, %s" % (vr(U + k), vr(U + k)))
    a("s_waitcnt lgkmcnt(0)")
    a("s_barrier")
    Y = 100
    for st in B_STEPS:
        a("s_barrier")
        for e in st:
            for c in range(4):
                a("ds_read_u16_d16_hi %s, %s offset:%d" % (vr(Y + 4 * e + c), vr(V_OR), c * 4096 + 512 * e))
        for n, e in enumerate(st):
            a("s_waitcnt lgkmcnt(%d)" % min(15, 4 * (len(st) - 1 - n)))
            for c in range(4):
                if EXACT:
                    a("v_add_f32 %s, %s, %s" % (vr(Y + 4 * e + c), vr(Y + 4 * e + c), vr(U + 4 * e + c)))
                else:
                    a("v_fmac_f32 %s, %s, %s" % (vr(Y + 4 * e + c), sr(S_D + c), vr(U + 4 * e + c)))
            a("v_cvt_pk_bf16_f32 %s, %s, %s" % (vr(Y + 4 * e), vr(Y + 4 * e), vr(Y + 4 * e + 1)))
            a("v_cvt_pk_bf16_f32 %s, %s, %s" % (vr(Y + 4 * e + 1), vr(Y + 4 * e + 2), vr(Y + 4 * e + 3)))
            a("buffer_store_dwordx2 %s, %s, %s, %s offen" % (vr(Y + 4 * e, 2), vr(V_GO), sr(SRD_O, 4), "0" if e == 0 else sr(S_W + 8 + e)))
    if STAMPS:
        a("s_add_u32 %s, %s, 4" % (sr(S_WAVE), sr(S_WAVE)))
    stamp_dump()
    a("s_endpgm")


B_STEPS = [[0, 1, 2, 3], [4, 5], [6, 7]]


V_TA = V_TMP + 5
V_TA2 = V_TMP + 6


def write_copies(d, tmp, n):
    imm = 32 + 1024 * n
    a("ds_write_b128 %s, %s offset:%d" % (vr(V_TA), vr(d, 4), imm))
    for k in range(4):
        a("v_alignbit_b32 %s, %s, %s, 16" % (vr(tmp + k), vr(d + k + 1), vr(d + k)))
    a("ds_write_b128 %s, %s offset:%d" % (vr(V_TA), vr(tmp, 4), imm + TCOPY))
    for k in range(4):
        a("v_mov_b32 %s, %s" % (vr(tmp + 8 + k), vr(d + k + 1)))
    a("ds_write_b128 %s, %s offset:%d" % (vr(V_TA), vr(tmp + 8, 4), imm + 2 * TCOPY))
    for k in range(4):
        a("v_alignbit_b32 %s, %s, %s, 16" % (vr(tmp + 4 + k), vr(d + k + 2), vr(d + k + 1)))
    a("ds_write_b128 %s, %s offset:%d" % (vr(V_TA), vr(tmp + 4, 4), imm + 3 * TCOPY))


def write_head(d0, d1, tmp):
    for k in range(4):
        a("v_mov_b32 %s, 0" % vr(tmp + k))
    a("v_lshlrev_b32 %s, 16, %s" % (vr(tmp + 4), vr(d0)))
    a("v_alignbit_b32 %s, %s, %s, 16" % (vr(tmp + 5), vr(d1), vr(d0)))
    a("s_mov_b64 %s, exec" % sr(S_EX, 2))
    a("s_mov_b64 exec, 3")
    for s in range(4):
        a("ds_write_b128 %s, %s offset:%d" % (vr(V_TA), vr(tmp, 4), s * TCOPY))
    a("s_mov_b64 exec, 1")
    a("ds_write_b32 %s, %s offset:%d" % (vr(V_TA), vr(tmp + 4), TCOPY + 28))
    a("ds_write_b32 %s, %s offset:%d" % (vr(V_TA), vr(d0), 2 * TCOPY + 28))
    a("ds_write_b64 %s, %s offset:%d" % (vr(V_TA), vr(tmp + 4, 2), 3 * TCOPY + 24))
    a("s_mov_b64 exec, %s" % sr(S_EX, 2))


def tbase_addr():
    a("s_mul_i32 %s, %s, %d" % (sr(S_T0), sr(S_WAVE), TSZ))
    a("v_lshl_add_u32 %s, %s, 4, %s" % (vr(V_TA), vr(V_LANE), sr(S_T0)))


def d_load(ptr_idx):
    a("s_lshl_b32 %s, %s, 1" % (sr(S_T0), sr(S_CH0)))
    a("s_add_u32 %s, %s, %s" % (sr(S_T0 + 1), sr(PTR(ptr_idx)), sr(S_T0)))
    a("s_addc_u32 %s, %s, 0" % (sr(S_T0 + 2), sr(PTR(ptr_idx) + 1)))
    a("s_load_dwordx4 s[92:95], %s, 0" % sr(S_T0 + 1, 2))


def d_selectors():
    for c in range(8):
        src = 92 + (c >> 1)
        if c & 1:
            a("s_and_b32 %s, %s, 0xffff0000" % (sr(S_D + c), sr(src)))
        else:
            a("s_lshl_b32 %s, %s, 16" % (sr(S_D + c), sr(src)))


class VM:
    def __init__(self):
        self.q = []

    def issue(self, tag):
        self.q.append(tag)

    def wait(self, tag):
        idx = max(i for i, t in enumerate(self.q) if t == tag)
        return "s_waitcnt vmcnt(%d)" % (len(self.q) - 1 - idx)


RAW = [224, 224]
V_PA = 244
V_U = 42
UL = [42, 43, 44, 45, 46, 47, 252, 253]
V_Y = 244
def QA(p): return V_Q + 4 * (p & 1)
V_HA = V_TMP + 4


def unpack(dst, src, c):
    if c & 1:
        return "v_and_b32 %s, 0xffff0000, %s" % (vr(dst), vr(src))
    return "v_lshlrev_b32 %s, 16, %s" % (vr(dst), vr(src))


def raw_loads(p, vm):
    R = RAW[p & 1]
    out = []
    out.append("v_add_u32 %s, %d, %s" % (vr(V_HA), p * 512 * 1280 - 3 * 1280, vr(V_IN)))
    out.append("s_mov_b64 exec, 1")
    for j in range(3):
        out.append("buffer_load_dwordx4 %s, %s, %s, 0 offen offset:%d" % (vr(R + 4 * j, 4), vr(V_HA), sr(SRD_X, 4), 1280 * j))
        vm.issue("raw%d" % p)
    out.append("s_mov_b64 exec, -1")
    out.append("buffer_load_dwordx4 %s, %s, %s, %s offen" % (vr(R + 12, 4), vr(V_IN), sr(SRD_X, 4), sin(p)))
    vm.issue("raw%d" % p)
    out.append("buffer_load_dwordx4 %s, %s, %s, %s offen" % (vr(R + 16, 4), vr(V_IN), sr(SRD_V, 4), sin(p)))
    vm.issue("raw%d" % p)
    return out


def prologue_math(p, vm):
    R = RAW[p & 1]
    out = [vm.wait("raw%d" % p)]
    for j in (2, 1, 0):
        for d in range(4):
            out.append("v_mov_b32_dpp %s, %s wave_shr:1 row_mask:0xf bank_mask:0xf" % (vr(R + 4 * j + d), vr(R + 4 * j + 4 + d)))
    VV = R + 16
    rnd = lambda x: "v_cvt_pk_bf16_f32 %s, 0, %s" % (vr(x), vr(x))
    for t in range(4):
        for c in range(8):
            out.append(unpack(UL[c], R + 4 * t + (c >> 1), c))
        w = lambda c: sr(S_W + 4 * c + 3 - t)
        if EXACT:
            if t == 0:
                for c in range(8):
                    out.append("v_mul_f32 %s, %s, %s" % (vr(V_PA + c), w(c), vr(UL[c])))
                for c in range(8):
                    out.append(rnd(V_PA + c))
            else:
                for c in range(8):
                    out.append("v_mul_f32 %s, %s, %s" % (vr(UL[c]), w(c), vr(UL[c])))
                for c in range(8):
                    out.append(rnd(UL[c]))
                for c in range(8):
                    out.append("v_add_f32 %s, %s, %s" % (vr(V_PA + c), vr(V_PA + c), vr(UL[c])))
                for c in range(8):
                    out.append(rnd(V_PA + c))
        else:
            for c in range(8):
                if t == 0:
                    out.append("v_mul_f32 %s, %s, %s" % (vr(V_PA + c), w(c), vr(UL[c])))
                else:
                    out.append("v_fmac_f32 %s, %s, %s" % (vr(V_PA + c), w(c), vr(UL[c])))
    for c in range(8):
        out.append(unpack(UL[c], VV + (c >> 1), c))
    for c in range(8):
        out.append("v_mul_f32 %s, %s, %s" % (vr(V_PA + c), vr(V_PA + c), vr(UL[c])))
    for d in range(4):
        out.append("v_cvt_pk_bf16_f32 %s, %s, %s" % (vr(V_X + 4 * p + d), vr(V_PA + 2 * d), vr(V_PA + 2 * d + 1)))
    return out


def p_writes(p, prev):
    out = []
    for c in range(8):
        off = c * PCH + (0 if prev else 1024 * (1 - (p & 1)))
        out.append("ds_write_b16%s %s, %s offset:%d" % ("_d16_hi" if c & 1 else "", vr(V_WP if prev else V_WM), vr(V_X + 4 * p + (c >> 1)), off))
    return out


def out_reads(p, Y):
    return ["ds_read_u16_d16_hi %s, %s offset:%d" % (vr(Y + c), vr(V_OR if c < 4 else V_OR2), (c & 3) * TSZ + p * TCOPY) for c in range(8)]


YREG = [0, 0]
def YB(p): return YREG[p & 1]


def epilogue_math(typ, p, vm):
    Y = YB(p)
    out = []
    rnd = lambda x: "v_cvt_pk_bf16_f32 %s, 0, %s" % (vr(x), vr(x))
    for c in range(8):
        out.append(unpack(UL[c], V_X + 4 * p + (c >> 1), c))
    out.append("@Y%d" % p)
    if EXACT:
        for c in range(8):
            out.append("v_mul_f32 %s, %s, %s" % (vr(UL[c]), sr(S_D + c), vr(UL[c])))
        for c in range(8):
            out.append(rnd(UL[c]))
        for c in range(8):
            out.append("v_add_f32 %s, %s, %s" % (vr(Y + c), vr(Y + c), vr(UL[c])))
        if typ == 0:
            for c in range(8):
                out.append(rnd(Y + c))
    else:
        for c in range(8):
            out.append("v_fmac_f32 %s, %s, %s" % (vr(Y + c), sr(S_D + c), vr(UL[c])))
    if typ == 0:
        out.append(vm.wait("q%d" % p))
        for c in range(8):
            out.append(unpack(UL[c], QA(p) + (c >> 1), c))
        for c in range(8):
            out.append("v_mul_f32 %s, %s, %s" % (vr(Y + c), vr(Y + c), vr(UL[c])))
    for d in range(4):
        out.append("v_cvt_pk_bf16_f32 %s, %s, %s" % (vr(Y + d), vr(Y + 2 * d), vr(Y + 2 * d + 1)))
    out.append("buffer_store_dwordx4 %s, %s, %s, %s offen" % (vr(Y, 4), vr(V_GO), sr(SRD_O, 4), sout(p)))
    vm.issue("st%d" % p)
    return out


def q_load(p, vm):
    vm.issue("q%d" % p)
    return "buffer_load_dwordx4 %s, %s, %s, %s offen" % (vr(QA(p), 4), vr(V_IN), sr(SRD_Q, 4), sin(p))


def path_A():
    vm = VM()
    a.c("================= path A : H3 =================")
    srd(SRD_X, PTR(1), 2048 * 1280)
    srd(SRD_V, PTR(2), 2048 * 1280)
    a("s_cmp_ge_u32 %s, 2" % sr(S_WAVE))
    a("s_cbranch_scc1 L_pfd")
    a("s_lshl_b32 %s, %s, 7" % (sr(S_T0), sr(S_I)))
    a("v_add_u32 %s, %s, v0" % (vr(V_TMP + 2), sr(S_T0)))
    a("v_mul_u32_u24 %s, 1280, %s" % (vr(V_TMP + 2), vr(V_TMP + 2)))
    a("s_lshl_b32 %s, %s, 7" % (sr(S_T1), sr(S_COL)))
    a("v_add_u32 %s, %s, %s" % (vr(V_TMP + 2), sr(S_T1), vr(V_TMP + 2)))
    a("buffer_load_dword %s, %s, %s, 0 offen" % (vr(V_TMP + 3), vr(V_TMP + 2), sr(SRD_X, 4)))
    a.lab("L_pfd")
    srd(SRD_Q, PTR(0), 2048 * 1280)
    a("s_add_u32 %s, %s, %s" % (sr(S_T0), sr(S_CH0), sr(S_WAVE)))
    a("s_lshl_b32 %s, %s, 12" % (sr(S_T0), sr(S_T0)))
    a("s_add_u32 %s, %s, %s" % (sr(SRD_T), sr(PTR(4)), sr(S_T0)))
    a("s_addc_u32 %s, %s, 0" % (sr(SRD_T + 1), sr(PTR(4) + 1)))
    a("s_and_b32 %s, %s, 0xffff" % (sr(SRD_T + 1), sr(SRD_T + 1)))
    a("s_mov_b32 %s, 4096" % sr(SRD_T + 2))
    a("s_mov_b32 %s, 0x00020000" % sr(SRD_T + 3))
    TD = V_TC
    a("v_lshlrev_b32 %s, 4, %s" % (vr(V_TMP), vr(V_LANE)))
    def t_load(n):
        a("buffer_load_dwordx4 %s, %s, %s, 0 offen offset:%d" % (vr(TD + 8 * n, 4), vr(V_TMP), sr(SRD_T, 4), 1024 * n))
        a("buffer_load_dwordx2 %s, %s, %s, 0 offen offset:%d" % (vr(TD + 8 * n + 4, 2), vr(V_TMP), sr(SRD_T, 4), 1024 * n + 16))
    t_load(0)
    t_load(1)
    a("s_lshl_b32 %s, %s, 3" % (sr(S_T0), sr(S_CH0)))
    a("s_add_u32 %s, %s, %s" % (sr(S_T0 + 1), sr(PTR(3)), sr(S_T0)))
    a("s_addc_u32 %s, %s, 0" % (sr(S_T0 + 2), sr(PTR(3) + 1)))
    a("s_load_dwordx16 s[20:35], %s, 0" % sr(S_T0 + 1, 2))
    d_load(5)
    tbase_addr()
    a("s_waitcnt lgkmcnt(0)")
    d_selectors()
    for c in range(8):
        for j in range(4):
            src = 20 + 2 * c + (j >> 1)
            dst = S_W + 4 * c + j
            if j & 1:
                a("s_and_b32 %s, %s, 0xffff0000" % (sr(dst), sr(src)))
            else:
                a("s_lshl_b32 %s, %s, 16" % (sr(dst), sr(src)))
    step_offsets()
    RAW[1] = V_PF
    a("s_waitcnt vmcnt(0)")
    stamp_n(1)
    a("s_barrier")
    t_load(2)
    t_load(3)
    for s_ in raw_loads(0, vm):
        a(s_)
    write_head(TD, TD + 1, V_ACC)
    for n in range(2):
        write_copies(TD + 8 * n, V_ACC + 8 + 12 * (n & 1), n)
    if A3:
        for s_ in raw_loads(1, vm):
            a(s_)
    stamp_n(2)
    a("s_waitcnt vmcnt(%d)" % (10 if A3 else 5))
    for n in range(2, 4):
        write_copies(TD + 8 * n, V_ACC + 8 + 12 * (n & 1), n)
    stamp_n(3)
    for s_ in prologue_math(0, vm):
        a(s_)
    if A3:
        for s_ in raw_loads(2, vm):
            a(s_)
        for s_ in prologue_math(1, vm):
            a(s_)
    stamp_n(4)
    conv(0, vm)


def cmul(d, x, y):
    a("v_pk_mul_f32 %s, %s, %s op_sel_hi:[1,0]" % (vr(d, 2), vr(x, 2), vr(y, 2)))
    a("v_pk_fma_f32 %s, %s, %s, %s op_sel:[1,1,0] op_sel_hi:[0,1,1] neg_lo:[1,0,0]" % (vr(d, 2), vr(x, 2), vr(y, 2), vr(d, 2)))


def path_B():
    vm = VM()
    a.lab("L_pathB")
    a.c("================= path B : S4D =================")
    a("s_mul_i32 %s, %s, %d" % (sr(S_T1), sr(S_WAVE), PFULL - PCH))
    a("s_sub_u32 %s, %s, %d" % (sr(S_T1), sr(S_T1), P0 - PB0))
    a("v_add_u32 %s, %s, %s" % (vr(V_P), sr(S_T1), vr(V_P)))
    a("v_add_u32 %s, %s, %s" % (vr(V_O), sr(S_T1), vr(V_O)))
    a("s_mul_i32 %s, %s, %d" % (sr(S_T1), sr(S_WAVE), 4096 - PFULL))
    a("s_add_u32 %s, %s, %d" % (sr(S_T1), sr(S_T1), OB0 - PB0))
    a("v_add_u32 %s, %s, %s" % (vr(V_O2), sr(S_T1), vr(V_O)))
    PRM = 236
    a("s_add_u32 %s, %s, %s" % (sr(S_T0), sr(S_CH0), sr(S_WAVE)))
    a("s_lshl_b32 %s, %s, 8" % (sr(S_T1), sr(S_T0)))
    a("v_lshl_add_u32 %s, %s, 2, %s" % (vr(V_TMP), vr(V_LANE), sr(S_T1)))
    for k in range(6):
        a("global_load_dword %s, %s, %s" % (vr(PRM + k), vr(V_TMP), sr(PTR(7 + k), 2)))
    a("s_barrier")
    a("s_lshl_b32 %s, %s, 1" % (sr(S_T1), sr(S_T0)))
    a("s_and_b32 %s, %s, -4" % (sr(S_T1), sr(S_T1)))
    a("s_add_u32 %s, %s, %s" % (sr(S_W), sr(PTR(13)), sr(S_T1)))
    a("s_addc_u32 %s, %s, 0" % (sr(S_W + 1), sr(PTR(13) + 1)))
    a("s_load_dword %s, %s, 0" % (sr(S_W + 2), sr(S_W, 2)))
    a("s_and_b32 %s, %s, 1" % (sr(S_W + 4), sr(S_T0)))
    a("s_waitcnt lgkmcnt(0)")
    a("s_lshl_b32 %s, %s, 16" % (sr(S_W + 3), sr(S_W + 2)))
    a("s_and_b32 %s, %s, 0xffff0000" % (sr(S_W + 2), sr(S_W + 2)))
    a("s_cmp_eq_u32 %s, 1" % sr(S_W + 4))
    a("s_cselect_b32 %s, %s, %s" % (sr(S_W + 2), sr(S_W + 2), sr(S_W + 3)))
    DT = 242
    a("v_mov_b32 %s, 0x3fb8aa3b" % vr(DT))
    a("v_mul_f32 %s, %s, %s" % (vr(DT), sr(S_W + 2), vr(DT)))
    a("v_exp_f32 %s, %s" % (vr(DT), vr(DT)))
    AW = V_TMP + 1
    AR = V_TMP + 2
    a("s_mul_i32 %s, %s, %d" % (sr(S_T0), sr(S_WAVE), TSZ))
    a("v_cvt_pk_bf16_f32 %s, 0, %s" % (vr(DT), vr(DT)))
    a("v_lshl_add_u32 %s, %s, 3, %s" % (vr(AW), vr(V_LANE), sr(S_T0)))
    a("v_and_b32 %s, 15, %s" % (vr(AR), vr(V_LANE)))
    a("v_mul_u32_u24 %s, %d, %s" % (vr(AR), LROW, vr(AR)))
    a("v_lshrrev_b32 %s, 4, %s" % (vr(V_TMP + 3), vr(V_LANE)))
    a("v_lshl_add_u32 %s, %s, 4, %s" % (vr(AR), vr(V_TMP + 3), vr(AR)))
    a("v_add_u32 %s, %s, %s" % (vr(AR), sr(S_T0), vr(AR)))
    M = [V_S, V_S + 46]
    def AR2(m): return M[m]
    def AI2(m): return M[m] + 1
    def Wv(m): return M[m] + 2
    def Ep(m, phi): return M[m] + 4 + 2 * (phi - 1)
    def Rr(m, j): return M[m] + 18 + 2 * (j - 1)
    def E128(m): return M[m] + 34
    def G(m, i): return M[m] + 36 + 2 * (i & 1)
    def TA(m, n): return M[m] + 40 + 2 * (n % 3)
    CV = V_ACC + 16
    FRB = V_TC
    FRA = V_TC + 32
    FRC = V_S + 4
    KACC = V_ACC
    stamp_n(1)
    a("s_waitcnt vmcnt(0)")
    stamp_n(2)
    for m in range(2):
        def un(dst, src):
            if m == 0:
                a("v_lshlrev_b32 %s, 16, %s" % (vr(dst), vr(src)))
            else:
                a("v_and_b32 %s, 0xffff0000, %s" % (vr(dst), vr(src)))
        un(AR2(m), PRM + 0)
        un(AI2(m), PRM + 1)
        un(TA(m, 0), PRM + 2)
        un(TA(m, 0) + 1, PRM + 3)
        un(TA(m, 1), PRM + 4)
        un(TA(m, 1) + 1, PRM + 5)
    for m in range(2):
        a("v_mul_f32 %s, %s, %s" % (vr(AR2(m)), vr(DT), vr(AR2(m))))
        a("v_mul_f32 %s, %s, %s" % (vr(AI2(m)), vr(DT), vr(AI2(m))))
        a("v_mul_f32 %s, 0x3fb8aa3b, %s" % (vr(AR2(m)), vr(AR2(m))))
        a("v_mul_f32 %s, 0.15915494, %s" % (vr(AI2(m)), vr(AI2(m))))
        a("v_mul_f32 %s, %s, %s" % (vr(TA(m, 0)), vr(DT), vr(TA(m, 0))))
        a("v_mul_f32 %s, %s, %s" % (vr(TA(m, 0) + 1), vr(DT), vr(TA(m, 0) + 1)))
        cmul(Wv(m), TA(m, 1), TA(m, 0))
    mx = CV
    a("v_max_f32 %s, |%s|, |%s|" % (vr(mx), vr(Wv(0)), vr(Wv(0) + 1)))
    a("v_max3_f32 %s, |%s|, |%s|, %s" % (vr(mx), vr(Wv(1)), vr(Wv(1) + 1), vr(mx)))
    dpp = ["row_shr:1 row_mask:0xf", "row_shr:2 row_mask:0xf", "row_shr:4 row_mask:0xf", "row_shr:8 row_mask:0xf", "row_bcast:15 row_mask:0xa", "row_bcast:31 row_mask:0xc"]
    k = 0
    for x, lit in ((1, "1.0"), (8, "0x41000000"), (128, "0x43000000")):
        for m in range(2):
            dst = Ep(m, 1) if x == 1 else Rr(m, 1) if x == 8 else E128(m)
            t = TA(m, 0)
            a("v_mul_f32 %s, %s, %s" % (vr(t), lit, vr(AR2(m))))
            a("v_mul_f32 %s, %s, %s" % (vr(t + 1), lit, vr(AI2(m))))
            a("v_max_f32_dpp %s, %s, %s %s bank_mask:0xf" % (vr(mx), vr(mx), vr(mx), dpp[k])); k += 1
            a("v_exp_f32 %s, %s" % (vr(t), vr(t)))
            a("v_fract_f32 %s, %s" % (vr(t + 1), vr(t + 1)))
            a("v_cos_f32 %s, %s" % (vr(t + 2), vr(t + 1)))
            a("v_sin_f32 %s, %s" % (vr(t + 3), vr(t + 1)))
            a("s_nop 0")
            a("v_mul_f32 %s, %s, %s" % (vr(dst), vr(t), vr(t + 2)))
            a("v_mul_f32 %s, %s, %s" % (vr(dst + 1), vr(t), vr(t + 3)))
    a("v_readlane_b32 %s, %s, 63" % (sr(S_SC), vr(mx)))
    cvi = [0]
    def put(off, p0, p1, neg):
        c = CV + 2 * (cvi[0] & 3); cvi[0] += 1
        n = "-" if neg else ""
        a("v_cvt_pk_f16_f32 %s, %s, %s%s" % (vr(c), vr(p0), n, vr(p0 + 1)))
        a("v_cvt_pk_f16_f32 %s, %s, %s%s" % (vr(c + 1), vr(p1), n, vr(p1 + 1)))
        a("ds_write_b64 %s, %s offset:%d" % (vr(AW), vr(c, 2), off))
    a("v_mov_b32 %s, 0x3c00" % vr(CV + 6))
    a("v_mov_b32 %s, 0x3c00" % vr(CV + 7))
    a("ds_write_b64 %s, %s offset:0" % (vr(AW), vr(CV + 6, 2)))
    a("s_and_b32 %s, %s, 0x7f800000" % (sr(S_SC), sr(S_SC)))
    a("s_sub_u32 %s, 0x7f000000, %s" % (sr(S_T0), sr(S_SC)))
    for m in range(2):
        a("v_mul_f32 %s, %s, %s" % (vr(Wv(m)), sr(S_T0), vr(Wv(m))))
        a("v_mul_f32 %s, %s, %s" % (vr(Wv(m) + 1), sr(S_T0), vr(Wv(m) + 1)))
    put(LROW, Rr(0, 1), Rr(1, 1), True)
    for j in range(2, 9):
        for m in range(2):
            cmul(Rr(m, j), Rr(m, j // 2), Rr(m, j - j // 2))
        put(j * LROW, Rr(0, j), Rr(1, j), True)
    for j in range(9, 16):
        for m in range(2):
            cmul(TA(m, j), Rr(m, 8), Rr(m, j - 8))
        put(j * LROW, TA(0, j), TA(1, j), True)
    for kp in range(8):
        a("ds_read_b128 %s, %s offset:%d" % (vr(FRB + 4 * kp, 4), vr(AR), 64 * kp))
    for phi in range(2, 8):
        for m in range(2):
            cmul(Ep(m, phi), Ep(m, phi // 2), Ep(m, phi - phi // 2))
    def lrow_off(row):
        return (KBUF if (row >> 4) != 1 else 0) + (row & 15) * LROW
    cur = [Wv(0), Wv(1)]
    tn = [0]
    for i in range(17):
        if i < 2:
            rows = [(8 * i + phi, phi) for phi in range(8)]
        elif i < 4:
            rows = [(16 + 4 * (i - 2) + f, 2 * f) for f in range(4)]
        elif i < 8:
            rows = [(24 + 2 * (i - 4) + f, 4 * f) for f in range(2)]
        else:
            rows = [(32 + (i - 8), 0)]
        if i == 2:
            for kp in range(8):
                a("ds_read_b128 %s, %s offset:%d" % (vr(FRA + 4 * kp, 4), vr(AR), KBUF + 64 * kp))
        if i == 8:
            for kp in range(8):
                a("ds_read_b128 %s, %s offset:%d" % (vr(FRA + 4 * kp, 4), vr(AR), 64 * kp))
        nxt = [G(0, i), G(1, i)]
        if i < 16:
            for m in range(2):
                cmul(nxt[m], cur[m], E128(m))
        for n, (row, phi) in enumerate(rows):
            if phi == 0:
                put(lrow_off(row), cur[0], cur[1], False)
            else:
                for m in range(2):
                    cmul(TA(m, tn[0]), cur[m], Ep(m, phi))
                put(lrow_off(row), TA(0, tn[0]), TA(1, tn[0]), False)
                tn[0] += 1
            if 22 <= row < 30:
                kp = row - 22
                if kp == 0:
                    a("s_waitcnt lgkmcnt(7)")
                a("v_mfma_f32_16x16x32_f16 %s, %s, %s, %s" % (vr(KACC, 4), vr(FRA + 4 * kp, 4), vr(FRB + 4 * kp, 4), "0" if kp == 0 else vr(KACC, 4)))
        cur = nxt
    for kp in range(8):
        a("ds_read_b128 %s, %s offset:%d" % (vr(FRC + 4 * kp, 4), vr(AR), KBUF + 64 * kp))
    j, g = V_TMP, V_TMP + 3
    A0, A1, A1b, A2 = V_S, V_S + 1, V_S + 2, V_S + 3
    a("v_and_b32 %s, 15, %s" % (vr(j), vr(V_LANE)))
    a("s_mul_i32 %s, %s, %d" % (sr(S_T1), sr(S_WAVE), TSZ))
    a("v_lshrrev_b32 %s, 1, %s" % (vr(A0), vr(g)))
    a("v_lshlrev_b32 %s, 7, %s" % (vr(A0), vr(A0)))
    a("v_and_b32 %s, 1, %s" % (vr(A1), vr(g)))
    a("v_lshl_add_u32 %s, %s, 2, %s" % (vr(A0), vr(A1), vr(A0)))
    a("v_lshl_add_u32 %s, %s, 3, %s" % (vr(A0), vr(j), vr(A0)))
    a("v_lshl_add_u32 %s, %s, 1, %s" % (vr(A0), vr(A0), sr(S_T1)))
    a("v_lshlrev_b32 %s, 6, %s" % (vr(A2), vr(g)))
    a("v_cmp_gt_u32 vcc, 2, %s" % vr(g))
    a("v_lshlrev_b32 %s, 2, %s" % (vr(A1), vr(j)))
    a("v_lshlrev_b32 %s, 1, %s" % (vr(A1b), vr(j)))
    a("v_cndmask_b32 %s, %s, %s, vcc" % (vr(A1), vr(A1b), vr(A1)))
    a("s_waitcnt lgkmcnt(8)")
    for kp in range(8):
        a("v_mfma_f32_16x16x32_f16 %s, %s, %s, %s" % (vr(KACC + 4, 4), vr(FRA + 4 * kp, 4), vr(FRB + 4 * kp, 4), "0" if kp == 0 else vr(KACC + 4, 4)))
    a("s_waitcnt lgkmcnt(0)")
    for kp in range(8):
        a("v_mfma_f32_16x16x32_f16 %s, %s, %s, %s" % (vr(KACC + 8, 4), vr(FRC + 4 * kp, 4), vr(FRB + 4 * kp, 4), "0" if kp == 0 else vr(KACC + 8, 4)))
    a("v_add_u32 %s, %s, %s" % (vr(A1), vr(A1), vr(A2)))
    a("v_add_u32 %s, 256, %s" % (vr(A1), vr(A1)))
    a("v_mov_b32 %s, 32" % vr(A1b))
    a("v_cndmask_b32 %s, %s, 2, vcc" % (vr(A1b), vr(A1b)))
    a("v_add_u32 %s, %s, %s" % (vr(A1b), vr(A1b), vr(A1)))
    a("v_lshl_add_u32 %s, %s, 1, %s" % (vr(A1), vr(A1), sr(S_T1)))
    a("v_lshl_add_u32 %s, %s, 1, %s" % (vr(A1b), vr(A1b), sr(S_T1)))
    a("v_add3_u32 %s, %s, %s, %s" % (vr(A2), vr(A2), vr(j), "64"))
    a("v_add_u32 %s, 448, %s" % (vr(A2), vr(A2)))
    a("v_lshl_add_u32 %s, %s, 1, %s" % (vr(A2), vr(A2), sr(S_T1)))
    stamp_n(3)
    for k in range(12):
        a("v_mul_f32 %s, %s, %s" % (vr(KACC + k), sr(S_SC), vr(KACC + k)))
    pk = KACC + 12
    for k in range(6):
        a("v_cvt_pk_bf16_f32 %s, %s, %s" % (vr(pk + k), vr(KACC + 2 * k), vr(KACC + 2 * k + 1)))
    a("ds_write_b64 %s, %s offset:0" % (vr(A0), vr(pk, 2)))
    a("ds_write_b32 %s, %s offset:0" % (vr(A1), vr(pk + 2)))
    a("ds_write_b32 %s, %s offset:0" % (vr(A1b), vr(pk + 3)))
    a("ds_write_b16 %s, %s offset:0" % (vr(A2), vr(pk + 4)))
    a("ds_write_b16_d16_hi %s, %s offset:32" % (vr(A2), vr(pk + 4)))
    a("ds_write_b16 %s, %s offset:64" % (vr(A2), vr(pk + 5)))
    a("ds_write_b16_d16_hi %s, %s offset:96" % (vr(A2), vr(pk + 5)))
    a.c("---- expand the staircase into the four shifted copies ----")
    tbase_addr()
    D = V_TC
    H = V_TC + 32
    a("v_lshl_add_u32 %s, %s, 4, %s" % (vr(V_TMP), vr(V_LANE), sr(S_T1)))
    a("v_lshl_add_u32 %s, %s, 3, %s" % (vr(V_TMP + 1), vr(V_LANE), sr(S_T1)))
    a("v_lshl_add_u32 %s, %s, 2, %s" % (vr(V_TMP + 2), vr(V_LANE), sr(S_T1)))
    a("v_lshl_add_u32 %s, %s, 1, %s" % (vr(V_TMP + 3), vr(V_LANE), sr(S_T1)))
    a("s_mov_b32 %s, 0x01000100" % sr(S_K0))
    a("s_mov_b32 %s, 0x03020302" % sr(S_K1))
    a("ds_read_b128 %s, %s" % (vr(D, 4), vr(V_TMP)))
    a("ds_read_b64 %s, %s offset:16" % (vr(D + 4, 2), vr(V_TMP)))
    a("ds_read_b64 %s, %s offset:256" % (vr(H, 2), vr(V_TMP + 1)))
    a("ds_read_b32 %s, %s offset:264" % (vr(H + 2), vr(V_TMP + 1)))
    a("ds_read_b32 %s, %s offset:%d" % (vr(H + 4), vr(V_TMP + 2), 2 * 384))
    a("ds_read_b32 %s, %s offset:%d" % (vr(H + 5), vr(V_TMP + 2), 2 * 384 + 4))
    for n in (2, 3):
        o = 2 * (512 + 64 * (n - 2))
        a("ds_read_u16 %s, %s offset:%d" % (vr(H + 6 + 2 * (n - 2)), vr(V_TMP + 3), o))
        a("ds_read_u16 %s, %s offset:%d" % (vr(H + 7 + 2 * (n - 2)), vr(V_TMP + 3), o + 2))
    a("v_and_b32 %s, 1, %s" % (vr(V_TMP), vr(V_LANE)))
    a("v_cmp_eq_u32 vcc, 0, %s" % vr(V_TMP))
    a("s_waitcnt lgkmcnt(0)")
    a("s_mov_b32 exec_hi, 0")
    a("s_mov_b32 exec_lo, 0x80000000")
    a("v_lshrrev_b32 %s, 16, %s" % (vr(D + 5), vr(D + 4)))
    a("v_perm_b32 %s, %s, %s, %s" % (vr(D + 4), vr(D + 4), vr(D + 4), sr(S_K0)))
    a("s_mov_b32 exec_lo, 0")
    a("s_mov_b32 exec_hi, -1")
    a("v_perm_b32 %s, %s, %s, %s" % (vr(D), vr(H), vr(H), sr(S_K0)))
    a("v_alignbit_b32 %s, %s, %s, 16" % (vr(D + 1), vr(H + 1), vr(H)))
    a("v_perm_b32 %s, %s, %s, %s" % (vr(D + 2), vr(H + 1), vr(H + 1), sr(S_K0)))
    a("v_alignbit_b32 %s, %s, %s, 16" % (vr(D + 3), vr(H + 2), vr(H + 1)))
    a("v_perm_b32 %s, %s, %s, %s" % (vr(D + 4), vr(H + 2), vr(H + 2), sr(S_K0)))
    a("v_lshrrev_b32 %s, 16, %s" % (vr(D + 5), vr(H + 2)))
    a("s_mov_b32 exec_hi, 0x80000000")
    a("v_mov_b32 %s, %s" % (vr(D + 5), vr(D + 4)))
    a("s_mov_b64 exec, -1")
    write_head(D, D + 1, V_S + 8)
    write_copies(D, V_S + 16, 0)
    D2 = D + 8
    a("v_perm_b32 %s, %s, %s, %s" % (vr(D2), vr(H + 4), vr(H + 4), sr(S_K0)))
    a("v_mov_b32 %s, %s" % (vr(D2 + 1), vr(H + 4)))
    a("v_perm_b32 %s, %s, %s, %s" % (vr(D2 + 2), vr(H + 4), vr(H + 4), sr(S_K1)))
    for k in (3, 4, 5):
        a("v_perm_b32 %s, %s, %s, %s" % (vr(D2 + k), vr(H + 5), vr(H + 5), sr(S_K0)))
    write_copies(D2, V_S + 28, 1)
    for n in (2, 3):
        D3 = D + 8 * n
        ra, rb_ = H + 6 + 2 * (n - 2), H + 7 + 2 * (n - 2)
        a("v_lshl_or_b32 %s, %s, 16, %s" % (vr(D3), vr(ra), vr(ra)))
        a("v_lshl_or_b32 %s, %s, 16, %s" % (vr(D3 + 1), vr(ra), vr(ra)))
        for k in (3, 4, 5):
            a("v_lshl_or_b32 %s, %s, 16, %s" % (vr(D3 + k), vr(rb_), vr(rb_)))
        a("v_cndmask_b32 %s, %s, %s, vcc" % (vr(ra), vr(rb_), vr(ra)))
        a("v_lshl_or_b32 %s, %s, 16, %s" % (vr(D3 + 2), vr(rb_), vr(ra)))
        write_copies(D3, V_S + 16 + 12 * (n & 1), n)
    stamp_n(4)
    conv(1, vm)


DELAY = [int(x) for x in os.environ.get("DELAY", "12,0").split(",")]
MBAR_R = int(os.environ.get("MBAR_R", "1"))


def conv(typ, vm):
    T = "AB"[typ]
    a.c("================= convolution (%s) =================" % T)
    steps = [[0, 1], [2, 3], [4, 5], [6, 7]] if typ == 0 and not A3 else B_STEPS
    pstride = 8 if typ == 0 and not A3 else 16
    RAW[1] = RAW[0]
    if typ == 0 and not A3:
        YREG[0], YREG[1] = V_PF + 16, V_PF + 24
    else:
        YREG[0], YREG[1] = V_Y, RAW[0]

    def preg(r, d): return V_PF + pstride * (r & 1) + 4 * d

    def p_reads(si, r):
        return [("ds_read_b128 %s, %s offset:%d" % (vr(preg(r, d), 4), vr(V_P), (1536 - 512 * (w & 3) if typ == 0 else 3584 - 512 * w) + 64 * r), ("P", si, r, d)) for d, w in enumerate(steps[si])]

    def treg(r, u):
        return V_TC + 8 * r + 4 * u if u < 2 else V_TF + 24 * (r & 1) + 4 * (u - 2)

    def t_reads(si, r):
        out = []
        for u in range(0 if si == 0 else 2, 8 - steps[si][0]):
            for hh in range(2):
                out.append(("ds_read_b64 %s, %s offset:%d" % (vr(treg(r, u) + 2 * hh, 2), vr(V_T), 512 * u + 64 * r + 8 * hh), ("T", si, r, u, hh)))
        return out

    lq = []
    state = {"done": -1}

    def need(*tags):
        idx = -1
        for tag in tags:
            idxs = [i for i, t in enumerate(lq) if t == tag]
            if idxs:
                idx = max(idx, idxs[-1])
        if idx <= state["done"]:
            return
        n = len(lq) - 1 - idx
        a("s_waitcnt lgkmcnt(%d)" % min(n, 15))
        state["done"] = len(lq) - 1 - min(n, 15)

    def drain():
        a("s_waitcnt lgkmcnt(0)")
        state["done"] = len(lq) - 1

    def emit(s_, tag=None):
        if s_.startswith("@Y"):
            need(("Y", int(s_[2:]), 7))
            return
        a(s_)
        if s_.startswith("ds_"):
            lq.append(tag)

    def deposit(si):
        for c in steps[si]:
            acc = V_ACC + 4 * c
            a("v_cvt_pk_bf16_f32 %s, %s, %s" % (vr(acc), vr(acc), vr(acc + 1)))
            a("v_cvt_pk_bf16_f32 %s, %s, %s" % (vr(acc + 1), vr(acc + 2), vr(acc + 3)))
            emit("ds_write_b64 %s, %s offset:%d" % (vr(V_O2), vr(acc, 2), (c >> 1) * TCOPY + 512 * (c & 1) if typ == 0 else 512 * c), "D")

    a("v_mov_b32 %s, 0" % vr(V_ACC))
    a("v_mov_b32 %s, 0" % vr(V_ACC + 1))
    if typ == 0:
        for s_ in p_writes(0, False) + (p_writes(1, False) if A3 else []):
            emit(s_)
        emit("ds_write_b64 %s, %s offset:2048" % (vr(V_O), vr(V_ACC, 2)))
    else:
        a("v_and_b32 %s, 15, %s" % (vr(V_TMP + 3), vr(V_LANE)))
        a("v_cmp_gt_u32 vcc, 15, %s" % vr(V_TMP + 3))
        a("s_and_saveexec_b64 %s, vcc" % sr(S_EX, 2))
        emit("ds_write_b64 %s, %s offset:4096" % (vr(V_O), vr(V_ACC, 2)))
        a("s_mov_b64 exec, %s" % sr(S_EX, 2))
    for s_, tg in t_reads(0, 0):
        emit(s_, tg)
    if typ == 0 and not A3:
        for s_ in raw_loads(1, vm):
            a(s_)
    drain()
    stamp_n(5)
    a("s_barrier")
    for x in p_reads(0, 0):
        emit(*x)

    touched = set()
    pending = []
    for si, st in enumerate(steps):
        a.c("---- step %d ----" % si)
        stamp_n(6 + 2 * si)
        for p in pending:
            for c, s_ in enumerate(out_reads(p, YB(p))):
                emit(s_, ("Y", p, c))
        fill = []
        if typ == 0 and A3:
            if si == 0:
                fill += ["@S"] * 30
                fill += prologue_math(2, vm)
                fill += raw_loads(3, vm)
                fill.append(q_load(0, vm))
                fill.append(q_load(1, vm))
                fill += ["@S"] * 20
                fill += prologue_math(3, vm)
            elif si == 1:
                fill += epilogue_math(typ, 0, vm)
                fill.append(q_load(2, vm))
                fill += epilogue_math(typ, 1, vm)
                fill.append(q_load(3, vm))
            else:
                fill += epilogue_math(typ, 2, vm)
        elif typ == 0:
            if si == 0:
                fill.append(q_load(0, vm))
                fill += ["@S"] * DELAY[0]
                fill += prologue_math(1, vm)
                fill += raw_loads(2, vm)
                fill += p_writes(1, False)
                fill += ["@S"] * DELAY[1]
                fill += prologue_math(2, vm)
                fill += raw_loads(3, vm)
            elif si == 1:
                fill.append(q_load(1, vm))
                fill += epilogue_math(typ, 0, vm)
                fill += prologue_math(3, vm)
            else:
                fill.append(q_load(si, vm))
                fill += epilogue_math(typ, si - 1, vm)
        pending = sorted(set(c >> 1 for c in st)) if typ == 0 else []
        fi = 0
        ms = [(u + w, u, d) for u in range(8 - st[0]) for d, w in enumerate(st) if u + w <= 7]
        lastdep = max(i for i, m in enumerate(ms) if m[0] in st)
        early = lastdep + 5 < len(ms)
        rewrite = st[-1] == 3 and typ == 0
        vis = st[0] >= 4 or typ == 1
        last = si == len(steps) - 1
        for r in range(8):
            if r < 7:
                nxt = p_reads(si, r + 1) + t_reads(si, r + 1)
            elif last:
                nxt = []
            else:
                nxt = t_reads(si + 1, 0)
                if vis:
                    nxt = p_reads(si + 1, 0) + nxt
            for i, (c, u, d) in enumerate(ms):
                acc = V_ACC + 4 * c
                src = vr(acc, 4) if c in touched else "0"
                touched.add(c)
                need(("P", si, r, d), ("T", si, r, u, 1))
                a("v_mfma_f32_16x16x32_bf16 %s, %s, %s, %s" % (vr(acc, 4), vr(treg(r, u), 4), vr(preg(r, d), 4), src))
                lo = (i * len(nxt) + len(ms) - 1) // len(ms) if len(nxt) > len(ms) else i
                hi = len(nxt) if i == len(ms) - 1 else (((i + 1) * len(nxt) + len(ms) - 1) // len(ms) if len(nxt) > len(ms) else i + 1)
                for k in range(lo, min(hi, len(nxt))):
                    emit(*nxt[k])
                n = 0
                while fi < len(fill) and (n < FILL or fill[fi - 1].startswith("s_mov_b64 exec, 1") or (fill[fi - 1].startswith("buffer_load") and V_HA_STR in fill[fi - 1])):
                    if fill[fi] == "@S":
                        fi += 1
                        break
                    emit(fill[fi], "x"); fi += 1; n += 1
                if r == 7 and early and i == lastdep + 4:
                    a("s_nop 3")
                    deposit(si)
        while fi < len(fill):
            if fill[fi] != "@S":
                emit(fill[fi], "x")
            fi += 1
        stamp_n(7 + 2 * si)
        if not early:
            a("s_nop 7")
            a("s_nop 1")
            deposit(si)
        if vis:
            need("D")
        else:
            drain()
        a("s_barrier")
        if rewrite:
            for p in (2, 3):
                for s_ in p_writes(p, False):
                    emit(s_)
            for s_ in p_writes(1, True):
                emit(s_)
            drain()
            a("s_barrier")
        if not vis:
            for x in p_reads(si + 1, 0):
                emit(*x)
    stamp_n(14)
    for p in pending:
        for c, s_ in enumerate(out_reads(p, YB(p))):
            emit(s_, ("Y", p, c))
    for p in pending:
        for s_ in epilogue_math(typ, p, vm):
            emit(s_, "x")
    stamp_dump()
    a("s_endpgm")


V_HA_STR = ", v%d, " % V_HA

header()
prologue_common()
path_A()
path_B()
helper()
footer()
out = sys.argv[1] if len(sys.argv) > 1 else "concat_heads__ssm_conv_h3__ssm_conv_s4__prompt.s"
open(out, "w").write(a.text())
print("wrote", out, len(a.l), "lines")
```

```python
import os
import sys

NAME = "concat_heads__ssm_conv_h3__ssm_conv_s4__prompt_kernel"
MODE = sys.argv[2] if len(sys.argv) > 2 else ""
STAMPS = MODE in ("stamps", "dbgt")
EXACT = int(os.environ.get("EXACT", "1"))
START = int(os.environ.get("START", "0"))
A3 = int(os.environ.get("A3", "0"))
UAT = [int(x) for x in os.environ.get("UAT", "8,11,14,16").split(",")]
TORDER = int(os.environ.get("TORDER", "0"))
CODEPF = int(os.environ.get("CODEPF", "0"))
SPREAD = int(os.environ.get("SPREAD", "1"))
RPM = int(os.environ.get("RPM", "2"))
FILL = int(os.environ.get("FILL", "2"))

TCOPY = 4160
TSZ = 16896
P0 = 8 * TSZ
PCH = 2560
LDS_TOTAL = P0 + 8 * PCH
OUTOFF = 3136
LROW = 528
KBUF = 16 * LROW


class A:
    def __init__(self):
        self.l = []

    def __call__(self, s):
        self.l.append("    " + s)

    def lab(self, s):
        self.l.append(s + ":")

    def c(self, s):
        self.l.append("    ; " + s)

    def text(self):
        return "\n".join(self.l) + "\n"


def vr(b, n=1):
    return "v%d" % b if n == 1 else "v[%d:%d]" % (b, b + n - 1)


def sr(b, n=1):
    return "s%d" % b if n == 1 else "s[%d:%d]" % (b, b + n - 1)


a = A()

S_TYPE = 3
S_PTR = 4
def PTR(i): return S_PTR + 2 * i
S_WAVE = 40
S_COL = 41
S_I = 42
S_CH0 = 43
SRD_X = 44
SRD_V = 48
SRD_Q = 52
SRD_T = 56
SRD_O = 60
S_W = 64
S_D = 4
S_ONES = 96
S_HJ = 97
S_T0 = 99
S_T1 = 100
S_T2 = 101
S_EX = 20
S_SC = 22
S_IN1 = 23
S_OUT1 = 32
S_K0 = 26
S_K1 = 27

V_LANE = 1
V_T = 2
V_P = 3
V_O = 4
V_WM = 5
V_OR = 6
V_GO = 7
V_IN = 8
V_TMP = 9
V_WP = 255
V_X = 16
V_Q = 32
V_OR2 = 40
V_O2 = 41
V_ACC = 48
V_TC = 80
V_TF = 144
V_PF = 192
V_S = 144
V_ST = 254
NVGPR = 256


def stamp_n(n):
    if not STAMPS:
        return
    a("s_memrealtime s[36:37]")
    a("s_waitcnt lgkmcnt(0)")
    a("v_writelane_b32 %s, s36, %d" % (vr(V_ST), n))
    a("s_memtime s[36:37]")
    a("s_waitcnt lgkmcnt(0)")
    a("v_writelane_b32 %s, s36, %d" % (vr(V_ST), n + 16))


_dd = [0]
def stamp_dump():
    if not STAMPS:
        return
    a("s_waitcnt vmcnt(0)")
    stamp_n(15)
    if MODE == "dbgt":
        a("s_load_dwordx2 s[36:37], s[0:1], 128")
        a("s_cmp_lg_u32 %s, 0" % sr(S_WAVE))
        a("s_cbranch_scc1 L_end")
        a("s_cmp_lg_u32 s2, %d" % (0 if _dd[0] == 0 else 130))
        a("s_cbranch_scc1 L_end")
        for k, ln in enumerate((0, 1, 6, 15, 16, 17, 22, 31)):
            a("v_readlane_b32 s38, %s, %d" % (vr(V_ST), ln))
            a("s_nop 3")
            a("v_mov_b32 %s, s38" % vr(V_S + k))
        a("v_mov_b32 %s, %d" % (vr(V_ST + 1), 32 * _dd[0]))
        a("s_waitcnt lgkmcnt(0)")
        a("s_mov_b64 exec, 1")
        a("global_store_dwordx4 %s, %s, s[36:37]" % (vr(V_ST + 1), vr(V_S, 4)))
        a("global_store_dwordx4 %s, %s, s[36:37] offset:16" % (vr(V_ST + 1), vr(V_S + 4, 4)))
        _dd[0] += 1
        return
    a("s_load_dwordx2 s[36:37], s[0:1], 136")
    a("s_lshl_b32 s38, s2, 3")
    a("s_add_u32 s38, s38, %s" % sr(S_WAVE))
    a("s_lshl_b32 s38, s38, 8")
    a("v_lshl_add_u32 %s, %s, 2, s38" % (vr(V_ST + 1), vr(V_LANE)))
    a("s_waitcnt lgkmcnt(0)")
    a("global_store_dword %s, %s, s[36:37]" % (vr(V_ST + 1), vr(V_ST)))


def header():
    a.l.append("; fused H3 (shift-SSM * v -> long conv -> gate) and S4D (kernel generation + long conv), one launch")
    a.l.append("; @launch grid=(256,1,1) block=(512,1,1) lds=%d" % LDS_TOTAL)
    a.l.append('.amdgcn_target "amdgcn-amd-amdhsa--gfx950"')
    a.l.append(".text")
    a.l.append(".globl " + NAME)
    a.l.append(".p2align 8")
    a.l.append(".type %s,@function" % NAME)
    a.lab(NAME)


def footer():
    a.lab("L_end")
    a("s_endpgm")
    a.l.append('.section .rodata,"a"')
    a.l.append(".p2align 6")
    a.l.append(".amdhsa_kernel " + NAME)
    a.l.append("  .amdhsa_next_free_vgpr %d" % NVGPR)
    a.l.append("  .amdhsa_next_free_sgpr 102")
    a.l.append("  .amdhsa_accum_offset %d" % NVGPR)
    a.l.append("  .amdhsa_group_segment_fixed_size 0")
    a.l.append("  .amdhsa_kernarg_size 144")
    a.l.append("  .amdhsa_user_sgpr_count 2")
    a.l.append("  .amdhsa_user_sgpr_kernarg_segment_ptr 1")
    a.l.append("  .amdhsa_system_sgpr_workgroup_id_x 1")
    a.l.append(".end_amdhsa_kernel")


def srd(d, plo, nbytes):
    a("s_mov_b32 %s, %s" % (sr(d), sr(plo)))
    a("s_and_b32 %s, %s, 0xffff" % (sr(d + 1), sr(plo + 1)))
    a("s_mov_b32 %s, 0x%x" % (sr(d + 2), nbytes))
    a("s_mov_b32 %s, 0x00020000" % sr(d + 3))


SLOTS = [
    [0x00, 0x02, 0x04, 0x05, 0x06, 0x07, 0x08, 0x09],
    [0x01, 0x03, 0x22, 0x24, 0x26, 0x28, 0x2a, 0x2c],
    [0x20, 0x21, 0x23, 0x25, 0x27, 0x29, 0x2b, 0x2d],
    [0x40, 0x40, 0x30, 0x31, 0x32, 0x33, 0x2e, 0x2f],
]
HJOB = [
    [0, 0, 0, 0, 0, 0, 0, 0],
    [0, 0, 4 * 8 + 1, 5 * 8 + 1, 6 * 8 + 1, 7 * 8 + 1, 8 * 8 + 1, 9 * 8 + 1],
    [0 * 8 + 7, 2 * 8 + 7, 4 * 8 + 2, 5 * 8 + 2, 6 * 8 + 2, 7 * 8 + 2, 8 * 8 + 2, 9 * 8 + 2],
    [1 * 8 + 7, 3 * 8 + 7, 4 * 8 + 4, 5 * 8 + 4, 6 * 8 + 4, 7 * 8 + 4, 8 * 8 + 4, 9 * 8 + 4],
]


def prologue_common():
    a.c("---- decode workgroup -> (type, column, index) ----")
    a("s_cmp_ge_u32 s2, 256")
    a("s_cbranch_scc1 L_end")
    a("s_load_dwordx16 %s, s[0:1], 0" % sr(S_PTR, 16))
    a("s_load_dwordx16 %s, s[0:1], 64" % sr(S_PTR + 16, 16))
    if os.environ.get("BADMAP"):
        a("s_lshr_b32 %s, s2, 5" % sr(S_T0))
        a("s_and_b32 %s, s2, 31" % sr(S_T1))
    else:
        a("s_and_b32 %s, s2, 7" % sr(S_T0))
        a("s_lshr_b32 %s, s2, 3" % sr(S_T1))
    a("s_and_b32 %s, %s, 7" % (sr(S_I), sr(S_T1)))
    a("s_lshr_b32 %s, %s, 3" % (sr(S_T1), sr(S_T1)))
    def pk(t, lo): return sum(t[lo + i] << (8 * i) for i in range(4))
    a("s_and_b32 %s, %s, 3" % (sr(S_TYPE), sr(S_T0)))
    a("s_lshl_b32 %s, %s, 3" % (sr(S_TYPE), sr(S_TYPE)))
    for dst, tab in ((S_COL, SLOTS), (S_HJ, HJOB)):
        a("s_mov_b32 %s, 0x%x" % (sr(dst), pk(tab[0], 0)))
        a("s_mov_b32 %s, 0x%x" % (sr(S_T2), pk(tab[0], 4)))
        for k in (1, 2, 3):
            a("s_cmp_eq_u32 %s, %d" % (sr(S_T1), k))
            a("s_cselect_b32 %s, 0x%x, %s" % (sr(dst), pk(tab[k], 0), sr(dst)))
            a("s_cselect_b32 %s, 0x%x, %s" % (sr(S_T2), pk(tab[k], 4), sr(S_T2)))
        a("s_cmp_ge_u32 %s, 4" % sr(S_T0))
        a("s_cselect_b32 %s, %s, %s" % (sr(dst), sr(S_T2), sr(dst)))
        a("s_lshr_b32 %s, %s, %s" % (sr(dst), sr(dst), sr(S_TYPE)))
        a("s_and_b32 %s, %s, 0xff" % (sr(dst), sr(dst)))
    a("s_lshr_b32 %s, %s, 5" % (sr(S_TYPE), sr(S_COL)))
    a("s_and_b32 %s, %s, 31" % (sr(S_COL), sr(S_COL)))
    a("s_lshl_b32 %s, %s, 3" % (sr(S_CH0), sr(S_COL)))
    a("s_add_u32 %s, %s, %s" % (sr(S_CH0), sr(S_CH0), sr(S_I)))
    a("s_cmp_eq_u32 %s, 1" % sr(S_TYPE))
    a("s_cselect_b32 %s, 2, 3" % sr(S_T0))
    a("s_lshl_b32 %s, %s, %s" % (sr(S_CH0), sr(S_CH0), sr(S_T0)))
    if CODEPF:
        a("s_cmp_lg_u32 %s, 0" % sr(S_I))
        a("s_cbranch_scc1 L_pcs")
        a("s_getpc_b64 s[36:37]")
        a.lab("L_pc")
        a("v_lshlrev_b32 %s, 7, v0" % vr(V_TMP + 1))
        a("v_mov_b32 %s, s37" % vr(V_TMP + 4))
        a("v_min_u32 %s, L_end-L_pc, %s" % (vr(V_TMP + 1), vr(V_TMP + 1)))
        a("v_add_co_u32 %s, vcc, s36, %s" % (vr(V_TMP + 3), vr(V_TMP + 1)))
        a("s_nop 1")
        a("v_addc_co_u32 %s, vcc, 0, %s, vcc" % (vr(V_TMP + 4), vr(V_TMP + 4)))
        a("v_cmp_gt_u32 vcc, 256, v0")
        a("s_and_saveexec_b64 s[38:39], vcc")
        a("s_cbranch_execz L_pcd")
        a("global_load_dword %s, %s, off" % (vr(253), vr(V_TMP + 3, 2)))
        a.lab("L_pcd")
        a("s_mov_b64 exec, s[38:39]")
        a.lab("L_pcs")
    a("v_lshrrev_b32 %s, 6, v0" % vr(V_TMP))
    a("v_and_b32 %s, 63, v0" % vr(V_LANE))
    a("s_mov_b32 %s, 0x3f803f80" % sr(S_ONES))
    a("v_readfirstlane_b32 %s, %s" % (sr(S_WAVE), vr(V_TMP)))
    a("s_nop 3")
    a("s_cmp_eq_u32 %s, 0" % sr(S_TYPE))
    a("s_cbranch_scc1 L_addr")
    a("s_cmp_ge_u32 %s, 4" % sr(S_WAVE))
    a("s_cbranch_scc1 L_helper")
    a("s_cmp_eq_u32 %s, 2" % sr(S_TYPE))
    a("s_cbranch_scc1 L_end")
    a.lab("L_addr")
    a.c("---- per-lane addresses ----")
    t0, t1, t2, t3 = V_TMP, V_TMP + 1, V_TMP + 2, V_TMP + 3
    a("v_and_b32 %s, 15, %s" % (vr(t0), vr(V_LANE)))
    a("v_lshrrev_b32 %s, 4, %s" % (vr(t1), vr(V_LANE)))
    a("v_add_u32 %s, 1, %s" % (vr(t2), vr(t0)))
    a("v_and_b32 %s, 3, %s" % (vr(t3), vr(t2)))
    a("v_sub_u32 %s, %s, %s" % (vr(t2), vr(t2), vr(t3)))
    a("v_lshlrev_b32 %s, 1, %s" % (vr(t2), vr(t2)))
    a("v_mul_u32_u24 %s, %d, %s" % (vr(t3), TCOPY, vr(t3)))
    a("v_add_u32 %s, %s, %s" % (vr(t2), vr(t2), vr(t3)))
    a("v_lshl_add_u32 %s, %s, 4, %s" % (vr(t2), vr(t1), vr(t2)))
    a("s_mul_i32 %s, %s, %d" % (sr(S_T0), sr(S_WAVE), TSZ))
    a("v_add_u32 %s, %s, %s" % (vr(V_T), sr(S_T0), vr(t2)))
    a("s_mul_i32 %s, %s, %d" % (sr(S_T0), sr(S_WAVE), PCH))
    a("s_add_u32 %s, %s, %d" % (sr(S_T0), sr(S_T0), P0))
    a("v_lshlrev_b32 %s, 5, %s" % (vr(t2), vr(t0)))
    a("v_lshl_add_u32 %s, %s, 3, %s" % (vr(t3), vr(t1), vr(t2)))
    a("v_add_u32 %s, %s, %s" % (vr(V_O), sr(S_T0), vr(t3)))
    a("v_lshlrev_b32 %s, 4, %s" % (vr(t3), vr(t1)))
    a("v_sub_u32 %s, %s, %s" % (vr(t3), vr(t3), vr(t2)))
    a("s_add_u32 %s, %s, 480" % (sr(S_T0), sr(S_T0)))
    a("v_add_u32 %s, %s, %s" % (vr(V_P), sr(S_T0), vr(t3)))
    a("v_lshlrev_b32 %s, 1, v0" % vr(t0))
    a("v_sub_u32 %s, %d, %s" % (vr(V_WM), P0 + 1022, vr(t0)))
    a("v_add_u32 %s, %d, %s" % (vr(V_OR), OUTOFF, vr(t0)))
    a("v_add_u32 %s, %d, %s" % (vr(V_OR2), OUTOFF + 4 * TSZ, vr(t0)))
    a("s_mul_i32 %s, %s, %d" % (sr(S_T0), sr(S_WAVE), TSZ - PCH))
    a("s_sub_u32 %s, %s, %d" % (sr(S_T0), sr(S_T0), P0 - OUTOFF))
    a("v_add_u32 %s, %s, %s" % (vr(V_O2), sr(S_T0), vr(V_O)))
    a("v_and_b32 %s, 30, %s" % (vr(t2), vr(t0)))
    a("v_add_u32 %s, %d, %s" % (vr(t2), P0 + 2528, vr(t2)))
    a("v_add_u32 %s, 2048, %s" % (vr(V_WP), vr(V_WM)))
    a("v_cmp_gt_u32 vcc, 256, v0")
    a("s_lshl_b32 %s, %s, 1" % (sr(S_T1), sr(S_CH0)))
    a("v_mul_u32_u24 %s, 1280, v0" % vr(t1))
    a("v_cndmask_b32 %s, %s, %s, vcc" % (vr(V_WP), vr(V_WP), vr(t2)))
    a("v_add_u32 %s, %s, %s" % (vr(V_IN), sr(S_T1), vr(t1)))
    a("s_mul_i32 %s, %s, 1280" % (sr(S_T2), sr(S_TYPE)))
    a("s_add_u32 %s, %s, %s" % (sr(S_T2), sr(S_T2), sr(S_T1)))
    a("v_lshl_add_u32 %s, %s, 1, %s" % (vr(V_GO), vr(t1), sr(S_T2)))
    a("s_waitcnt lgkmcnt(0)")
    srd(SRD_O, PTR(15), 2048 * 2560)
    stamp_n(0)
    a("s_cmp_eq_u32 %s, 1" % sr(S_TYPE))
    a("s_cbranch_scc1 L_pathB")


def step_offsets():
    for p in (1, 2, 3):
        a("s_mov_b32 %s, %d" % (sr(S_IN1 + p - 1), p * 512 * 1280))
        a("s_mov_b32 %s, %d" % (sr(S_OUT1 + p - 1), p * 512 * 2560))


def sin(p): return "0" if p == 0 else sr(S_IN1 + p - 1)
def sout(p): return "0" if p == 0 else sr(S_OUT1 + p - 1)


PFULL = 4576
PB0 = 4 * TSZ
OB0 = PB0 + 4 * PFULL


def helper():
    a.lab("L_helper")
    a.c("================= waves 4..7 of B / helper workgroups: warm the L2 for an A column =================")
    W4 = S_WAVE
    a("s_sub_u32 %s, %s, 4" % (sr(W4), sr(S_WAVE)))
    a("v_subrev_u32 v0, 256, v0")
    a("s_waitcnt lgkmcnt(0)")
    srd(SRD_X, PTR(1), 2048 * 1280)
    srd(SRD_V, PTR(2), 2048 * 1280)
    srd(SRD_Q, PTR(0), 2048 * 1280)
    srd(SRD_T, PTR(4), 640 * 4096)
    a("s_lshr_b32 %s, %s, 3" % (sr(S_W), sr(S_HJ)))
    a("s_lshl_b32 %s, %s, 7" % (sr(S_T1), sr(S_W)))
    a("v_mul_u32_u24 %s, 1280, v0" % vr(V_TMP))
    a("v_add_u32 %s, %s, %s" % (vr(V_TMP), sr(S_T1), vr(V_TMP)))
    a("s_cmp_eq_u32 %s, 2" % sr(S_TYPE))
    a("s_cbranch_scc1 L_h0")
    a("s_barrier")
    a.lab("L_h0")
    a("s_bitcmp1_b32 %s, 0" % sr(S_HJ))
    a("s_cbranch_scc0 L_h2")
    a("s_cmp_ge_u32 %s, 2" % sr(W4))
    a("s_cbranch_scc1 L_h1t")
    if START == 0:
        a("s_mul_i32 %s, %s, %d" % (sr(S_T0), sr(S_I), 128 * 1280))
    else:
        a("s_mul_i32 %s, %s, %d" % (sr(S_T0), sr(S_I), 64 * 1280))
        a("s_mul_i32 %s, %s, %d" % (sr(S_T2), sr(W4), 448 * 1280))
        a("s_add_u32 %s, %s, %s" % (sr(S_T0), sr(S_T0), sr(S_T2)))
    a("buffer_load_dword %s, %s, %s, %s offen" % (vr(V_TMP + 1), vr(V_TMP), sr(SRD_V, 4), sr(S_T0)))
    a("s_branch L_h1e")
    a.lab("L_h1t")
    a("v_and_b32 %s, 15, v0" % vr(V_TMP + 2))
    a("v_bfe_u32 %s, v0, 4, 3" % vr(V_TMP + 3))
    a("v_lshlrev_b32 %s, 7, %s" % (vr(V_TMP + 2), vr(V_TMP + 2)))
    a("v_lshl_add_u32 %s, %s, 12, %s" % (vr(V_TMP + 2), vr(V_TMP + 3), vr(V_TMP + 2)))
    a("s_lshl_b32 %s, %s, 3" % (sr(S_T0), sr(S_W)))
    a("s_add_u32 %s, %s, %s" % (sr(S_T0), sr(S_T0), sr(S_I)))
    a("s_lshl_b32 %s, %s, 15" % (sr(S_T0), sr(S_T0)))
    a("buffer_load_dword %s, %s, %s, %s offen offset:2048" % (vr(V_TMP + 1), vr(V_TMP + 2), sr(SRD_T, 4), sr(S_T0)))
    a.lab("L_h1e")
    a("s_waitcnt vmcnt(0)")
    a.lab("L_h2")
    a("s_cmp_eq_u32 %s, 2" % sr(S_TYPE))
    a("s_cbranch_scc1 L_h2b")
    srd(SRD_O, PTR(6), 2048 * 1280)
    a("s_lshl_b32 %s, %s, 1" % (sr(S_T0), sr(S_CH0)))
    a("v_mul_u32_u24 %s, 1280, v0" % vr(V_IN))
    a("v_add_u32 %s, %s, %s" % (vr(V_IN), sr(S_T0), vr(V_IN)))
    a("s_mul_i32 %s, %s, %d" % (sr(S_T0), sr(S_I), 256 * 1280))
    a("buffer_load_dword %s, %s, %s, %s offen" % (vr(V_TMP + 1), vr(V_IN), sr(SRD_O, 4), sr(S_T0)))
    a("s_waitcnt vmcnt(0)")
    a.lab("L_h2b")
    a("s_bitcmp1_b32 %s, 1" % sr(S_HJ))
    a("s_cbranch_scc0 L_h3")
    a("s_lshr_b32 %s, %s, 1" % (sr(S_T0), sr(S_I)))
    a("s_add_u32 %s, %s, 4" % (sr(S_T0), sr(S_T0)))
    a("s_mul_i32 %s, %s, %d" % (sr(S_T0), sr(S_T0), 256 * 1280))
    a("s_bitcmp1_b32 %s, 0" % sr(S_I))
    a("s_cbranch_scc1 L_h2v")
    a("buffer_load_dword %s, %s, %s, %s offen" % (vr(V_TMP + 1), vr(V_TMP), sr(SRD_X, 4), sr(S_T0)))
    a("s_branch L_h2e")
    a.lab("L_h2v")
    a("buffer_load_dword %s, %s, %s, %s offen" % (vr(V_TMP + 1), vr(V_TMP), sr(SRD_V, 4), sr(S_T0)))
    a.lab("L_h2e")
    a("s_bitcmp1_b32 %s, 2" % sr(S_HJ))
    a("s_cbranch_scc0 L_h4")
    a("s_waitcnt vmcnt(0)")
    a.lab("L_h3")
    a("s_bitcmp1_b32 %s, 2" % sr(S_HJ))
    a("s_cbranch_scc0 L_h4")
    a("s_mul_i32 %s, %s, %d" % (sr(S_T0), sr(S_I), 256 * 1280))
    a("buffer_load_dword %s, %s, %s, %s offen" % (vr(V_TMP + 1), vr(V_TMP), sr(SRD_Q, 4), sr(S_T0)))
    a.lab("L_h4")
    a("s_cmp_eq_u32 %s, 2" % sr(S_TYPE))
    a("s_cbranch_scc1 L_end")
    a.c("================= B service waves: u in, y out =================")
    srd(SRD_X, PTR(6), 2048 * 1280)
    srd(SRD_O, PTR(15), 2048 * 2560)
    a("s_lshl_b32 %s, %s, 1" % (sr(S_T0), sr(S_CH0)))
    a("s_add_u32 %s, %s, %s" % (sr(S_T0 + 1), sr(PTR(14)), sr(S_T0)))
    a("s_addc_u32 %s, %s, 0" % (sr(S_T0 + 2), sr(PTR(14) + 1)))
    a("s_load_dwordx2 s[92:93], %s, 0" % sr(S_T0 + 1, 2))
    a("v_mul_u32_u24 %s, 1280, v0" % vr(V_TMP))
    a("v_add_u32 %s, %s, %s" % (vr(V_IN), sr(S_T0), vr(V_TMP)))
    a("s_add_u32 %s, %s, 1280" % (sr(S_T2), sr(S_T0)))
    a("v_lshl_add_u32 %s, %s, 1, %s" % (vr(V_GO), vr(V_TMP), sr(S_T2)))
    a("v_lshlrev_b32 %s, 1, v0" % vr(V_TMP + 2))
    a("v_sub_u32 %s, %d, %s" % (vr(V_WM), PB0 + 510, vr(V_TMP + 2)))
    a("v_add_u32 %s, %d, %s" % (vr(V_OR), OB0, vr(V_TMP + 2)))
    for e in range(1, 8):
        a("s_mov_b32 %s, %d" % (sr(S_W + e), e * 256 * 1280))
        a("s_mov_b32 %s, %d" % (sr(S_W + 8 + e), e * 256 * 2560))
    a("s_waitcnt lgkmcnt(0)")
    for c in range(4):
        if c & 1:
            a("s_and_b32 %s, %s, 0xffff0000" % (sr(S_D + c), sr(92 + (c >> 1))))
        else:
            a("s_lshl_b32 %s, %s, 16" % (sr(S_D + c), sr(92 + (c >> 1))))
    for e in range(8):
        a("buffer_load_dwordx2 %s, %s, %s, %s offen" % (vr(V_X + 2 * e, 2), vr(V_IN), sr(SRD_X, 4), "0" if e == 0 else sr(S_W + e)))
    for e in range(8):
        a("s_waitcnt vmcnt(%d)" % (7 - e))
        for c in range(4):
            a("ds_write_b16%s %s, %s offset:%d" % ("_d16_hi" if c & 1 else "", vr(V_WM), vr(V_X + 2 * e + (c >> 1)), c * PFULL + 512 * (7 - e)))
    U = 64
    for e in range(8):
        for c in range(4):
            a(unpack(U + 4 * e + c, V_X + 2 * e + (c >> 1), c))
    if EXACT:
        for k in range(32):
            a("v_mul_f32 %s, %s, %s" % (vr(U + k), sr(S_D + (k & 3)), vr(U + k)))
        for k in range(32):
            a("v_cvt_pk_bf16_f32 %s, 0, %s" % (vr(U + k), vr(U + k)))
    a("s_waitcnt lgkmcnt(0)")
    a("s_barrier")
    Y = 100
    for st in B_STEPS:
        a("s_barrier")
        for e in st:
            for c in range(4):
                a("ds_read_u16_d16_hi %s, %s offset:%d" % (vr(Y + 4 * e + c), vr(V_OR), c * 4096 + 512 * e))
        for n, e in enumerate(st):
            a("s_waitcnt lgkmcnt(%d)" % min(15, 4 * (len(st) - 1 - n)))
            for c in range(4):
                if EXACT:
                    a("v_add_f32 %s, %s, %s" % (vr(Y + 4 * e + c), vr(Y + 4 * e + c), vr(U + 4 * e + c)))
                else:
                    a("v_fmac_f32 %s, %s, %s" % (vr(Y + 4 * e + c), sr(S_D + c), vr(U + 4 * e + c)))
            a("v_cvt_pk_bf16_f32 %s, %s, %s" % (vr(Y + 4 * e), vr(Y + 4 * e), vr(Y + 4 * e + 1)))
            a("v_cvt_pk_bf16_f32 %s, %s, %s" % (vr(Y + 4 * e + 1), vr(Y + 4 * e + 2), vr(Y + 4 * e + 3)))
            a("buffer_store_dwordx2 %s, %s, %s, %s offen" % (vr(Y + 4 * e, 2), vr(V_GO), sr(SRD_O, 4), "0" if e == 0 else sr(S_W + 8 + e)))
    if STAMPS:
        a("s_add_u32 %s, %s, 4" % (sr(S_WAVE), sr(S_WAVE)))
    stamp_dump()
    a("s_endpgm")


B_STEPS = [[0, 1, 2, 3], [4, 5], [6, 7]]


V_TA = V_TMP + 5
V_TA2 = V_TMP + 6


def write_copies(d, tmp, n):
    imm = 32 + 1024 * n
    a("ds_write_b128 %s, %s offset:%d" % (vr(V_TA), vr(d, 4), imm))
    for k in range(4):
        a("v_alignbit_b32 %s, %s, %s, 16" % (vr(tmp + k), vr(d + k + 1), vr(d + k)))
    a("ds_write_b128 %s, %s offset:%d" % (vr(V_TA), vr(tmp, 4), imm + TCOPY))
    for k in range(4):
        a("v_mov_b32 %s, %s" % (vr(tmp + 8 + k), vr(d + k + 1)))
    a("ds_write_b128 %s, %s offset:%d" % (vr(V_TA), vr(tmp + 8, 4), imm + 2 * TCOPY))
    for k in range(4):
        a("v_alignbit_b32 %s, %s, %s, 16" % (vr(tmp + 4 + k), vr(d + k + 2), vr(d + k + 1)))
    a("ds_write_b128 %s, %s offset:%d" % (vr(V_TA), vr(tmp + 4, 4), imm + 3 * TCOPY))


def write_head(d0, d1, tmp):
    for k in range(4):
        a("v_mov_b32 %s, 0" % vr(tmp + k))
    a("v_lshlrev_b32 %s, 16, %s" % (vr(tmp + 4), vr(d0)))
    a("v_alignbit_b32 %s, %s, %s, 16" % (vr(tmp + 5), vr(d1), vr(d0)))
    a("s_mov_b64 %s, exec" % sr(S_EX, 2))
    a("s_mov_b64 exec, 3")
    for s in range(4):
        a("ds_write_b128 %s, %s offset:%d" % (vr(V_TA), vr(tmp, 4), s * TCOPY))
    a("s_mov_b64 exec, 1")
    a("ds_write_b32 %s, %s offset:%d" % (vr(V_TA), vr(tmp + 4), TCOPY + 28))
    a("ds_write_b32 %s, %s offset:%d" % (vr(V_TA), vr(d0), 2 * TCOPY + 28))
    a("ds_write_b64 %s, %s offset:%d" % (vr(V_TA), vr(tmp + 4, 2), 3 * TCOPY + 24))
    a("s_mov_b64 exec, %s" % sr(S_EX, 2))


def tbase_addr():
    a("s_mul_i32 %s, %s, %d" % (sr(S_T0), sr(S_WAVE), TSZ))
    a("v_lshl_add_u32 %s, %s, 4, %s" % (vr(V_TA), vr(V_LANE), sr(S_T0)))


def d_load(ptr_idx):
    a("s_lshl_b32 %s, %s, 1" % (sr(S_T0), sr(S_CH0)))
    a("s_add_u32 %s, %s, %s" % (sr(S_T0 + 1), sr(PTR(ptr_idx)), sr(S_T0)))
    a("s_addc_u32 %s, %s, 0" % (sr(S_T0 + 2), sr(PTR(ptr_idx) + 1)))
    a("s_load_dwordx4 s[92:95], %s, 0" % sr(S_T0 + 1, 2))


def d_selectors():
    for c in range(8):
        src = 92 + (c >> 1)
        if c & 1:
            a("s_and_b32 %s, %s, 0xffff0000" % (sr(S_D + c), sr(src)))
        else:
            a("s_lshl_b32 %s, %s, 16" % (sr(S_D + c), sr(src)))


class VM:
    def __init__(self):
        self.q = []

    def issue(self, tag):
        self.q.append(tag)

    def wait(self, tag):
        idx = max(i for i, t in enumerate(self.q) if t == tag)
        return "s_waitcnt vmcnt(%d)" % (len(self.q) - 1 - idx)


RAW = [224, 224]
V_PA = 244
V_U = 42
UL = [42, 43, 44, 45, 46, 47, 252, 253]
V_Y = 244
def QA(p): return V_Q + 4 * (p & 1)
V_HA = V_TMP + 4


def unpack(dst, src, c):
    if c & 1:
        return "v_and_b32 %s, 0xffff0000, %s" % (vr(dst), vr(src))
    return "v_lshlrev_b32 %s, 16, %s" % (vr(dst), vr(src))


def raw_loads(p, vm):
    R = RAW[p & 1]
    out = []
    out.append("v_add_u32 %s, %d, %s" % (vr(V_HA), p * 512 * 1280 - 3 * 1280, vr(V_IN)))
    out.append("s_mov_b64 exec, 1")
    for j in range(3):
        out.append("buffer_load_dwordx4 %s, %s, %s, 0 offen offset:%d" % (vr(R + 4 * j, 4), vr(V_HA), sr(SRD_X, 4), 1280 * j))
        vm.issue("raw%d" % p)
    out.append("s_mov_b64 exec, -1")
    out.append("buffer_load_dwordx4 %s, %s, %s, %s offen" % (vr(R + 12, 4), vr(V_IN), sr(SRD_X, 4), sin(p)))
    vm.issue("raw%d" % p)
    out.append("buffer_load_dwordx4 %s, %s, %s, %s offen" % (vr(R + 16, 4), vr(V_IN), sr(SRD_V, 4), sin(p)))
    vm.issue("raw%d" % p)
    return out


def prologue_math(p, vm):
    R = RAW[p & 1]
    out = [vm.wait("raw%d" % p)]
    for j in (2, 1, 0):
        for d in range(4):
            out.append("v_mov_b32_dpp %s, %s wave_shr:1 row_mask:0xf bank_mask:0xf" % (vr(R + 4 * j + d), vr(R + 4 * j + 4 + d)))
    VV = R + 16
    rnd = lambda x: "v_cvt_pk_bf16_f32 %s, 0, %s" % (vr(x), vr(x))
    for t in range(4):
        for c in range(8):
            out.append(unpack(UL[c], R + 4 * t + (c >> 1), c))
        w = lambda c: sr(S_W + 4 * c + 3 - t)
        if EXACT:
            if t == 0:
                for c in range(8):
                    out.append("v_mul_f32 %s, %s, %s" % (vr(V_PA + c), w(c), vr(UL[c])))
                for c in range(8):
                    out.append(rnd(V_PA + c))
            else:
                for c in range(8):
                    out.append("v_mul_f32 %s, %s, %s" % (vr(UL[c]), w(c), vr(UL[c])))
                for c in range(8):
                    out.append(rnd(UL[c]))
                for c in range(8):
                    out.append("v_add_f32 %s, %s, %s" % (vr(V_PA + c), vr(V_PA + c), vr(UL[c])))
                for c in range(8):
                    out.append(rnd(V_PA + c))
        else:
            for c in range(8):
                if t == 0:
                    out.append("v_mul_f32 %s, %s, %s" % (vr(V_PA + c), w(c), vr(UL[c])))
                else:
                    out.append("v_fmac_f32 %s, %s, %s" % (vr(V_PA + c), w(c), vr(UL[c])))
    for c in range(8):
        out.append(unpack(UL[c], VV + (c >> 1), c))
    for c in range(8):
        out.append("v_mul_f32 %s, %s, %s" % (vr(V_PA + c), vr(V_PA + c), vr(UL[c])))
    for d in range(4):
        out.append("v_cvt_pk_bf16_f32 %s, %s, %s" % (vr(V_X + 4 * p + d), vr(V_PA + 2 * d), vr(V_PA + 2 * d + 1)))
    return out


def p_writes(p, prev):
    out = []
    for c in range(8):
        off = c * PCH + (0 if prev else 1024 * (1 - (p & 1)))
        out.append("ds_write_b16%s %s, %s offset:%d" % ("_d16_hi" if c & 1 else "", vr(V_WP if prev else V_WM), vr(V_X + 4 * p + (c >> 1)), off))
    return out


def out_reads(p, Y):
    return ["ds_read_u16_d16_hi %s, %s offset:%d" % (vr(Y + c), vr(V_OR if c < 4 else V_OR2), (c & 3) * TSZ + p * TCOPY) for c in range(8)]


YREG = [0, 0]
def YB(p): return YREG[p & 1]


def epilogue_math(typ, p, vm):
    Y = YB(p)
    out = []
    rnd = lambda x: "v_cvt_pk_bf16_f32 %s, 0, %s" % (vr(x), vr(x))
    for c in range(8):
        out.append(unpack(UL[c], V_X + 4 * p + (c >> 1), c))
    out.append("@Y%d" % p)
    if EXACT:
        for c in range(8):
            out.append("v_mul_f32 %s, %s, %s" % (vr(UL[c]), sr(S_D + c), vr(UL[c])))
        for c in range(8):
            out.append(rnd(UL[c]))
        for c in range(8):
            out.append("v_add_f32 %s, %s, %s" % (vr(Y + c), vr(Y + c), vr(UL[c])))
        if typ == 0:
            for c in range(8):
                out.append(rnd(Y + c))
    else:
        for c in range(8):
            out.append("v_fmac_f32 %s, %s, %s" % (vr(Y + c), sr(S_D + c), vr(UL[c])))
    if typ == 0:
        out.append(vm.wait("q%d" % p))
        for c in range(8):
            out.append(unpack(UL[c], QA(p) + (c >> 1), c))
        for c in range(8):
            out.append("v_mul_f32 %s, %s, %s" % (vr(Y + c), vr(Y + c), vr(UL[c])))
    for d in range(4):
        out.append("v_cvt_pk_bf16_f32 %s, %s, %s" % (vr(Y + d), vr(Y + 2 * d), vr(Y + 2 * d + 1)))
    out.append("buffer_store_dwordx4 %s, %s, %s, %s offen" % (vr(Y, 4), vr(V_GO), sr(SRD_O, 4), sout(p)))
    vm.issue("st%d" % p)
    return out


def q_load(p, vm):
    vm.issue("q%d" % p)
    return "buffer_load_dwordx4 %s, %s, %s, %s offen" % (vr(QA(p), 4), vr(V_IN), sr(SRD_Q, 4), sin(p))


def path_A():
    vm = VM()
    a.c("================= path A : H3 =================")
    srd(SRD_X, PTR(1), 2048 * 1280)
    srd(SRD_V, PTR(2), 2048 * 1280)
    a("s_cmp_ge_u32 %s, 2" % sr(S_WAVE))
    a("s_cbranch_scc1 L_pfd")
    if START == 0:
        a("s_lshl_b32 %s, %s, 7" % (sr(S_T0), sr(S_I)))
        a("v_add_u32 %s, %s, v0" % (vr(V_TMP + 2), sr(S_T0)))
    else:
        a("s_lshl_b32 %s, %s, 6" % (sr(S_T0), sr(S_I)))
        a("s_lshl_b32 %s, %s, 9" % (sr(S_T1), sr(S_WAVE)))
        a("s_add_u32 %s, %s, %s" % (sr(S_T0), sr(S_T0), sr(S_T1)))
        a("v_add_u32 %s, %s, %s" % (vr(V_TMP + 2), sr(S_T0), vr(V_LANE)))
    a("v_mul_u32_u24 %s, 1280, %s" % (vr(V_TMP + 2), vr(V_TMP + 2)))
    a("s_lshl_b32 %s, %s, 7" % (sr(S_T1), sr(S_COL)))
    a("v_add_u32 %s, %s, %s" % (vr(V_TMP + 2), sr(S_T1), vr(V_TMP + 2)))
    a("buffer_load_dword %s, %s, %s, 0 offen" % (vr(V_TMP + 3), vr(V_TMP + 2), sr(SRD_X, 4)))
    a.lab("L_pfd")
    if START == 2:
        for s_ in raw_loads(0, vm):
            a(s_)
    srd(SRD_Q, PTR(0), 2048 * 1280)
    a("s_add_u32 %s, %s, %s" % (sr(S_T0), sr(S_CH0), sr(S_WAVE)))
    a("s_lshl_b32 %s, %s, 12" % (sr(S_T0), sr(S_T0)))
    a("s_add_u32 %s, %s, %s" % (sr(SRD_T), sr(PTR(4)), sr(S_T0)))
    a("s_addc_u32 %s, %s, 0" % (sr(SRD_T + 1), sr(PTR(4) + 1)))
    a("s_and_b32 %s, %s, 0xffff" % (sr(SRD_T + 1), sr(SRD_T + 1)))
    a("s_mov_b32 %s, 4096" % sr(SRD_T + 2))
    a("s_mov_b32 %s, 0x00020000" % sr(SRD_T + 3))
    TD = V_TC
    a("v_lshlrev_b32 %s, 4, %s" % (vr(V_TMP), vr(V_LANE)))
    def t_load(n):
        a("buffer_load_dwordx4 %s, %s, %s, 0 offen offset:%d" % (vr(TD + 8 * n, 4), vr(V_TMP), sr(SRD_T, 4), 1024 * n))
        a("buffer_load_dwordx2 %s, %s, %s, 0 offen offset:%d" % (vr(TD + 8 * n + 4, 2), vr(V_TMP), sr(SRD_T, 4), 1024 * n + 16))
    t_load(0)
    t_load(1)
    a("s_lshl_b32 %s, %s, 3" % (sr(S_T0), sr(S_CH0)))
    a("s_add_u32 %s, %s, %s" % (sr(S_T0 + 1), sr(PTR(3)), sr(S_T0)))
    a("s_addc_u32 %s, %s, 0" % (sr(S_T0 + 2), sr(PTR(3) + 1)))
    a("s_load_dwordx16 s[20:35], %s, 0" % sr(S_T0 + 1, 2))
    d_load(5)
    tbase_addr()
    a("s_waitcnt lgkmcnt(0)")
    d_selectors()
    for c in range(8):
        for j in range(4):
            src = 20 + 2 * c + (j >> 1)
            dst = S_W + 4 * c + j
            if j & 1:
                a("s_and_b32 %s, %s, 0xffff0000" % (sr(dst), sr(src)))
            else:
                a("s_lshl_b32 %s, %s, 16" % (sr(dst), sr(src)))
    step_offsets()
    RAW[1] = V_PF
    if START == 0:
        a("s_waitcnt vmcnt(0)")
        stamp_n(1)
        a("s_barrier")
        t_load(2)
        t_load(3)
        for s_ in raw_loads(0, vm):
            a(s_)
        write_head(TD, TD + 1, V_ACC)
        for n in range(2):
            write_copies(TD + 8 * n, V_ACC + 8 + 12 * (n & 1), n)
        if A3:
            for s_ in raw_loads(1, vm):
                a(s_)
        stamp_n(2)
        a("s_waitcnt vmcnt(%d)" % (10 if A3 else 5))
    elif START == 1:
        a("s_cmp_lg_u32 %s, 0" % sr(S_WAVE))
        a("s_cbranch_scc1 L_s1")
        a("s_waitcnt vmcnt(4)")
        a.lab("L_s1")
        stamp_n(1)
        a("s_barrier")
        for s_ in raw_loads(0, vm):
            a(s_)
        t_load(2)
        t_load(3)
        for k in range(4):
            vm.issue("t")
        a("s_waitcnt vmcnt(9)")
        write_head(TD, TD + 1, V_ACC)
        for n in range(2):
            write_copies(TD + 8 * n, V_ACC + 8 + 12 * (n & 1), n)
        stamp_n(2)
        a("s_waitcnt vmcnt(0)")
    else:
        a("s_waitcnt vmcnt(0)")
        stamp_n(1)
        t_load(2)
        t_load(3)
        for k in range(4):
            vm.issue("t")
        write_head(TD, TD + 1, V_ACC)
        for n in range(2):
            write_copies(TD + 8 * n, V_ACC + 8 + 12 * (n & 1), n)
        stamp_n(2)
        a("s_waitcnt vmcnt(0)")
    for n in range(2, 4):
        write_copies(TD + 8 * n, V_ACC + 8 + 12 * (n & 1), n)
    stamp_n(3)
    for s_ in prologue_math(0, vm):
        a(s_)
    if A3:
        for s_ in raw_loads(2, vm):
            a(s_)
        for s_ in prologue_math(1, vm):
            a(s_)
    stamp_n(4)
    conv(0, vm)


def cmul(d, x, y):
    a("v_pk_mul_f32 %s, %s, %s op_sel_hi:[1,0]" % (vr(d, 2), vr(x, 2), vr(y, 2)))
    a("v_pk_fma_f32 %s, %s, %s, %s op_sel:[1,1,0] op_sel_hi:[0,1,1] neg_lo:[1,0,0]" % (vr(d, 2), vr(x, 2), vr(y, 2), vr(d, 2)))


def path_B():
    vm = VM()
    a.lab("L_pathB")
    a.c("================= path B : S4D =================")
    a("s_mul_i32 %s, %s, %d" % (sr(S_T1), sr(S_WAVE), PFULL - PCH))
    a("s_sub_u32 %s, %s, %d" % (sr(S_T1), sr(S_T1), P0 - PB0))
    a("v_add_u32 %s, %s, %s" % (vr(V_P), sr(S_T1), vr(V_P)))
    a("v_add_u32 %s, %s, %s" % (vr(V_O), sr(S_T1), vr(V_O)))
    a("s_mul_i32 %s, %s, %d" % (sr(S_T1), sr(S_WAVE), 4096 - PFULL))
    a("s_add_u32 %s, %s, %d" % (sr(S_T1), sr(S_T1), OB0 - PB0))
    a("v_add_u32 %s, %s, %s" % (vr(V_O2), sr(S_T1), vr(V_O)))
    PRM = 236
    a("s_add_u32 %s, %s, %s" % (sr(S_T0), sr(S_CH0), sr(S_WAVE)))
    a("s_lshl_b32 %s, %s, 8" % (sr(S_T1), sr(S_T0)))
    a("v_lshl_add_u32 %s, %s, 2, %s" % (vr(V_TMP), vr(V_LANE), sr(S_T1)))
    for k in range(6):
        a("global_load_dword %s, %s, %s" % (vr(PRM + k), vr(V_TMP), sr(PTR(7 + k), 2)))
    a("s_barrier")
    a("s_lshl_b32 %s, %s, 1" % (sr(S_T1), sr(S_T0)))
    a("s_and_b32 %s, %s, -4" % (sr(S_T1), sr(S_T1)))
    a("s_add_u32 %s, %s, %s" % (sr(S_W), sr(PTR(13)), sr(S_T1)))
    a("s_addc_u32 %s, %s, 0" % (sr(S_W + 1), sr(PTR(13) + 1)))
    a("s_load_dword %s, %s, 0" % (sr(S_W + 2), sr(S_W, 2)))
    a("s_and_b32 %s, %s, 1" % (sr(S_W + 4), sr(S_T0)))
    a("s_waitcnt lgkmcnt(0)")
    a("s_lshl_b32 %s, %s, 16" % (sr(S_W + 3), sr(S_W + 2)))
    a("s_and_b32 %s, %s, 0xffff0000" % (sr(S_W + 2), sr(S_W + 2)))
    a("s_cmp_eq_u32 %s, 1" % sr(S_W + 4))
    a("s_cselect_b32 %s, %s, %s" % (sr(S_W + 2), sr(S_W + 2), sr(S_W + 3)))
    DT = 242
    a("v_mov_b32 %s, 0x3fb8aa3b" % vr(DT))
    a("v_mul_f32 %s, %s, %s" % (vr(DT), sr(S_W + 2), vr(DT)))
    a("v_exp_f32 %s, %s" % (vr(DT), vr(DT)))
    AW = V_TMP + 1
    AR = V_TMP + 2
    a("s_mul_i32 %s, %s, %d" % (sr(S_T0), sr(S_WAVE), TSZ))
    a("v_cvt_pk_bf16_f32 %s, 0, %s" % (vr(DT), vr(DT)))
    a("v_lshl_add_u32 %s, %s, 3, %s" % (vr(AW), vr(V_LANE), sr(S_T0)))
    a("v_and_b32 %s, 15, %s" % (vr(AR), vr(V_LANE)))
    a("v_mul_u32_u24 %s, %d, %s" % (vr(AR), LROW, vr(AR)))
    a("v_lshrrev_b32 %s, 4, %s" % (vr(V_TMP + 3), vr(V_LANE)))
    a("v_lshl_add_u32 %s, %s, 4, %s" % (vr(AR), vr(V_TMP + 3), vr(AR)))
    a("v_add_u32 %s, %s, %s" % (vr(AR), sr(S_T0), vr(AR)))
    M = [V_S, V_S + 46]
    def AR2(m): return M[m]
    def AI2(m): return M[m] + 1
    def Wv(m): return M[m] + 2
    def Ep(m, phi): return M[m] + 4 + 2 * (phi - 1)
    def Rr(m, j): return M[m] + 18 + 2 * (j - 1)
    def E128(m): return M[m] + 34
    def G(m, i): return M[m] + 36 + 2 * (i & 1)
    def TA(m, n): return M[m] + 40 + 2 * (n % 3)
    CV = V_ACC + 16
    FRB = V_TC
    FRA = V_TC + 32
    FRC = V_S + 4
    KACC = V_ACC
    stamp_n(1)
    a("s_waitcnt vmcnt(0)")
    stamp_n(2)
    for m in range(2):
        def un(dst, src):
            if m == 0:
                a("v_lshlrev_b32 %s, 16, %s" % (vr(dst), vr(src)))
            else:
                a("v_and_b32 %s, 0xffff0000, %s" % (vr(dst), vr(src)))
        un(AR2(m), PRM + 0)
        un(AI2(m), PRM + 1)
        un(TA(m, 0), PRM + 2)
        un(TA(m, 0) + 1, PRM + 3)
        un(TA(m, 1), PRM + 4)
        un(TA(m, 1) + 1, PRM + 5)
    for m in range(2):
        a("v_mul_f32 %s, %s, %s" % (vr(AR2(m)), vr(DT), vr(AR2(m))))
        a("v_mul_f32 %s, %s, %s" % (vr(AI2(m)), vr(DT), vr(AI2(m))))
        a("v_mul_f32 %s, 0x3fb8aa3b, %s" % (vr(AR2(m)), vr(AR2(m))))
        a("v_mul_f32 %s, 0.15915494, %s" % (vr(AI2(m)), vr(AI2(m))))
        a("v_mul_f32 %s, %s, %s" % (vr(TA(m, 0)), vr(DT), vr(TA(m, 0))))
        a("v_mul_f32 %s, %s, %s" % (vr(TA(m, 0) + 1), vr(DT), vr(TA(m, 0) + 1)))
        cmul(Wv(m), TA(m, 1), TA(m, 0))
    mx = CV
    a("v_max_f32 %s, |%s|, |%s|" % (vr(mx), vr(Wv(0)), vr(Wv(0) + 1)))
    a("v_max3_f32 %s, |%s|, |%s|, %s" % (vr(mx), vr(Wv(1)), vr(Wv(1) + 1), vr(mx)))
    dpp = ["row_shr:1 row_mask:0xf", "row_shr:2 row_mask:0xf", "row_shr:4 row_mask:0xf", "row_shr:8 row_mask:0xf", "row_bcast:15 row_mask:0xa", "row_bcast:31 row_mask:0xc"]
    k = 0
    for x, lit in ((1, "1.0"), (8, "0x41000000"), (128, "0x43000000")):
        for m in range(2):
            dst = Ep(m, 1) if x == 1 else Rr(m, 1) if x == 8 else E128(m)
            t = TA(m, 0)
            a("v_mul_f32 %s, %s, %s" % (vr(t), lit, vr(AR2(m))))
            a("v_mul_f32 %s, %s, %s" % (vr(t + 1), lit, vr(AI2(m))))
            a("v_max_f32_dpp %s, %s, %s %s bank_mask:0xf" % (vr(mx), vr(mx), vr(mx), dpp[k])); k += 1
            a("v_exp_f32 %s, %s" % (vr(t), vr(t)))
            a("v_fract_f32 %s, %s" % (vr(t + 1), vr(t + 1)))
            a("v_cos_f32 %s, %s" % (vr(t + 2), vr(t + 1)))
            a("v_sin_f32 %s, %s" % (vr(t + 3), vr(t + 1)))
            a("s_nop 0")
            a("v_mul_f32 %s, %s, %s" % (vr(dst), vr(t), vr(t + 2)))
            a("v_mul_f32 %s, %s, %s" % (vr(dst + 1), vr(t), vr(t + 3)))
    a("v_readlane_b32 %s, %s, 63" % (sr(S_SC), vr(mx)))
    cvi = [0]
    def put(off, p0, p1, neg):
        c = CV + 2 * (cvi[0] & 3); cvi[0] += 1
        n = "-" if neg else ""
        a("v_cvt_pk_f16_f32 %s, %s, %s%s" % (vr(c), vr(p0), n, vr(p0 + 1)))
        a("v_cvt_pk_f16_f32 %s, %s, %s%s" % (vr(c + 1), vr(p1), n, vr(p1 + 1)))
        a("ds_write_b64 %s, %s offset:%d" % (vr(AW), vr(c, 2), off))
    a("v_mov_b32 %s, 0x3c00" % vr(CV + 6))
    a("v_mov_b32 %s, 0x3c00" % vr(CV + 7))
    a("ds_write_b64 %s, %s offset:0" % (vr(AW), vr(CV + 6, 2)))
    a("s_and_b32 %s, %s, 0x7f800000" % (sr(S_SC), sr(S_SC)))
    a("s_sub_u32 %s, 0x7f000000, %s" % (sr(S_T0), sr(S_SC)))
    for m in range(2):
        a("v_mul_f32 %s, %s, %s" % (vr(Wv(m)), sr(S_T0), vr(Wv(m))))
        a("v_mul_f32 %s, %s, %s" % (vr(Wv(m) + 1), sr(S_T0), vr(Wv(m) + 1)))
    put(LROW, Rr(0, 1), Rr(1, 1), True)
    for j in range(2, 9):
        for m in range(2):
            cmul(Rr(m, j), Rr(m, j // 2), Rr(m, j - j // 2))
        put(j * LROW, Rr(0, j), Rr(1, j), True)
    for j in range(9, 16):
        for m in range(2):
            cmul(TA(m, j), Rr(m, 8), Rr(m, j - 8))
        put(j * LROW, TA(0, j), TA(1, j), True)
    for kp in range(8):
        a("ds_read_b128 %s, %s offset:%d" % (vr(FRB + 4 * kp, 4), vr(AR), 64 * kp))
    for phi in range(2, 8):
        for m in range(2):
            cmul(Ep(m, phi), Ep(m, phi // 2), Ep(m, phi - phi // 2))
    def lrow_off(row):
        return (KBUF if (row >> 4) != 1 else 0) + (row & 15) * LROW
    cur = [Wv(0), Wv(1)]
    tn = [0]
    for i in range(17):
        if i < 2:
            rows = [(8 * i + phi, phi) for phi in range(8)]
        elif i < 4:
            rows = [(16 + 4 * (i - 2) + f, 2 * f) for f in range(4)]
        elif i < 8:
            rows = [(24 + 2 * (i - 4) + f, 4 * f) for f in range(2)]
        else:
            rows = [(32 + (i - 8), 0)]
        if i == 2:
            for kp in range(8):
                a("ds_read_b128 %s, %s offset:%d" % (vr(FRA + 4 * kp, 4), vr(AR), KBUF + 64 * kp))
        if i == 8:
            for kp in range(8):
                a("ds_read_b128 %s, %s offset:%d" % (vr(FRA + 4 * kp, 4), vr(AR), 64 * kp))
        nxt = [G(0, i), G(1, i)]
        if i < 16:
            for m in range(2):
                cmul(nxt[m], cur[m], E128(m))
        for n, (row, phi) in enumerate(rows):
            if phi == 0:
                put(lrow_off(row), cur[0], cur[1], False)
            else:
                for m in range(2):
                    cmul(TA(m, tn[0]), cur[m], Ep(m, phi))
                put(lrow_off(row), TA(0, tn[0]), TA(1, tn[0]), False)
                tn[0] += 1
            if 22 <= row < 30:
                kp = row - 22
                if kp == 0:
                    a("s_waitcnt lgkmcnt(7)")
                a("v_mfma_f32_16x16x32_f16 %s, %s, %s, %s" % (vr(KACC, 4), vr(FRA + 4 * kp, 4), vr(FRB + 4 * kp, 4), "0" if kp == 0 else vr(KACC, 4)))
        cur = nxt
    for kp in range(8):
        a("ds_read_b128 %s, %s offset:%d" % (vr(FRC + 4 * kp, 4), vr(AR), KBUF + 64 * kp))
    j, g = V_TMP, V_TMP + 3
    A0, A1, A1b, A2 = V_S, V_S + 1, V_S + 2, V_S + 3
    a("v_and_b32 %s, 15, %s" % (vr(j), vr(V_LANE)))
    a("s_mul_i32 %s, %s, %d" % (sr(S_T1), sr(S_WAVE), TSZ))
    a("v_lshrrev_b32 %s, 1, %s" % (vr(A0), vr(g)))
    a("v_lshlrev_b32 %s, 7, %s" % (vr(A0), vr(A0)))
    a("v_and_b32 %s, 1, %s" % (vr(A1), vr(g)))
    a("v_lshl_add_u32 %s, %s, 2, %s" % (vr(A0), vr(A1), vr(A0)))
    a("v_lshl_add_u32 %s, %s, 3, %s" % (vr(A0), vr(j), vr(A0)))
    a("v_lshl_add_u32 %s, %s, 1, %s" % (vr(A0), vr(A0), sr(S_T1)))
    a("v_lshlrev_b32 %s, 6, %s" % (vr(A2), vr(g)))
    a("v_cmp_gt_u32 vcc, 2, %s" % vr(g))
    a("v_lshlrev_b32 %s, 2, %s" % (vr(A1), vr(j)))
    a("v_lshlrev_b32 %s, 1, %s" % (vr(A1b), vr(j)))
    a("v_cndmask_b32 %s, %s, %s, vcc" % (vr(A1), vr(A1b), vr(A1)))
    a("s_waitcnt lgkmcnt(8)")
    for kp in range(8):
        a("v_mfma_f32_16x16x32_f16 %s, %s, %s, %s" % (vr(KACC + 4, 4), vr(FRA + 4 * kp, 4), vr(FRB + 4 * kp, 4), "0" if kp == 0 else vr(KACC + 4, 4)))
    a("s_waitcnt lgkmcnt(0)")
    for kp in range(8):
        a("v_mfma_f32_16x16x32_f16 %s, %s, %s, %s" % (vr(KACC + 8, 4), vr(FRC + 4 * kp, 4), vr(FRB + 4 * kp, 4), "0" if kp == 0 else vr(KACC + 8, 4)))
    a("v_add_u32 %s, %s, %s" % (vr(A1), vr(A1), vr(A2)))
    a("v_add_u32 %s, 256, %s" % (vr(A1), vr(A1)))
    a("v_mov_b32 %s, 32" % vr(A1b))
    a("v_cndmask_b32 %s, %s, 2, vcc" % (vr(A1b), vr(A1b)))
    a("v_add_u32 %s, %s, %s" % (vr(A1b), vr(A1b), vr(A1)))
    a("v_lshl_add_u32 %s, %s, 1, %s" % (vr(A1), vr(A1), sr(S_T1)))
    a("v_lshl_add_u32 %s, %s, 1, %s" % (vr(A1b), vr(A1b), sr(S_T1)))
    a("v_add3_u32 %s, %s, %s, %s" % (vr(A2), vr(A2), vr(j), "64"))
    a("v_add_u32 %s, 448, %s" % (vr(A2), vr(A2)))
    a("v_lshl_add_u32 %s, %s, 1, %s" % (vr(A2), vr(A2), sr(S_T1)))
    stamp_n(3)
    for k in range(12):
        a("v_mul_f32 %s, %s, %s" % (vr(KACC + k), sr(S_SC), vr(KACC + k)))
    pk = KACC + 12
    for k in range(6):
        a("v_cvt_pk_bf16_f32 %s, %s, %s" % (vr(pk + k), vr(KACC + 2 * k), vr(KACC + 2 * k + 1)))
    a("ds_write_b64 %s, %s offset:0" % (vr(A0), vr(pk, 2)))
    a("ds_write_b32 %s, %s offset:0" % (vr(A1), vr(pk + 2)))
    a("ds_write_b32 %s, %s offset:0" % (vr(A1b), vr(pk + 3)))
    a("ds_write_b16 %s, %s offset:0" % (vr(A2), vr(pk + 4)))
    a("ds_write_b16_d16_hi %s, %s offset:32" % (vr(A2), vr(pk + 4)))
    a("ds_write_b16 %s, %s offset:64" % (vr(A2), vr(pk + 5)))
    a("ds_write_b16_d16_hi %s, %s offset:96" % (vr(A2), vr(pk + 5)))
    a.c("---- expand the staircase into the four shifted copies ----")
    tbase_addr()
    D = V_TC
    H = V_TC + 32
    a("v_lshl_add_u32 %s, %s, 4, %s" % (vr(V_TMP), vr(V_LANE), sr(S_T1)))
    a("v_lshl_add_u32 %s, %s, 3, %s" % (vr(V_TMP + 1), vr(V_LANE), sr(S_T1)))
    a("v_lshl_add_u32 %s, %s, 2, %s" % (vr(V_TMP + 2), vr(V_LANE), sr(S_T1)))
    a("v_lshl_add_u32 %s, %s, 1, %s" % (vr(V_TMP + 3), vr(V_LANE), sr(S_T1)))
    a("s_mov_b32 %s, 0x01000100" % sr(S_K0))
    a("s_mov_b32 %s, 0x03020302" % sr(S_K1))
    a("ds_read_b128 %s, %s" % (vr(D, 4), vr(V_TMP)))
    a("ds_read_b64 %s, %s offset:16" % (vr(D + 4, 2), vr(V_TMP)))
    a("ds_read_b64 %s, %s offset:256" % (vr(H, 2), vr(V_TMP + 1)))
    a("ds_read_b32 %s, %s offset:264" % (vr(H + 2), vr(V_TMP + 1)))
    a("ds_read_b32 %s, %s offset:%d" % (vr(H + 4), vr(V_TMP + 2), 2 * 384))
    a("ds_read_b32 %s, %s offset:%d" % (vr(H + 5), vr(V_TMP + 2), 2 * 384 + 4))
    for n in (2, 3):
        o = 2 * (512 + 64 * (n - 2))
        a("ds_read_u16 %s, %s offset:%d" % (vr(H + 6 + 2 * (n - 2)), vr(V_TMP + 3), o))
        a("ds_read_u16 %s, %s offset:%d" % (vr(H + 7 + 2 * (n - 2)), vr(V_TMP + 3), o + 2))
    a("v_and_b32 %s, 1, %s" % (vr(V_TMP), vr(V_LANE)))
    a("v_cmp_eq_u32 vcc, 0, %s" % vr(V_TMP))
    a("s_waitcnt lgkmcnt(0)")
    a("s_mov_b32 exec_hi, 0")
    a("s_mov_b32 exec_lo, 0x80000000")
    a("v_lshrrev_b32 %s, 16, %s" % (vr(D + 5), vr(D + 4)))
    a("v_perm_b32 %s, %s, %s, %s" % (vr(D + 4), vr(D + 4), vr(D + 4), sr(S_K0)))
    a("s_mov_b32 exec_lo, 0")
    a("s_mov_b32 exec_hi, -1")
    a("v_perm_b32 %s, %s, %s, %s" % (vr(D), vr(H), vr(H), sr(S_K0)))
    a("v_alignbit_b32 %s, %s, %s, 16" % (vr(D + 1), vr(H + 1), vr(H)))
    a("v_perm_b32 %s, %s, %s, %s" % (vr(D + 2), vr(H + 1), vr(H + 1), sr(S_K0)))
    a("v_alignbit_b32 %s, %s, %s, 16" % (vr(D + 3), vr(H + 2), vr(H + 1)))
    a("v_perm_b32 %s, %s, %s, %s" % (vr(D + 4), vr(H + 2), vr(H + 2), sr(S_K0)))
    a("v_lshrrev_b32 %s, 16, %s" % (vr(D + 5), vr(H + 2)))
    a("s_mov_b32 exec_hi, 0x80000000")
    a("v_mov_b32 %s, %s" % (vr(D + 5), vr(D + 4)))
    a("s_mov_b64 exec, -1")
    write_head(D, D + 1, V_S + 8)
    write_copies(D, V_S + 16, 0)
    D2 = D + 8
    a("v_perm_b32 %s, %s, %s, %s" % (vr(D2), vr(H + 4), vr(H + 4), sr(S_K0)))
    a("v_mov_b32 %s, %s" % (vr(D2 + 1), vr(H + 4)))
    a("v_perm_b32 %s, %s, %s, %s" % (vr(D2 + 2), vr(H + 4), vr(H + 4), sr(S_K1)))
    for k in (3, 4, 5):
        a("v_perm_b32 %s, %s, %s, %s" % (vr(D2 + k), vr(H + 5), vr(H + 5), sr(S_K0)))
    write_copies(D2, V_S + 28, 1)
    for n in (2, 3):
        D3 = D + 8 * n
        ra, rb_ = H + 6 + 2 * (n - 2), H + 7 + 2 * (n - 2)
        a("v_lshl_or_b32 %s, %s, 16, %s" % (vr(D3), vr(ra), vr(ra)))
        a("v_lshl_or_b32 %s, %s, 16, %s" % (vr(D3 + 1), vr(ra), vr(ra)))
        for k in (3, 4, 5):
            a("v_lshl_or_b32 %s, %s, 16, %s" % (vr(D3 + k), vr(rb_), vr(rb_)))
        a("v_cndmask_b32 %s, %s, %s, vcc" % (vr(ra), vr(rb_), vr(ra)))
        a("v_lshl_or_b32 %s, %s, 16, %s" % (vr(D3 + 2), vr(rb_), vr(ra)))
        write_copies(D3, V_S + 16 + 12 * (n & 1), n)
    stamp_n(4)
    conv(1, vm)


DELAY = [int(x) for x in os.environ.get("DELAY", "12,0").split(",")]
MBAR_R = int(os.environ.get("MBAR_R", "1"))


def conv(typ, vm):
    T = "AB"[typ]
    a.c("================= convolution (%s) =================" % T)
    steps = [[0, 1], [2, 3], [4, 5], [6, 7]] if typ == 0 and not A3 else B_STEPS
    pstride = 8 if typ == 0 and not A3 else 16
    RAW[1] = RAW[0]
    if typ == 0 and not A3:
        YREG[0], YREG[1] = V_PF + 16, V_PF + 24
    else:
        YREG[0], YREG[1] = V_Y, RAW[0]

    def preg(r, d): return V_PF + pstride * (r & 1) + 4 * d

    def p_reads(si, r):
        return [("ds_read_b128 %s, %s offset:%d" % (vr(preg(r, d), 4), vr(V_P), (1536 - 512 * (w & 3) if typ == 0 else 3584 - 512 * w) + 64 * r), ("P", si, r, d)) for d, w in enumerate(steps[si])]

    def treg(r, u):
        return V_TC + 8 * r + 4 * u if u < 2 else V_TF + 24 * (r & 1) + 4 * (u - 2)

    def t_reads(si, r):
        out = []
        for u in range(0 if si == 0 else 2, 8 - steps[si][0]):
            for hh in range(2):
                out.append(("ds_read_b64 %s, %s offset:%d" % (vr(treg(r, u) + 2 * hh, 2), vr(V_T), 512 * u + 64 * r + 8 * hh), ("T", si, r, u, hh)))
        return out

    lq = []
    state = {"done": -1}

    def need(*tags):
        idx = -1
        for tag in tags:
            idxs = [i for i, t in enumerate(lq) if t == tag]
            if idxs:
                idx = max(idx, idxs[-1])
        if idx <= state["done"]:
            return
        n = len(lq) - 1 - idx
        a("s_waitcnt lgkmcnt(%d)" % min(n, 15))
        state["done"] = len(lq) - 1 - min(n, 15)

    def drain():
        a("s_waitcnt lgkmcnt(0)")
        state["done"] = len(lq) - 1

    def emit(s_, tag=None):
        if s_.startswith("@Y"):
            need(("Y", int(s_[2:]), 7))
            return
        a(s_)
        if s_.startswith("ds_"):
            lq.append(tag)

    def deposit(si):
        for c in steps[si]:
            acc = V_ACC + 4 * c
            a("v_cvt_pk_bf16_f32 %s, %s, %s" % (vr(acc), vr(acc), vr(acc + 1)))
            a("v_cvt_pk_bf16_f32 %s, %s, %s" % (vr(acc + 1), vr(acc + 2), vr(acc + 3)))
            emit("ds_write_b64 %s, %s offset:%d" % (vr(V_O2), vr(acc, 2), (c >> 1) * TCOPY + 512 * (c & 1) if typ == 0 else 512 * c), "D")

    a("v_mov_b32 %s, 0" % vr(V_ACC))
    a("v_mov_b32 %s, 0" % vr(V_ACC + 1))
    if typ == 0:
        for s_ in p_writes(0, False) + (p_writes(1, False) if A3 else []):
            emit(s_)
        emit("ds_write_b64 %s, %s offset:2048" % (vr(V_O), vr(V_ACC, 2)))
    else:
        a("v_and_b32 %s, 15, %s" % (vr(V_TMP + 3), vr(V_LANE)))
        a("v_cmp_gt_u32 vcc, 15, %s" % vr(V_TMP + 3))
        a("s_and_saveexec_b64 %s, vcc" % sr(S_EX, 2))
        emit("ds_write_b64 %s, %s offset:4096" % (vr(V_O), vr(V_ACC, 2)))
        a("s_mov_b64 exec, %s" % sr(S_EX, 2))
    for s_, tg in t_reads(0, 0):
        emit(s_, tg)
    if typ == 0 and not A3:
        for s_ in raw_loads(1, vm):
            a(s_)
    drain()
    stamp_n(5)
    a("s_barrier")
    for x in p_reads(0, 0):
        emit(*x)

    touched = set()
    pending = []
    for si, st in enumerate(steps):
        a.c("---- step %d ----" % si)
        stamp_n(6 + 2 * si)
        for p in pending:
            for c, s_ in enumerate(out_reads(p, YB(p))):
                emit(s_, ("Y", p, c))
        fill = []
        if typ == 0 and A3:
            if si == 0:
                fill += ["@S"] * 30
                fill += prologue_math(2, vm)
                fill += raw_loads(3, vm)
                fill.append(q_load(0, vm))
                fill.append(q_load(1, vm))
                fill += ["@S"] * 20
                fill += prologue_math(3, vm)
            elif si == 1:
                fill += epilogue_math(typ, 0, vm)
                fill.append(q_load(2, vm))
                fill += epilogue_math(typ, 1, vm)
                fill.append(q_load(3, vm))
            else:
                fill += epilogue_math(typ, 2, vm)
        elif typ == 0:
            if si == 0:
                fill.append(q_load(0, vm))
                fill += ["@S"] * DELAY[0]
                fill += prologue_math(1, vm)
                fill += raw_loads(2, vm)
                fill += p_writes(1, False)
                fill += ["@S"] * DELAY[1]
                fill += prologue_math(2, vm)
                fill += raw_loads(3, vm)
            elif si == 1:
                fill.append(q_load(1, vm))
                fill += epilogue_math(typ, 0, vm)
                fill += prologue_math(3, vm)
            else:
                fill.append(q_load(si, vm))
                fill += epilogue_math(typ, si - 1, vm)
        pending = sorted(set(c >> 1 for c in st)) if typ == 0 else []
        fi = 0
        ms = [(u + w, u, d) for u in range(8 - st[0]) for d, w in enumerate(st) if u + w <= 7]
        lastdep = max(i for i, m in enumerate(ms) if m[0] in st)
        early = lastdep + 5 < len(ms)
        rewrite = st[-1] == 3 and typ == 0
        vis = st[0] >= 4 or typ == 1
        last = si == len(steps) - 1
        for r in range(8):
            if r < 7:
                nxt = p_reads(si, r + 1) + t_reads(si, r + 1)
            elif last:
                nxt = []
            else:
                nxt = t_reads(si + 1, 0)
                if vis:
                    nxt = p_reads(si + 1, 0) + nxt
            for i, (c, u, d) in enumerate(ms):
                acc = V_ACC + 4 * c
                src = vr(acc, 4) if c in touched else "0"
                touched.add(c)
                need(("P", si, r, d), ("T", si, r, u, 1))
                a("v_mfma_f32_16x16x32_bf16 %s, %s, %s, %s" % (vr(acc, 4), vr(treg(r, u), 4), vr(preg(r, d), 4), src))
                lo = (i * len(nxt) + len(ms) - 1) // len(ms) if len(nxt) > len(ms) else i
                hi = len(nxt) if i == len(ms) - 1 else (((i + 1) * len(nxt) + len(ms) - 1) // len(ms) if len(nxt) > len(ms) else i + 1)
                for k in range(lo, min(hi, len(nxt))):
                    emit(*nxt[k])
                n = 0
                while fi < len(fill) and (n < FILL or fill[fi - 1].startswith("s_mov_b64 exec, 1") or (fill[fi - 1].startswith("buffer_load") and V_HA_STR in fill[fi - 1])):
                    if fill[fi] == "@S":
                        fi += 1
                        break
                    emit(fill[fi], "x"); fi += 1; n += 1
                if r == 7 and early and i == lastdep + 4:
                    a("s_nop 3")
                    deposit(si)
        while fi < len(fill):
            if fill[fi] != "@S":
                emit(fill[fi], "x")
            fi += 1
        stamp_n(7 + 2 * si)
        if not early:
            a("s_nop 7")
            a("s_nop 1")
            deposit(si)
        if vis:
            need("D")
        else:
            drain()
        a("s_barrier")
        if rewrite:
            for p in (2, 3):
                for s_ in p_writes(p, False):
                    emit(s_)
            for s_ in p_writes(1, True):
                emit(s_)
            drain()
            a("s_barrier")
        if not vis:
            for x in p_reads(si + 1, 0):
                emit(*x)
    stamp_n(14)
    for p in pending:
        for c, s_ in enumerate(out_reads(p, YB(p))):
            emit(s_, ("Y", p, c))
    for p in pending:
        for s_ in epilogue_math(typ, p, vm):
            emit(s_, "x")
    stamp_dump()
    a("s_endpgm")


V_HA_STR = ", v%d, " % V_HA

header()
prologue_common()
path_A()
path_B()
helper()
footer()
out = sys.argv[1] if len(sys.argv) > 1 else "concat_heads__ssm_conv_h3__ssm_conv_s4__prompt.s"
open(out, "w").write(a.text())
print("wrote", out, len(a.l), "lines")
```

```python
import os
import sys

NAME = "concat_heads__ssm_conv_h3__ssm_conv_s4__prompt_kernel"
MODE = sys.argv[2] if len(sys.argv) > 2 else ""
STAMPS = MODE in ("stamps", "dbgt")
EXACT = int(os.environ.get("EXACT", "1"))
A242 = int(os.environ.get("A242", "0"))
P2EARLY = int(os.environ.get("P2EARLY", "1"))
START = int(os.environ.get("START", "0"))
A3 = int(os.environ.get("A3", "0"))
UAT = [int(x) for x in os.environ.get("UAT", "8,11,14,16").split(",")]
TORDER = int(os.environ.get("TORDER", "0"))
CODEPF = int(os.environ.get("CODEPF", "0"))
SPREAD = int(os.environ.get("SPREAD", "1"))
RPM = int(os.environ.get("RPM", "2"))
FILL = int(os.environ.get("FILL", "2"))

TCOPY = 4160
TSZ = 16896
P0 = 8 * TSZ
PCH = 3584
LDS_TOTAL = P0 + 8 * PCH
OUTOFF = 3136
LROW = 528
KBUF = 16 * LROW


class A:
    def __init__(self):
        self.l = []

    def __call__(self, s):
        self.l.append("    " + s)

    def lab(self, s):
        self.l.append(s + ":")

    def c(self, s):
        self.l.append("    ; " + s)

    def text(self):
        return "\n".join(self.l) + "\n"


def vr(b, n=1):
    return "v%d" % b if n == 1 else "v[%d:%d]" % (b, b + n - 1)


def sr(b, n=1):
    return "s%d" % b if n == 1 else "s[%d:%d]" % (b, b + n - 1)


a = A()

S_TYPE = 3
S_PTR = 4
def PTR(i): return S_PTR + 2 * i
S_WAVE = 40
S_COL = 41
S_I = 42
S_CH0 = 43
SRD_X = 44
SRD_V = 48
SRD_Q = 52
SRD_T = 56
SRD_O = 60
S_W = 64
S_D = 4
S_ONES = 96
S_HJ = 97
S_T0 = 99
S_T1 = 100
S_T2 = 101
S_EX = 20
S_SC = 22
S_IN1 = 23
S_OUT1 = 32
S_K0 = 26
S_K1 = 27

V_LANE = 1
V_T = 2
V_P = 3
V_O = 4
V_WM = 5
V_OR = 6
V_GO = 7
V_IN = 8
V_TMP = 9
V_WP = 255
V_X = 16
V_Q = 32
V_OR2 = 40
V_O2 = 41
V_ACC = 48
V_TC = 80
V_TF = 144
V_PF = 192
V_S = 144
V_ST = 254
NVGPR = 256


def stamp_n(n):
    if not STAMPS:
        return
    a("s_memrealtime s[36:37]")
    a("s_waitcnt lgkmcnt(0)")
    a("v_writelane_b32 %s, s36, %d" % (vr(V_ST), n))
    a("s_memtime s[36:37]")
    a("s_waitcnt lgkmcnt(0)")
    a("v_writelane_b32 %s, s36, %d" % (vr(V_ST), n + 16))


_dd = [0]
def stamp_dump():
    if not STAMPS:
        return
    a("s_waitcnt vmcnt(0)")
    stamp_n(15)
    if MODE == "dbgt":
        a("s_load_dwordx2 s[36:37], s[0:1], 128")
        a("s_cmp_lg_u32 %s, 0" % sr(S_WAVE))
        a("s_cbranch_scc1 L_end")
        a("s_cmp_lg_u32 s2, %d" % (0 if _dd[0] == 0 else 130))
        a("s_cbranch_scc1 L_end")
        for k, ln in enumerate((0, 1, 6, 15, 16, 17, 22, 31)):
            a("v_readlane_b32 s38, %s, %d" % (vr(V_ST), ln))
            a("s_nop 3")
            a("v_mov_b32 %s, s38" % vr(V_S + k))
        a("v_mov_b32 %s, %d" % (vr(V_ST + 1), 32 * _dd[0]))
        a("s_waitcnt lgkmcnt(0)")
        a("s_mov_b64 exec, 1")
        a("global_store_dwordx4 %s, %s, s[36:37]" % (vr(V_ST + 1), vr(V_S, 4)))
        a("global_store_dwordx4 %s, %s, s[36:37] offset:16" % (vr(V_ST + 1), vr(V_S + 4, 4)))
        _dd[0] += 1
        return
    a("s_load_dwordx2 s[36:37], s[0:1], 136")
    a("s_lshl_b32 s38, s2, 3")
    a("s_add_u32 s38, s38, %s" % sr(S_WAVE))
    a("s_lshl_b32 s38, s38, 8")
    a("v_lshl_add_u32 %s, %s, 2, s38" % (vr(V_ST + 1), vr(V_LANE)))
    a("s_waitcnt lgkmcnt(0)")
    a("global_store_dword %s, %s, s[36:37]" % (vr(V_ST + 1), vr(V_ST)))


def header():
    a.l.append("; fused H3 (shift-SSM * v -> long conv -> gate) and S4D (kernel generation + long conv), one launch")
    a.l.append("; @launch grid=(256,1,1) block=(512,1,1) lds=%d" % LDS_TOTAL)
    a.l.append('.amdgcn_target "amdgcn-amd-amdhsa--gfx950"')
    a.l.append(".text")
    a.l.append(".globl " + NAME)
    a.l.append(".p2align 8")
    a.l.append(".type %s,@function" % NAME)
    a.lab(NAME)


def footer():
    a.lab("L_end")
    a("s_endpgm")
    a.l.append('.section .rodata,"a"')
    a.l.append(".p2align 6")
    a.l.append(".amdhsa_kernel " + NAME)
    a.l.append("  .amdhsa_next_free_vgpr %d" % NVGPR)
    a.l.append("  .amdhsa_next_free_sgpr 102")
    a.l.append("  .amdhsa_accum_offset %d" % NVGPR)
    a.l.append("  .amdhsa_group_segment_fixed_size 0")
    a.l.append("  .amdhsa_kernarg_size 144")
    a.l.append("  .amdhsa_user_sgpr_count 2")
    a.l.append("  .amdhsa_user_sgpr_kernarg_segment_ptr 1")
    a.l.append("  .amdhsa_system_sgpr_workgroup_id_x 1")
    a.l.append(".end_amdhsa_kernel")


def srd(d, plo, nbytes):
    a("s_mov_b32 %s, %s" % (sr(d), sr(plo)))
    a("s_and_b32 %s, %s, 0xffff" % (sr(d + 1), sr(plo + 1)))
    a("s_mov_b32 %s, 0x%x" % (sr(d + 2), nbytes))
    a("s_mov_b32 %s, 0x00020000" % sr(d + 3))


SLOTS = [
    [0x00, 0x02, 0x04, 0x05, 0x06, 0x07, 0x08, 0x09],
    [0x01, 0x03, 0x22, 0x24, 0x26, 0x28, 0x2a, 0x2c],
    [0x20, 0x21, 0x23, 0x25, 0x27, 0x29, 0x2b, 0x2d],
    [0x40, 0x40, 0x30, 0x31, 0x32, 0x33, 0x2e, 0x2f],
]
HJOB = [
    [0, 0, 0, 0, 0, 0, 0, 0],
    [0, 0, 4 * 8 + 1, 5 * 8 + 1, 6 * 8 + 1, 7 * 8 + 1, 8 * 8 + 1, 9 * 8 + 1],
    [0 * 8 + 7, 2 * 8 + 7, 4 * 8 + 2, 5 * 8 + 2, 6 * 8 + 2, 7 * 8 + 2, 8 * 8 + 2, 9 * 8 + 2],
    [1 * 8 + 7, 3 * 8 + 7, 4 * 8 + 4, 5 * 8 + 4, 6 * 8 + 4, 7 * 8 + 4, 8 * 8 + 4, 9 * 8 + 4],
]


def prologue_common():
    a.c("---- decode workgroup -> (type, column, index) ----")
    a("s_cmp_ge_u32 s2, 256")
    a("s_cbranch_scc1 L_end")
    a("s_load_dwordx16 %s, s[0:1], 0" % sr(S_PTR, 16))
    a("s_load_dwordx16 %s, s[0:1], 64" % sr(S_PTR + 16, 16))
    if os.environ.get("BADMAP"):
        a("s_lshr_b32 %s, s2, 5" % sr(S_T0))
        a("s_and_b32 %s, s2, 31" % sr(S_T1))
    else:
        a("s_and_b32 %s, s2, 7" % sr(S_T0))
        a("s_lshr_b32 %s, s2, 3" % sr(S_T1))
    a("s_and_b32 %s, %s, 7" % (sr(S_I), sr(S_T1)))
    a("s_lshr_b32 %s, %s, 3" % (sr(S_T1), sr(S_T1)))
    def pk(t, lo): return sum(t[lo + i] << (8 * i) for i in range(4))
    a("s_and_b32 %s, %s, 3" % (sr(S_TYPE), sr(S_T0)))
    a("s_lshl_b32 %s, %s, 3" % (sr(S_TYPE), sr(S_TYPE)))
    for dst, tab in ((S_COL, SLOTS), (S_HJ, HJOB)):
        a("s_mov_b32 %s, 0x%x" % (sr(dst), pk(tab[0], 0)))
        a("s_mov_b32 %s, 0x%x" % (sr(S_T2), pk(tab[0], 4)))
        for k in (1, 2, 3):
            a("s_cmp_eq_u32 %s, %d" % (sr(S_T1), k))
            a("s_cselect_b32 %s, 0x%x, %s" % (sr(dst), pk(tab[k], 0), sr(dst)))
            a("s_cselect_b32 %s, 0x%x, %s" % (sr(S_T2), pk(tab[k], 4), sr(S_T2)))
        a("s_cmp_ge_u32 %s, 4" % sr(S_T0))
        a("s_cselect_b32 %s, %s, %s" % (sr(dst), sr(S_T2), sr(dst)))
        a("s_lshr_b32 %s, %s, %s" % (sr(dst), sr(dst), sr(S_TYPE)))
        a("s_and_b32 %s, %s, 0xff" % (sr(dst), sr(dst)))
    a("s_lshr_b32 %s, %s, 5" % (sr(S_TYPE), sr(S_COL)))
    a("s_and_b32 %s, %s, 31" % (sr(S_COL), sr(S_COL)))
    a("s_lshl_b32 %s, %s, 3" % (sr(S_CH0), sr(S_COL)))
    a("s_add_u32 %s, %s, %s" % (sr(S_CH0), sr(S_CH0), sr(S_I)))
    a("s_cmp_eq_u32 %s, 1" % sr(S_TYPE))
    a("s_cselect_b32 %s, 2, 3" % sr(S_T0))
    a("s_lshl_b32 %s, %s, %s" % (sr(S_CH0), sr(S_CH0), sr(S_T0)))
    if CODEPF:
        a("s_cmp_lg_u32 %s, 0" % sr(S_I))
        a("s_cbranch_scc1 L_pcs")
        a("s_getpc_b64 s[36:37]")
        a.lab("L_pc")
        a("v_lshlrev_b32 %s, 7, v0" % vr(V_TMP + 1))
        a("v_mov_b32 %s, s37" % vr(V_TMP + 4))
        a("v_min_u32 %s, L_end-L_pc, %s" % (vr(V_TMP + 1), vr(V_TMP + 1)))
        a("v_add_co_u32 %s, vcc, s36, %s" % (vr(V_TMP + 3), vr(V_TMP + 1)))
        a("s_nop 1")
        a("v_addc_co_u32 %s, vcc, 0, %s, vcc" % (vr(V_TMP + 4), vr(V_TMP + 4)))
        a("v_cmp_gt_u32 vcc, 256, v0")
        a("s_and_saveexec_b64 s[38:39], vcc")
        a("s_cbranch_execz L_pcd")
        a("global_load_dword %s, %s, off" % (vr(253), vr(V_TMP + 3, 2)))
        a.lab("L_pcd")
        a("s_mov_b64 exec, s[38:39]")
        a.lab("L_pcs")
    a("v_lshrrev_b32 %s, 6, v0" % vr(V_TMP))
    a("v_and_b32 %s, 63, v0" % vr(V_LANE))
    a("s_mov_b32 %s, 0x3f803f80" % sr(S_ONES))
    a("v_readfirstlane_b32 %s, %s" % (sr(S_WAVE), vr(V_TMP)))
    a("s_nop 3")
    a("s_cmp_eq_u32 %s, 0" % sr(S_TYPE))
    a("s_cbranch_scc1 L_addr")
    a("s_cmp_ge_u32 %s, 4" % sr(S_WAVE))
    a("s_cbranch_scc1 L_helper")
    a("s_cmp_eq_u32 %s, 2" % sr(S_TYPE))
    a("s_cbranch_scc1 L_end")
    a.lab("L_addr")
    a.c("---- per-lane addresses ----")
    t0, t1, t2, t3 = V_TMP, V_TMP + 1, V_TMP + 2, V_TMP + 3
    a("v_and_b32 %s, 15, %s" % (vr(t0), vr(V_LANE)))
    a("v_lshrrev_b32 %s, 4, %s" % (vr(t1), vr(V_LANE)))
    a("v_add_u32 %s, 1, %s" % (vr(t2), vr(t0)))
    a("v_and_b32 %s, 3, %s" % (vr(t3), vr(t2)))
    a("v_sub_u32 %s, %s, %s" % (vr(t2), vr(t2), vr(t3)))
    a("v_lshlrev_b32 %s, 1, %s" % (vr(t2), vr(t2)))
    a("v_mul_u32_u24 %s, %d, %s" % (vr(t3), TCOPY, vr(t3)))
    a("v_add_u32 %s, %s, %s" % (vr(t2), vr(t2), vr(t3)))
    a("v_lshl_add_u32 %s, %s, 4, %s" % (vr(t2), vr(t1), vr(t2)))
    a("s_mul_i32 %s, %s, %d" % (sr(S_T0), sr(S_WAVE), TSZ))
    a("v_add_u32 %s, %s, %s" % (vr(V_T), sr(S_T0), vr(t2)))
    a("s_mul_i32 %s, %s, %d" % (sr(S_T0), sr(S_WAVE), PCH))
    a("s_add_u32 %s, %s, %d" % (sr(S_T0), sr(S_T0), P0))
    a("v_lshlrev_b32 %s, 5, %s" % (vr(t2), vr(t0)))
    a("v_lshl_add_u32 %s, %s, 3, %s" % (vr(t3), vr(t1), vr(t2)))
    a("v_add_u32 %s, %s, %s" % (vr(V_O), sr(S_T0), vr(t3)))
    a("v_lshlrev_b32 %s, 4, %s" % (vr(t3), vr(t1)))
    a("v_sub_u32 %s, %s, %s" % (vr(t3), vr(t3), vr(t2)))
    a("s_add_u32 %s, %s, 480" % (sr(S_T0), sr(S_T0)))
    a("v_add_u32 %s, %s, %s" % (vr(V_P), sr(S_T0), vr(t3)))
    a("v_lshlrev_b32 %s, 1, v0" % vr(t0))
    a("v_sub_u32 %s, %d, %s" % (vr(V_WM), P0 + 1022, vr(t0)))
    a("v_add_u32 %s, %d, %s" % (vr(V_OR), OUTOFF, vr(t0)))
    a("v_add_u32 %s, %d, %s" % (vr(V_OR2), OUTOFF + 4 * TSZ, vr(t0)))
    a("s_mul_i32 %s, %s, %d" % (sr(S_T0), sr(S_WAVE), TSZ - PCH))
    a("s_sub_u32 %s, %s, %d" % (sr(S_T0), sr(S_T0), P0 - OUTOFF))
    a("v_add_u32 %s, %s, %s" % (vr(V_O2), sr(S_T0), vr(V_O)))
    a("v_and_b32 %s, 30, %s" % (vr(t2), vr(t0)))
    a("v_add_u32 %s, %d, %s" % (vr(t2), P0 + 3552, vr(t2)))
    a("v_add_u32 %s, 3072, %s" % (vr(V_WP), vr(V_WM)))
    a("v_cmp_gt_u32 vcc, 256, v0")
    a("s_lshl_b32 %s, %s, 1" % (sr(S_T1), sr(S_CH0)))
    a("v_mul_u32_u24 %s, 1280, v0" % vr(t1))
    a("v_cndmask_b32 %s, %s, %s, vcc" % (vr(V_WP), vr(V_WP), vr(t2)))
    a("v_add_u32 %s, %s, %s" % (vr(V_IN), sr(S_T1), vr(t1)))
    a("s_mul_i32 %s, %s, 1280" % (sr(S_T2), sr(S_TYPE)))
    a("s_add_u32 %s, %s, %s" % (sr(S_T2), sr(S_T2), sr(S_T1)))
    a("v_lshl_add_u32 %s, %s, 1, %s" % (vr(V_GO), vr(t1), sr(S_T2)))
    a("s_waitcnt lgkmcnt(0)")
    srd(SRD_O, PTR(15), 2048 * 2560)
    stamp_n(0)
    a("s_cmp_eq_u32 %s, 1" % sr(S_TYPE))
    a("s_cbranch_scc1 L_pathB")


def step_offsets():
    for p in (1, 2, 3):
        a("s_mov_b32 %s, %d" % (sr(S_IN1 + p - 1), p * 512 * 1280))
        a("s_mov_b32 %s, %d" % (sr(S_OUT1 + p - 1), p * 512 * 2560))


def sin(p): return "0" if p == 0 else sr(S_IN1 + p - 1)
def sout(p): return "0" if p == 0 else sr(S_OUT1 + p - 1)


PFULL = 4576
PB0 = 4 * TSZ
OB0 = PB0 + 4 * PFULL


def helper():
    a.lab("L_helper")
    a.c("================= waves 4..7 of B / helper workgroups: warm the L2 for an A column =================")
    W4 = S_WAVE
    a("s_sub_u32 %s, %s, 4" % (sr(W4), sr(S_WAVE)))
    a("v_subrev_u32 v0, 256, v0")
    a("s_waitcnt lgkmcnt(0)")
    srd(SRD_X, PTR(1), 2048 * 1280)
    srd(SRD_V, PTR(2), 2048 * 1280)
    srd(SRD_Q, PTR(0), 2048 * 1280)
    srd(SRD_T, PTR(4), 640 * 4096)
    a("s_lshr_b32 %s, %s, 3" % (sr(S_W), sr(S_HJ)))
    a("s_lshl_b32 %s, %s, 7" % (sr(S_T1), sr(S_W)))
    a("v_mul_u32_u24 %s, 1280, v0" % vr(V_TMP))
    a("v_add_u32 %s, %s, %s" % (vr(V_TMP), sr(S_T1), vr(V_TMP)))
    a("s_cmp_eq_u32 %s, 2" % sr(S_TYPE))
    a("s_cbranch_scc1 L_h0")
    a("s_barrier")
    a.lab("L_h0")
    a("s_bitcmp1_b32 %s, 0" % sr(S_HJ))
    a("s_cbranch_scc0 L_h2")
    a("s_cmp_ge_u32 %s, 2" % sr(W4))
    a("s_cbranch_scc1 L_h1t")
    if START == 0:
        a("s_mul_i32 %s, %s, %d" % (sr(S_T0), sr(S_I), 128 * 1280))
    else:
        a("s_mul_i32 %s, %s, %d" % (sr(S_T0), sr(S_I), 64 * 1280))
        a("s_mul_i32 %s, %s, %d" % (sr(S_T2), sr(W4), 448 * 1280))
        a("s_add_u32 %s, %s, %s" % (sr(S_T0), sr(S_T0), sr(S_T2)))
    a("buffer_load_dword %s, %s, %s, %s offen" % (vr(V_TMP + 1), vr(V_TMP), sr(SRD_V, 4), sr(S_T0)))
    a("s_branch L_h1e")
    a.lab("L_h1t")
    a("v_and_b32 %s, 15, v0" % vr(V_TMP + 2))
    a("v_bfe_u32 %s, v0, 4, 3" % vr(V_TMP + 3))
    a("v_lshlrev_b32 %s, 7, %s" % (vr(V_TMP + 2), vr(V_TMP + 2)))
    a("v_lshl_add_u32 %s, %s, 12, %s" % (vr(V_TMP + 2), vr(V_TMP + 3), vr(V_TMP + 2)))
    a("s_lshl_b32 %s, %s, 3" % (sr(S_T0), sr(S_W)))
    a("s_add_u32 %s, %s, %s" % (sr(S_T0), sr(S_T0), sr(S_I)))
    a("s_lshl_b32 %s, %s, 15" % (sr(S_T0), sr(S_T0)))
    a("buffer_load_dword %s, %s, %s, %s offen offset:2048" % (vr(V_TMP + 1), vr(V_TMP + 2), sr(SRD_T, 4), sr(S_T0)))
    a.lab("L_h1e")
    a("s_waitcnt vmcnt(0)")
    a.lab("L_h2")
    a("s_cmp_eq_u32 %s, 2" % sr(S_TYPE))
    a("s_cbranch_scc1 L_h2b")
    srd(SRD_O, PTR(6), 2048 * 1280)
    a("s_lshl_b32 %s, %s, 1" % (sr(S_T0), sr(S_CH0)))
    a("v_mul_u32_u24 %s, 1280, v0" % vr(V_IN))
    a("v_add_u32 %s, %s, %s" % (vr(V_IN), sr(S_T0), vr(V_IN)))
    a("s_mul_i32 %s, %s, %d" % (sr(S_T0), sr(S_I), 256 * 1280))
    a("buffer_load_dword %s, %s, %s, %s offen" % (vr(V_TMP + 1), vr(V_IN), sr(SRD_O, 4), sr(S_T0)))
    a("s_waitcnt vmcnt(0)")
    a.lab("L_h2b")
    a("s_bitcmp1_b32 %s, 1" % sr(S_HJ))
    a("s_cbranch_scc0 L_h3")
    a("s_lshr_b32 %s, %s, 1" % (sr(S_T0), sr(S_I)))
    a("s_add_u32 %s, %s, 4" % (sr(S_T0), sr(S_T0)))
    a("s_mul_i32 %s, %s, %d" % (sr(S_T0), sr(S_T0), 256 * 1280))
    a("s_bitcmp1_b32 %s, 0" % sr(S_I))
    a("s_cbranch_scc1 L_h2v")
    a("buffer_load_dword %s, %s, %s, %s offen" % (vr(V_TMP + 1), vr(V_TMP), sr(SRD_X, 4), sr(S_T0)))
    a("s_branch L_h2e")
    a.lab("L_h2v")
    a("buffer_load_dword %s, %s, %s, %s offen" % (vr(V_TMP + 1), vr(V_TMP), sr(SRD_V, 4), sr(S_T0)))
    a.lab("L_h2e")
    a("s_bitcmp1_b32 %s, 2" % sr(S_HJ))
    a("s_cbranch_scc0 L_h4")
    a("s_waitcnt vmcnt(0)")
    a.lab("L_h3")
    a("s_bitcmp1_b32 %s, 2" % sr(S_HJ))
    a("s_cbranch_scc0 L_h4")
    a("s_mul_i32 %s, %s, %d" % (sr(S_T0), sr(S_I), 256 * 1280))
    a("buffer_load_dword %s, %s, %s, %s offen" % (vr(V_TMP + 1), vr(V_TMP), sr(SRD_Q, 4), sr(S_T0)))
    a.lab("L_h4")
    a("s_cmp_eq_u32 %s, 2" % sr(S_TYPE))
    a("s_cbranch_scc1 L_end")
    a.c("================= B service waves: u in, y out =================")
    srd(SRD_X, PTR(6), 2048 * 1280)
    srd(SRD_O, PTR(15), 2048 * 2560)
    a("s_lshl_b32 %s, %s, 1" % (sr(S_T0), sr(S_CH0)))
    a("s_add_u32 %s, %s, %s" % (sr(S_T0 + 1), sr(PTR(14)), sr(S_T0)))
    a("s_addc_u32 %s, %s, 0" % (sr(S_T0 + 2), sr(PTR(14) + 1)))
    a("s_load_dwordx2 s[92:93], %s, 0" % sr(S_T0 + 1, 2))
    a("v_mul_u32_u24 %s, 1280, v0" % vr(V_TMP))
    a("v_add_u32 %s, %s, %s" % (vr(V_IN), sr(S_T0), vr(V_TMP)))
    a("s_add_u32 %s, %s, 1280" % (sr(S_T2), sr(S_T0)))
    a("v_lshl_add_u32 %s, %s, 1, %s" % (vr(V_GO), vr(V_TMP), sr(S_T2)))
    a("v_lshlrev_b32 %s, 1, v0" % vr(V_TMP + 2))
    a("v_sub_u32 %s, %d, %s" % (vr(V_WM), PB0 + 510, vr(V_TMP + 2)))
    a("v_add_u32 %s, %d, %s" % (vr(V_OR), OB0, vr(V_TMP + 2)))
    for e in range(1, 8):
        a("s_mov_b32 %s, %d" % (sr(S_W + e), e * 256 * 1280))
        a("s_mov_b32 %s, %d" % (sr(S_W + 8 + e), e * 256 * 2560))
    a("s_waitcnt lgkmcnt(0)")
    for c in range(4):
        if c & 1:
            a("s_and_b32 %s, %s, 0xffff0000" % (sr(S_D + c), sr(92 + (c >> 1))))
        else:
            a("s_lshl_b32 %s, %s, 16" % (sr(S_D + c), sr(92 + (c >> 1))))
    for e in range(8):
        a("buffer_load_dwordx2 %s, %s, %s, %s offen" % (vr(V_X + 2 * e, 2), vr(V_IN), sr(SRD_X, 4), "0" if e == 0 else sr(S_W + e)))
    for e in range(8):
        a("s_waitcnt vmcnt(%d)" % (7 - e))
        for c in range(4):
            a("ds_write_b16%s %s, %s offset:%d" % ("_d16_hi" if c & 1 else "", vr(V_WM), vr(V_X + 2 * e + (c >> 1)), c * PFULL + 512 * (7 - e)))
    U = 64
    for e in range(8):
        for c in range(4):
            a(unpack(U + 4 * e + c, V_X + 2 * e + (c >> 1), c))
    if EXACT:
        for k in range(32):
            a("v_mul_f32 %s, %s, %s" % (vr(U + k), sr(S_D + (k & 3)), vr(U + k)))
        for k in range(32):
            a("v_cvt_pk_bf16_f32 %s, 0, %s" % (vr(U + k), vr(U + k)))
    a("s_waitcnt lgkmcnt(0)")
    a("s_barrier")
    Y = 100
    for st in B_STEPS:
        a("s_barrier")
        for e in st:
            for c in range(4):
                a("ds_read_u16_d16_hi %s, %s offset:%d" % (vr(Y + 4 * e + c), vr(V_OR), c * 4096 + 512 * e))
        for n, e in enumerate(st):
            a("s_waitcnt lgkmcnt(%d)" % min(15, 4 * (len(st) - 1 - n)))
            for c in range(4):
                if EXACT:
                    a("v_add_f32 %s, %s, %s" % (vr(Y + 4 * e + c), vr(Y + 4 * e + c), vr(U + 4 * e + c)))
                else:
                    a("v_fmac_f32 %s, %s, %s" % (vr(Y + 4 * e + c), sr(S_D + c), vr(U + 4 * e + c)))
            a("v_cvt_pk_bf16_f32 %s, %s, %s" % (vr(Y + 4 * e), vr(Y + 4 * e), vr(Y + 4 * e + 1)))
            a("v_cvt_pk_bf16_f32 %s, %s, %s" % (vr(Y + 4 * e + 1), vr(Y + 4 * e + 2), vr(Y + 4 * e + 3)))
            a("buffer_store_dwordx2 %s, %s, %s, %s offen" % (vr(Y + 4 * e, 2), vr(V_GO), sr(SRD_O, 4), "0" if e == 0 else sr(S_W + 8 + e)))
    if STAMPS:
        a("s_add_u32 %s, %s, 4" % (sr(S_WAVE), sr(S_WAVE)))
    stamp_dump()
    a("s_endpgm")


B_STEPS = eval(os.environ.get("BSTEPS", "[[0, 1, 2, 3], [4, 5], [6, 7]]"))


V_TA = V_TMP + 5
V_TA2 = V_TMP + 6


def write_copies(d, tmp, n):
    imm = 32 + 1024 * n
    a("ds_write_b128 %s, %s offset:%d" % (vr(V_TA), vr(d, 4), imm))
    for k in range(4):
        a("v_alignbit_b32 %s, %s, %s, 16" % (vr(tmp + k), vr(d + k + 1), vr(d + k)))
    a("ds_write_b128 %s, %s offset:%d" % (vr(V_TA), vr(tmp, 4), imm + TCOPY))
    for k in range(4):
        a("v_mov_b32 %s, %s" % (vr(tmp + 8 + k), vr(d + k + 1)))
    a("ds_write_b128 %s, %s offset:%d" % (vr(V_TA), vr(tmp + 8, 4), imm + 2 * TCOPY))
    for k in range(4):
        a("v_alignbit_b32 %s, %s, %s, 16" % (vr(tmp + 4 + k), vr(d + k + 2), vr(d + k + 1)))
    a("ds_write_b128 %s, %s offset:%d" % (vr(V_TA), vr(tmp + 4, 4), imm + 3 * TCOPY))


def write_head(d0, d1, tmp):
    for k in range(4):
        a("v_mov_b32 %s, 0" % vr(tmp + k))
    a("v_lshlrev_b32 %s, 16, %s" % (vr(tmp + 4), vr(d0)))
    a("v_alignbit_b32 %s, %s, %s, 16" % (vr(tmp + 5), vr(d1), vr(d0)))
    a("s_mov_b64 %s, exec" % sr(S_EX, 2))
    a("s_mov_b64 exec, 3")
    for s in range(4):
        a("ds_write_b128 %s, %s offset:%d" % (vr(V_TA), vr(tmp, 4), s * TCOPY))
    a("s_mov_b64 exec, 1")
    a("ds_write_b32 %s, %s offset:%d" % (vr(V_TA), vr(tmp + 4), TCOPY + 28))
    a("ds_write_b32 %s, %s offset:%d" % (vr(V_TA), vr(d0), 2 * TCOPY + 28))
    a("ds_write_b64 %s, %s offset:%d" % (vr(V_TA), vr(tmp + 4, 2), 3 * TCOPY + 24))
    a("s_mov_b64 exec, %s" % sr(S_EX, 2))


def tbase_addr():
    a("s_mul_i32 %s, %s, %d" % (sr(S_T0), sr(S_WAVE), TSZ))
    a("v_lshl_add_u32 %s, %s, 4, %s" % (vr(V_TA), vr(V_LANE), sr(S_T0)))


def d_load(ptr_idx):
    a("s_lshl_b32 %s, %s, 1" % (sr(S_T0), sr(S_CH0)))
    a("s_add_u32 %s, %s, %s" % (sr(S_T0 + 1), sr(PTR(ptr_idx)), sr(S_T0)))
    a("s_addc_u32 %s, %s, 0" % (sr(S_T0 + 2), sr(PTR(ptr_idx) + 1)))
    a("s_load_dwordx4 s[92:95], %s, 0" % sr(S_T0 + 1, 2))


def d_selectors():
    for c in range(8):
        src = 92 + (c >> 1)
        if c & 1:
            a("s_and_b32 %s, %s, 0xffff0000" % (sr(S_D + c), sr(src)))
        else:
            a("s_lshl_b32 %s, %s, 16" % (sr(S_D + c), sr(src)))


class VM:
    def __init__(self):
        self.q = []

    def issue(self, tag):
        self.q.append(tag)

    def wait(self, tag):
        idx = max(i for i, t in enumerate(self.q) if t == tag)
        return "s_waitcnt vmcnt(%d)" % (len(self.q) - 1 - idx)


RAW = [224, 224]
V_PA = 244
V_U = 42
UL = [42, 43, 44, 45, 46, 47, 252, 253]
V_Y = 244
def QA(p): return V_Q + 4 * (p & 1)
V_HA = V_TMP + 4


def unpack(dst, src, c):
    if c & 1:
        return "v_and_b32 %s, 0xffff0000, %s" % (vr(dst), vr(src))
    return "v_lshlrev_b32 %s, 16, %s" % (vr(dst), vr(src))


def raw_loads(p, vm):
    R = RAW[p & 1]
    out = []
    out.append("v_add_u32 %s, %d, %s" % (vr(V_HA), p * 512 * 1280 - 3 * 1280, vr(V_IN)))
    out.append("s_mov_b64 exec, 1")
    for j in range(3):
        out.append("buffer_load_dwordx4 %s, %s, %s, 0 offen offset:%d" % (vr(R + 4 * j, 4), vr(V_HA), sr(SRD_X, 4), 1280 * j))
        vm.issue("raw%d" % p)
    out.append("s_mov_b64 exec, -1")
    out.append("buffer_load_dwordx4 %s, %s, %s, %s offen" % (vr(R + 12, 4), vr(V_IN), sr(SRD_X, 4), sin(p)))
    vm.issue("raw%d" % p)
    out.append("buffer_load_dwordx4 %s, %s, %s, %s offen" % (vr(R + 16, 4), vr(V_IN), sr(SRD_V, 4), sin(p)))
    vm.issue("raw%d" % p)
    return out


def prologue_math(p, vm):
    R = RAW[p & 1]
    out = [vm.wait("raw%d" % p)]
    for j in (2, 1, 0):
        for d in range(4):
            out.append("v_mov_b32_dpp %s, %s wave_shr:1 row_mask:0xf bank_mask:0xf" % (vr(R + 4 * j + d), vr(R + 4 * j + 4 + d)))
    VV = R + 16
    rnd = lambda x: "v_cvt_pk_bf16_f32 %s, 0, %s" % (vr(x), vr(x))
    for t in range(4):
        for c in range(8):
            out.append(unpack(UL[c], R + 4 * t + (c >> 1), c))
        w = lambda c: sr(S_W + 4 * c + 3 - t)
        if EXACT:
            if t == 0:
                for c in range(8):
                    out.append("v_mul_f32 %s, %s, %s" % (vr(V_PA + c), w(c), vr(UL[c])))
                for c in range(8):
                    out.append(rnd(V_PA + c))
            else:
                for c in range(8):
                    out.append("v_mul_f32 %s, %s, %s" % (vr(UL[c]), w(c), vr(UL[c])))
                for c in range(8):
                    out.append(rnd(UL[c]))
                for c in range(8):
                    out.append("v_add_f32 %s, %s, %s" % (vr(V_PA + c), vr(V_PA + c), vr(UL[c])))
                for c in range(8):
                    out.append(rnd(V_PA + c))
        else:
            for c in range(8):
                if t == 0:
                    out.append("v_mul_f32 %s, %s, %s" % (vr(V_PA + c), w(c), vr(UL[c])))
                else:
                    out.append("v_fmac_f32 %s, %s, %s" % (vr(V_PA + c), w(c), vr(UL[c])))
    for c in range(8):
        out.append(unpack(UL[c], VV + (c >> 1), c))
    for c in range(8):
        out.append("v_mul_f32 %s, %s, %s" % (vr(V_PA + c), vr(V_PA + c), vr(UL[c])))
    for d in range(4):
        out.append("v_cvt_pk_bf16_f32 %s, %s, %s" % (vr(V_X + 4 * p + d), vr(V_PA + 2 * d), vr(V_PA + 2 * d + 1)))
    return out


def p_writes(p, prev):
    out = []
    for c in range(8):
        off = c * PCH + (0 if prev else 1024 * (2 - p) if p < 3 else 2048)
        out.append("ds_write_b16%s %s, %s offset:%d" % ("_d16_hi" if c & 1 else "", vr(V_WP if prev else V_WM), vr(V_X + 4 * p + (c >> 1)), off))
    return out


def out_reads(p, Y):
    return ["ds_read_u16_d16_hi %s, %s offset:%d" % (vr(Y + c), vr(V_OR if c < 4 else V_OR2), (c & 3) * TSZ + p * TCOPY) for c in range(8)]


YREG = [0, 0]
def YB(p): return YREG[p & 1]


def epilogue_math(typ, p, vm):
    Y = YB(p)
    out = []
    rnd = lambda x: "v_cvt_pk_bf16_f32 %s, 0, %s" % (vr(x), vr(x))
    for c in range(8):
        out.append(unpack(UL[c], V_X + 4 * p + (c >> 1), c))
    out.append("@Y%d" % p)
    if EXACT:
        for c in range(8):
            out.append("v_mul_f32 %s, %s, %s" % (vr(UL[c]), sr(S_D + c), vr(UL[c])))
        for c in range(8):
            out.append(rnd(UL[c]))
        for c in range(8):
            out.append("v_add_f32 %s, %s, %s" % (vr(Y + c), vr(Y + c), vr(UL[c])))
        if typ == 0:
            for c in range(8):
                out.append(rnd(Y + c))
    else:
        for c in range(8):
            out.append("v_fmac_f32 %s, %s, %s" % (vr(Y + c), sr(S_D + c), vr(UL[c])))
    if typ == 0:
        out.append(vm.wait("q%d" % p))
        for c in range(8):
            out.append(unpack(UL[c], QA(p) + (c >> 1), c))
        for c in range(8):
            out.append("v_mul_f32 %s, %s, %s" % (vr(Y + c), vr(Y + c), vr(UL[c])))
    for d in range(4):
        out.append("v_cvt_pk_bf16_f32 %s, %s, %s" % (vr(Y + d), vr(Y + 2 * d), vr(Y + 2 * d + 1)))
    out.append("buffer_store_dwordx4 %s, %s, %s, %s offen" % (vr(Y, 4), vr(V_GO), sr(SRD_O, 4), sout(p)))
    vm.issue("st%d" % p)
    return out


def q_load(p, vm):
    vm.issue("q%d" % p)
    return "buffer_load_dwordx4 %s, %s, %s, %s offen" % (vr(QA(p), 4), vr(V_IN), sr(SRD_Q, 4), sin(p))


def path_A():
    vm = VM()
    a.c("================= path A : H3 =================")
    srd(SRD_X, PTR(1), 2048 * 1280)
    srd(SRD_V, PTR(2), 2048 * 1280)
    a("s_cmp_ge_u32 %s, 2" % sr(S_WAVE))
    a("s_cbranch_scc1 L_pfd")
    if START == 0:
        a("s_lshl_b32 %s, %s, 7" % (sr(S_T0), sr(S_I)))
        a("v_add_u32 %s, %s, v0" % (vr(V_TMP + 2), sr(S_T0)))
    else:
        a("s_lshl_b32 %s, %s, 6" % (sr(S_T0), sr(S_I)))
        a("s_lshl_b32 %s, %s, 9" % (sr(S_T1), sr(S_WAVE)))
        a("s_add_u32 %s, %s, %s" % (sr(S_T0), sr(S_T0), sr(S_T1)))
        a("v_add_u32 %s, %s, %s" % (vr(V_TMP + 2), sr(S_T0), vr(V_LANE)))
    a("v_mul_u32_u24 %s, 1280, %s" % (vr(V_TMP + 2), vr(V_TMP + 2)))
    a("s_lshl_b32 %s, %s, 7" % (sr(S_T1), sr(S_COL)))
    a("v_add_u32 %s, %s, %s" % (vr(V_TMP + 2), sr(S_T1), vr(V_TMP + 2)))
    a("buffer_load_dword %s, %s, %s, 0 offen" % (vr(V_TMP + 3), vr(V_TMP + 2), sr(SRD_X, 4)))
    a.lab("L_pfd")
    if START == 2:
        for s_ in raw_loads(0, vm):
            a(s_)
    srd(SRD_Q, PTR(0), 2048 * 1280)
    a("s_add_u32 %s, %s, %s" % (sr(S_T0), sr(S_CH0), sr(S_WAVE)))
    a("s_lshl_b32 %s, %s, 12" % (sr(S_T0), sr(S_T0)))
    a("s_add_u32 %s, %s, %s" % (sr(SRD_T), sr(PTR(4)), sr(S_T0)))
    a("s_addc_u32 %s, %s, 0" % (sr(SRD_T + 1), sr(PTR(4) + 1)))
    a("s_and_b32 %s, %s, 0xffff" % (sr(SRD_T + 1), sr(SRD_T + 1)))
    a("s_mov_b32 %s, 4096" % sr(SRD_T + 2))
    a("s_mov_b32 %s, 0x00020000" % sr(SRD_T + 3))
    TD = V_TC
    a("v_lshlrev_b32 %s, 4, %s" % (vr(V_TMP), vr(V_LANE)))
    def t_load(n):
        a("buffer_load_dwordx4 %s, %s, %s, 0 offen offset:%d" % (vr(TD + 8 * n, 4), vr(V_TMP), sr(SRD_T, 4), 1024 * n))
        a("buffer_load_dwordx2 %s, %s, %s, 0 offen offset:%d" % (vr(TD + 8 * n + 4, 2), vr(V_TMP), sr(SRD_T, 4), 1024 * n + 16))
    t_load(0)
    t_load(1)
    a("s_lshl_b32 %s, %s, 3" % (sr(S_T0), sr(S_CH0)))
    a("s_add_u32 %s, %s, %s" % (sr(S_T0 + 1), sr(PTR(3)), sr(S_T0)))
    a("s_addc_u32 %s, %s, 0" % (sr(S_T0 + 2), sr(PTR(3) + 1)))
    a("s_load_dwordx16 s[20:35], %s, 0" % sr(S_T0 + 1, 2))
    d_load(5)
    tbase_addr()
    a("s_waitcnt lgkmcnt(0)")
    d_selectors()
    for c in range(8):
        for j in range(4):
            src = 20 + 2 * c + (j >> 1)
            dst = S_W + 4 * c + j
            if j & 1:
                a("s_and_b32 %s, %s, 0xffff0000" % (sr(dst), sr(src)))
            else:
                a("s_lshl_b32 %s, %s, 16" % (sr(dst), sr(src)))
    step_offsets()
    RAW[1] = V_PF
    if START == 0:
        a("s_waitcnt vmcnt(0)")
        stamp_n(1)
        a("s_barrier")
        t_load(2)
        t_load(3)
        for s_ in raw_loads(0, vm):
            a(s_)
        write_head(TD, TD + 1, V_ACC)
        for n in range(2):
            write_copies(TD + 8 * n, V_ACC + 8 + 12 * (n & 1), n)
        if A3:
            for s_ in raw_loads(1, vm):
                a(s_)
        stamp_n(2)
        a("s_waitcnt vmcnt(%d)" % (10 if A3 else 5))
    elif START == 1:
        a("s_cmp_lg_u32 %s, 0" % sr(S_WAVE))
        a("s_cbranch_scc1 L_s1")
        a("s_waitcnt vmcnt(4)")
        a.lab("L_s1")
        stamp_n(1)
        a("s_barrier")
        for s_ in raw_loads(0, vm):
            a(s_)
        t_load(2)
        t_load(3)
        for k in range(4):
            vm.issue("t")
        a("s_waitcnt vmcnt(9)")
        write_head(TD, TD + 1, V_ACC)
        for n in range(2):
            write_copies(TD + 8 * n, V_ACC + 8 + 12 * (n & 1), n)
        stamp_n(2)
        a("s_waitcnt vmcnt(0)")
    else:
        a("s_waitcnt vmcnt(0)")
        stamp_n(1)
        t_load(2)
        t_load(3)
        for k in range(4):
            vm.issue("t")
        write_head(TD, TD + 1, V_ACC)
        for n in range(2):
            write_copies(TD + 8 * n, V_ACC + 8 + 12 * (n & 1), n)
        stamp_n(2)
        a("s_waitcnt vmcnt(0)")
    for n in range(2, 4):
        write_copies(TD + 8 * n, V_ACC + 8 + 12 * (n & 1), n)
    stamp_n(3)
    for s_ in prologue_math(0, vm):
        a(s_)
    if A3:
        for s_ in raw_loads(2, vm):
            a(s_)
        for s_ in prologue_math(1, vm):
            a(s_)
    stamp_n(4)
    conv(0, vm)


def cmul(d, x, y):
    a("v_pk_mul_f32 %s, %s, %s op_sel_hi:[1,0]" % (vr(d, 2), vr(x, 2), vr(y, 2)))
    a("v_pk_fma_f32 %s, %s, %s, %s op_sel:[1,1,0] op_sel_hi:[0,1,1] neg_lo:[1,0,0]" % (vr(d, 2), vr(x, 2), vr(y, 2), vr(d, 2)))


def path_B():
    vm = VM()
    a.lab("L_pathB")
    a.c("================= path B : S4D =================")
    a("s_mul_i32 %s, %s, %d" % (sr(S_T1), sr(S_WAVE), PFULL - PCH))
    a("s_sub_u32 %s, %s, %d" % (sr(S_T1), sr(S_T1), P0 - PB0))
    a("v_add_u32 %s, %s, %s" % (vr(V_P), sr(S_T1), vr(V_P)))
    a("v_add_u32 %s, %s, %s" % (vr(V_O), sr(S_T1), vr(V_O)))
    a("s_mul_i32 %s, %s, %d" % (sr(S_T1), sr(S_WAVE), 4096 - PFULL))
    a("s_add_u32 %s, %s, %d" % (sr(S_T1), sr(S_T1), OB0 - PB0))
    a("v_add_u32 %s, %s, %s" % (vr(V_O2), sr(S_T1), vr(V_O)))
    PRM = 236
    a("s_add_u32 %s, %s, %s" % (sr(S_T0), sr(S_CH0), sr(S_WAVE)))
    a("s_lshl_b32 %s, %s, 8" % (sr(S_T1), sr(S_T0)))
    a("v_lshl_add_u32 %s, %s, 2, %s" % (vr(V_TMP), vr(V_LANE), sr(S_T1)))
    for k in range(6):
        a("global_load_dword %s, %s, %s" % (vr(PRM + k), vr(V_TMP), sr(PTR(7 + k), 2)))
    a("s_barrier")
    a("s_lshl_b32 %s, %s, 1" % (sr(S_T1), sr(S_T0)))
    a("s_and_b32 %s, %s, -4" % (sr(S_T1), sr(S_T1)))
    a("s_add_u32 %s, %s, %s" % (sr(S_W), sr(PTR(13)), sr(S_T1)))
    a("s_addc_u32 %s, %s, 0" % (sr(S_W + 1), sr(PTR(13) + 1)))
    a("s_load_dword %s, %s, 0" % (sr(S_W + 2), sr(S_W, 2)))
    a("s_and_b32 %s, %s, 1" % (sr(S_W + 4), sr(S_T0)))
    a("s_waitcnt lgkmcnt(0)")
    a("s_lshl_b32 %s, %s, 16" % (sr(S_W + 3), sr(S_W + 2)))
    a("s_and_b32 %s, %s, 0xffff0000" % (sr(S_W + 2), sr(S_W + 2)))
    a("s_cmp_eq_u32 %s, 1" % sr(S_W + 4))
    a("s_cselect_b32 %s, %s, %s" % (sr(S_W + 2), sr(S_W + 2), sr(S_W + 3)))
    DT = 242
    a("v_mov_b32 %s, 0x3fb8aa3b" % vr(DT))
    a("v_mul_f32 %s, %s, %s" % (vr(DT), sr(S_W + 2), vr(DT)))
    a("v_exp_f32 %s, %s" % (vr(DT), vr(DT)))
    AW = V_TMP + 1
    AR = V_TMP + 2
    a("s_mul_i32 %s, %s, %d" % (sr(S_T0), sr(S_WAVE), TSZ))
    a("v_cvt_pk_bf16_f32 %s, 0, %s" % (vr(DT), vr(DT)))
    a("v_lshl_add_u32 %s, %s, 3, %s" % (vr(AW), vr(V_LANE), sr(S_T0)))
    a("v_and_b32 %s, 15, %s" % (vr(AR), vr(V_LANE)))
    a("v_mul_u32_u24 %s, %d, %s" % (vr(AR), LROW, vr(AR)))
    a("v_lshrrev_b32 %s, 4, %s" % (vr(V_TMP + 3), vr(V_LANE)))
    a("v_lshl_add_u32 %s, %s, 4, %s" % (vr(AR), vr(V_TMP + 3), vr(AR)))
    a("v_add_u32 %s, %s, %s" % (vr(AR), sr(S_T0), vr(AR)))
    M = [V_S, V_S + 46]
    def AR2(m): return M[m]
    def AI2(m): return M[m] + 1
    def Wv(m): return M[m] + 2
    def Ep(m, phi): return M[m] + 4 + 2 * (phi - 1)
    def Rr(m, j): return M[m] + 18 + 2 * (j - 1)
    def E128(m): return M[m] + 34
    def G(m, i): return M[m] + 36 + 2 * (i & 1)
    def TA(m, n): return M[m] + 40 + 2 * (n % 3)
    CV = V_ACC + 16
    FRB = V_TC
    FRA = V_TC + 32
    FRC = V_S + 4
    KACC = V_ACC
    stamp_n(1)
    a("s_waitcnt vmcnt(0)")
    stamp_n(2)
    for m in range(2):
        def un(dst, src):
            if m == 0:
                a("v_lshlrev_b32 %s, 16, %s" % (vr(dst), vr(src)))
            else:
                a("v_and_b32 %s, 0xffff0000, %s" % (vr(dst), vr(src)))
        un(AR2(m), PRM + 0)
        un(AI2(m), PRM + 1)
        un(TA(m, 0), PRM + 2)
        un(TA(m, 0) + 1, PRM + 3)
        un(TA(m, 1), PRM + 4)
        un(TA(m, 1) + 1, PRM + 5)
    for m in range(2):
        a("v_mul_f32 %s, %s, %s" % (vr(AR2(m)), vr(DT), vr(AR2(m))))
        a("v_mul_f32 %s, %s, %s" % (vr(AI2(m)), vr(DT), vr(AI2(m))))
        a("v_mul_f32 %s, 0x3fb8aa3b, %s" % (vr(AR2(m)), vr(AR2(m))))
        a("v_mul_f32 %s, 0.15915494, %s" % (vr(AI2(m)), vr(AI2(m))))
        a("v_mul_f32 %s, %s, %s" % (vr(TA(m, 0)), vr(DT), vr(TA(m, 0))))
        a("v_mul_f32 %s, %s, %s" % (vr(TA(m, 0) + 1), vr(DT), vr(TA(m, 0) + 1)))
        cmul(Wv(m), TA(m, 1), TA(m, 0))
    mx = CV
    a("v_max_f32 %s, |%s|, |%s|" % (vr(mx), vr(Wv(0)), vr(Wv(0) + 1)))
    a("v_max3_f32 %s, |%s|, |%s|, %s" % (vr(mx), vr(Wv(1)), vr(Wv(1) + 1), vr(mx)))
    dpp = ["row_shr:1 row_mask:0xf", "row_shr:2 row_mask:0xf", "row_shr:4 row_mask:0xf", "row_shr:8 row_mask:0xf", "row_bcast:15 row_mask:0xa", "row_bcast:31 row_mask:0xc"]
    k = 0
    for x, lit in ((1, "1.0"), (8, "0x41000000"), (128, "0x43000000")):
        for m in range(2):
            dst = Ep(m, 1) if x == 1 else Rr(m, 1) if x == 8 else E128(m)
            t = TA(m, 0)
            a("v_mul_f32 %s, %s, %s" % (vr(t), lit, vr(AR2(m))))
            a("v_mul_f32 %s, %s, %s" % (vr(t + 1), lit, vr(AI2(m))))
            a("v_max_f32_dpp %s, %s, %s %s bank_mask:0xf" % (vr(mx), vr(mx), vr(mx), dpp[k])); k += 1
            a("v_exp_f32 %s, %s" % (vr(t), vr(t)))
            a("v_fract_f32 %s, %s" % (vr(t + 1), vr(t + 1)))
            a("v_cos_f32 %s, %s" % (vr(t + 2), vr(t + 1)))
            a("v_sin_f32 %s, %s" % (vr(t + 3), vr(t + 1)))
            a("s_nop 0")
            a("v_mul_f32 %s, %s, %s" % (vr(dst), vr(t), vr(t + 2)))
            a("v_mul_f32 %s, %s, %s" % (vr(dst + 1), vr(t), vr(t + 3)))
    a("v_readlane_b32 %s, %s, 63" % (sr(S_SC), vr(mx)))
    cvi = [0]
    def put(off, p0, p1, neg):
        c = CV + 2 * (cvi[0] & 3); cvi[0] += 1
        n = "-" if neg else ""
        a("v_cvt_pk_f16_f32 %s, %s, %s%s" % (vr(c), vr(p0), n, vr(p0 + 1)))
        a("v_cvt_pk_f16_f32 %s, %s, %s%s" % (vr(c + 1), vr(p1), n, vr(p1 + 1)))
        a("ds_write_b64 %s, %s offset:%d" % (vr(AW), vr(c, 2), off))
    a("v_mov_b32 %s, 0x3c00" % vr(CV + 6))
    a("v_mov_b32 %s, 0x3c00" % vr(CV + 7))
    a("ds_write_b64 %s, %s offset:0" % (vr(AW), vr(CV + 6, 2)))
    a("s_and_b32 %s, %s, 0x7f800000" % (sr(S_SC), sr(S_SC)))
    a("s_sub_u32 %s, 0x7f000000, %s" % (sr(S_T0), sr(S_SC)))
    for m in range(2):
        a("v_mul_f32 %s, %s, %s" % (vr(Wv(m)), sr(S_T0), vr(Wv(m))))
        a("v_mul_f32 %s, %s, %s" % (vr(Wv(m) + 1), sr(S_T0), vr(Wv(m) + 1)))
    put(LROW, Rr(0, 1), Rr(1, 1), True)
    for j in range(2, 9):
        for m in range(2):
            cmul(Rr(m, j), Rr(m, j // 2), Rr(m, j - j // 2))
        put(j * LROW, Rr(0, j), Rr(1, j), True)
    for j in range(9, 16):
        for m in range(2):
            cmul(TA(m, j), Rr(m, 8), Rr(m, j - 8))
        put(j * LROW, TA(0, j), TA(1, j), True)
    for kp in range(8):
        a("ds_read_b128 %s, %s offset:%d" % (vr(FRB + 4 * kp, 4), vr(AR), 64 * kp))
    for phi in range(2, 8):
        for m in range(2):
            cmul(Ep(m, phi), Ep(m, phi // 2), Ep(m, phi - phi // 2))
    def lrow_off(row):
        return (KBUF if (row >> 4) != 1 else 0) + (row & 15) * LROW
    cur = [Wv(0), Wv(1)]
    tn = [0]
    for i in range(17):
        if i < 2:
            rows = [(8 * i + phi, phi) for phi in range(8)]
        elif i < 4:
            rows = [(16 + 4 * (i - 2) + f, 2 * f) for f in range(4)]
        elif i < 8:
            rows = [(24 + 2 * (i - 4) + f, 4 * f) for f in range(2)]
        else:
            rows = [(32 + (i - 8), 0)]
        if i == 2:
            for kp in range(8):
                a("ds_read_b128 %s, %s offset:%d" % (vr(FRA + 4 * kp, 4), vr(AR), KBUF + 64 * kp))
        if i == 8:
            for kp in range(8):
                a("ds_read_b128 %s, %s offset:%d" % (vr(FRA + 4 * kp, 4), vr(AR), 64 * kp))
        nxt = [G(0, i), G(1, i)]
        if i < 16:
            for m in range(2):
                cmul(nxt[m], cur[m], E128(m))
        for n, (row, phi) in enumerate(rows):
            if phi == 0:
                put(lrow_off(row), cur[0], cur[1], False)
            else:
                for m in range(2):
                    cmul(TA(m, tn[0]), cur[m], Ep(m, phi))
                put(lrow_off(row), TA(0, tn[0]), TA(1, tn[0]), False)
                tn[0] += 1
            if 22 <= row < 30:
                kp = row - 22
                if kp == 0:
                    a("s_waitcnt lgkmcnt(7)")
                a("v_mfma_f32_16x16x32_f16 %s, %s, %s, %s" % (vr(KACC, 4), vr(FRA + 4 * kp, 4), vr(FRB + 4 * kp, 4), "0" if kp == 0 else vr(KACC, 4)))
        cur = nxt
    for kp in range(8):
        a("ds_read_b128 %s, %s offset:%d" % (vr(FRC + 4 * kp, 4), vr(AR), KBUF + 64 * kp))
    j, g = V_TMP, V_TMP + 3
    A0, A1, A1b, A2 = V_S, V_S + 1, V_S + 2, V_S + 3
    a("v_and_b32 %s, 15, %s" % (vr(j), vr(V_LANE)))
    a("s_mul_i32 %s, %s, %d" % (sr(S_T1), sr(S_WAVE), TSZ))
    a("v_lshrrev_b32 %s, 1, %s" % (vr(A0), vr(g)))
    a("v_lshlrev_b32 %s, 7, %s" % (vr(A0), vr(A0)))
    a("v_and_b32 %s, 1, %s" % (vr(A1), vr(g)))
    a("v_lshl_add_u32 %s, %s, 2, %s" % (vr(A0), vr(A1), vr(A0)))
    a("v_lshl_add_u32 %s, %s, 3, %s" % (vr(A0), vr(j), vr(A0)))
    a("v_lshl_add_u32 %s, %s, 1, %s" % (vr(A0), vr(A0), sr(S_T1)))
    a("v_lshlrev_b32 %s, 6, %s" % (vr(A2), vr(g)))
    a("v_cmp_gt_u32 vcc, 2, %s" % vr(g))
    a("v_lshlrev_b32 %s, 2, %s" % (vr(A1), vr(j)))
    a("v_lshlrev_b32 %s, 1, %s" % (vr(A1b), vr(j)))
    a("v_cndmask_b32 %s, %s, %s, vcc" % (vr(A1), vr(A1b), vr(A1)))
    a("s_waitcnt lgkmcnt(8)")
    for kp in range(8):
        a("v_mfma_f32_16x16x32_f16 %s, %s, %s, %s" % (vr(KACC + 4, 4), vr(FRA + 4 * kp, 4), vr(FRB + 4 * kp, 4), "0" if kp == 0 else vr(KACC + 4, 4)))
    a("s_waitcnt lgkmcnt(0)")
    for kp in range(8):
        a("v_mfma_f32_16x16x32_f16 %s, %s, %s, %s" % (vr(KACC + 8, 4), vr(FRC + 4 * kp, 4), vr(FRB + 4 * kp, 4), "0" if kp == 0 else vr(KACC + 8, 4)))
    a("v_add_u32 %s, %s, %s" % (vr(A1), vr(A1), vr(A2)))
    a("v_add_u32 %s, 256, %s" % (vr(A1), vr(A1)))
    a("v_mov_b32 %s, 32" % vr(A1b))
    a("v_cndmask_b32 %s, %s, 2, vcc" % (vr(A1b), vr(A1b)))
    a("v_add_u32 %s, %s, %s" % (vr(A1b), vr(A1b), vr(A1)))
    a("v_lshl_add_u32 %s, %s, 1, %s" % (vr(A1), vr(A1), sr(S_T1)))
    a("v_lshl_add_u32 %s, %s, 1, %s" % (vr(A1b), vr(A1b), sr(S_T1)))
    a("v_add3_u32 %s, %s, %s, %s" % (vr(A2), vr(A2), vr(j), "64"))
    a("v_add_u32 %s, 448, %s" % (vr(A2), vr(A2)))
    a("v_lshl_add_u32 %s, %s, 1, %s" % (vr(A2), vr(A2), sr(S_T1)))
    stamp_n(3)
    for k in range(12):
        a("v_mul_f32 %s, %s, %s" % (vr(KACC + k), sr(S_SC), vr(KACC + k)))
    pk = KACC + 12
    for k in range(6):
        a("v_cvt_pk_bf16_f32 %s, %s, %s" % (vr(pk + k), vr(KACC + 2 * k), vr(KACC + 2 * k + 1)))
    a("ds_write_b64 %s, %s offset:0" % (vr(A0), vr(pk, 2)))
    a("ds_write_b32 %s, %s offset:0" % (vr(A1), vr(pk + 2)))
    a("ds_write_b32 %s, %s offset:0" % (vr(A1b), vr(pk + 3)))
    a("ds_write_b16 %s, %s offset:0" % (vr(A2), vr(pk + 4)))
    a("ds_write_b16_d16_hi %s, %s offset:32" % (vr(A2), vr(pk + 4)))
    a("ds_write_b16 %s, %s offset:64" % (vr(A2), vr(pk + 5)))
    a("ds_write_b16_d16_hi %s, %s offset:96" % (vr(A2), vr(pk + 5)))
    a.c("---- expand the staircase into the four shifted copies ----")
    tbase_addr()
    D = V_TC
    H = V_TC + 32
    a("v_lshl_add_u32 %s, %s, 4, %s" % (vr(V_TMP), vr(V_LANE), sr(S_T1)))
    a("v_lshl_add_u32 %s, %s, 3, %s" % (vr(V_TMP + 1), vr(V_LANE), sr(S_T1)))
    a("v_lshl_add_u32 %s, %s, 2, %s" % (vr(V_TMP + 2), vr(V_LANE), sr(S_T1)))
    a("v_lshl_add_u32 %s, %s, 1, %s" % (vr(V_TMP + 3), vr(V_LANE), sr(S_T1)))
    a("s_mov_b32 %s, 0x01000100" % sr(S_K0))
    a("s_mov_b32 %s, 0x03020302" % sr(S_K1))
    a("ds_read_b128 %s, %s" % (vr(D, 4), vr(V_TMP)))
    a("ds_read_b64 %s, %s offset:16" % (vr(D + 4, 2), vr(V_TMP)))
    a("ds_read_b64 %s, %s offset:256" % (vr(H, 2), vr(V_TMP + 1)))
    a("ds_read_b32 %s, %s offset:264" % (vr(H + 2), vr(V_TMP + 1)))
    a("ds_read_b32 %s, %s offset:%d" % (vr(H + 4), vr(V_TMP + 2), 2 * 384))
    a("ds_read_b32 %s, %s offset:%d" % (vr(H + 5), vr(V_TMP + 2), 2 * 384 + 4))
    for n in (2, 3):
        o = 2 * (512 + 64 * (n - 2))
        a("ds_read_u16 %s, %s offset:%d" % (vr(H + 6 + 2 * (n - 2)), vr(V_TMP + 3), o))
        a("ds_read_u16 %s, %s offset:%d" % (vr(H + 7 + 2 * (n - 2)), vr(V_TMP + 3), o + 2))
    a("v_and_b32 %s, 1, %s" % (vr(V_TMP), vr(V_LANE)))
    a("v_cmp_eq_u32 vcc, 0, %s" % vr(V_TMP))
    a("s_waitcnt lgkmcnt(0)")
    a("s_mov_b32 exec_hi, 0")
    a("s_mov_b32 exec_lo, 0x80000000")
    a("v_lshrrev_b32 %s, 16, %s" % (vr(D + 5), vr(D + 4)))
    a("v_perm_b32 %s, %s, %s, %s" % (vr(D + 4), vr(D + 4), vr(D + 4), sr(S_K0)))
    a("s_mov_b32 exec_lo, 0")
    a("s_mov_b32 exec_hi, -1")
    a("v_perm_b32 %s, %s, %s, %s" % (vr(D), vr(H), vr(H), sr(S_K0)))
    a("v_alignbit_b32 %s, %s, %s, 16" % (vr(D + 1), vr(H + 1), vr(H)))
    a("v_perm_b32 %s, %s, %s, %s" % (vr(D + 2), vr(H + 1), vr(H + 1), sr(S_K0)))
    a("v_alignbit_b32 %s, %s, %s, 16" % (vr(D + 3), vr(H + 2), vr(H + 1)))
    a("v_perm_b32 %s, %s, %s, %s" % (vr(D + 4), vr(H + 2), vr(H + 2), sr(S_K0)))
    a("v_lshrrev_b32 %s, 16, %s" % (vr(D + 5), vr(H + 2)))
    a("s_mov_b32 exec_hi, 0x80000000")
    a("v_mov_b32 %s, %s" % (vr(D + 5), vr(D + 4)))
    a("s_mov_b64 exec, -1")
    write_head(D, D + 1, V_S + 8)
    write_copies(D, V_S + 16, 0)
    D2 = D + 8
    a("v_perm_b32 %s, %s, %s, %s" % (vr(D2), vr(H + 4), vr(H + 4), sr(S_K0)))
    a("v_mov_b32 %s, %s" % (vr(D2 + 1), vr(H + 4)))
    a("v_perm_b32 %s, %s, %s, %s" % (vr(D2 + 2), vr(H + 4), vr(H + 4), sr(S_K1)))
    for k in (3, 4, 5):
        a("v_perm_b32 %s, %s, %s, %s" % (vr(D2 + k), vr(H + 5), vr(H + 5), sr(S_K0)))
    write_copies(D2, V_S + 28, 1)
    for n in (2, 3):
        D3 = D + 8 * n
        ra, rb_ = H + 6 + 2 * (n - 2), H + 7 + 2 * (n - 2)
        a("v_lshl_or_b32 %s, %s, 16, %s" % (vr(D3), vr(ra), vr(ra)))
        a("v_lshl_or_b32 %s, %s, 16, %s" % (vr(D3 + 1), vr(ra), vr(ra)))
        for k in (3, 4, 5):
            a("v_lshl_or_b32 %s, %s, 16, %s" % (vr(D3 + k), vr(rb_), vr(rb_)))
        a("v_cndmask_b32 %s, %s, %s, vcc" % (vr(ra), vr(rb_), vr(ra)))
        a("v_lshl_or_b32 %s, %s, 16, %s" % (vr(D3 + 2), vr(rb_), vr(ra)))
        write_copies(D3, V_S + 16 + 12 * (n & 1), n)
    stamp_n(4)
    conv(1, vm)


DELAY = [int(x) for x in os.environ.get("DELAY", "12,0").split(",")]
MBAR_R = int(os.environ.get("MBAR_R", "1"))


def conv(typ, vm):
    T = "AB"[typ]
    a.c("================= convolution (%s) =================" % T)
    steps = [[0, 1], [2, 3], [4, 5], [6, 7]] if typ == 0 and not A3 else B_STEPS
    pstride = 8 if typ == 0 and not A3 else 16
    RAW[1] = RAW[0]
    if typ == 0 and A242:
        steps = [[0, 1], [2, 3, 4, 5], [6, 7]]
        pstride = 16
        YREG[0], YREG[1] = V_TF + 16, V_TF + 40
    elif typ == 0 and not A3:
        YREG[0], YREG[1] = V_PF + 16, V_PF + 24
    else:
        YREG[0], YREG[1] = V_Y, RAW[0]

    def preg(r, d): return V_PF + pstride * (r & 1) + 4 * d

    def p_reads(si, r):
        return [("ds_read_b128 %s, %s offset:%d" % (vr(preg(r, d), 4), vr(V_P), (2560 - 512 * (w % 6) if typ == 0 else 3584 - 512 * w) + 64 * r), ("P", si, r, d)) for d, w in enumerate(steps[si])]

    def treg(r, u):
        return V_TC + 8 * r + 4 * u if u < 2 else V_TF + 24 * (r & 1) + 4 * (u - 2)

    def t_reads(si, r):
        out = []
        for u in range(0 if si == 0 else 2, 8 - steps[si][0]):
            for hh in range(2):
                out.append(("ds_read_b64 %s, %s offset:%d" % (vr(treg(r, u) + 2 * hh, 2), vr(V_T), 512 * u + 64 * r + 8 * hh), ("T", si, r, u, hh)))
        return out

    lq = []
    state = {"done": -1}

    def need(*tags):
        idx = -1
        for tag in tags:
            idxs = [i for i, t in enumerate(lq) if t == tag]
            if idxs:
                idx = max(idx, idxs[-1])
        if idx <= state["done"]:
            return
        n = len(lq) - 1 - idx
        a("s_waitcnt lgkmcnt(%d)" % min(n, 15))
        state["done"] = len(lq) - 1 - min(n, 15)

    def drain():
        a("s_waitcnt lgkmcnt(0)")
        state["done"] = len(lq) - 1

    def emit(s_, tag=None):
        if s_.startswith("@Y"):
            need(("Y", int(s_[2:]), 7))
            return
        a(s_)
        if s_.startswith("ds_"):
            lq.append(tag)

    def deposit(si):
        for c in steps[si]:
            acc = V_ACC + 4 * c
            a("v_cvt_pk_bf16_f32 %s, %s, %s" % (vr(acc), vr(acc), vr(acc + 1)))
            a("v_cvt_pk_bf16_f32 %s, %s, %s" % (vr(acc + 1), vr(acc + 2), vr(acc + 3)))
            emit("ds_write_b64 %s, %s offset:%d" % (vr(V_O2), vr(acc, 2), (c >> 1) * TCOPY + 512 * (c & 1) if typ == 0 else 512 * c), "D")

    a("v_mov_b32 %s, 0" % vr(V_ACC))
    a("v_mov_b32 %s, 0" % vr(V_ACC + 1))
    if typ == 0:
        for s_ in p_writes(0, False) + (p_writes(1, False) if A3 else []):
            emit(s_)
        emit("ds_write_b64 %s, %s offset:3072" % (vr(V_O), vr(V_ACC, 2)))
    else:
        a("v_and_b32 %s, 15, %s" % (vr(V_TMP + 3), vr(V_LANE)))
        a("v_cmp_gt_u32 vcc, 15, %s" % vr(V_TMP + 3))
        a("s_and_saveexec_b64 %s, vcc" % sr(S_EX, 2))
        emit("ds_write_b64 %s, %s offset:4096" % (vr(V_O), vr(V_ACC, 2)))
        a("s_mov_b64 exec, %s" % sr(S_EX, 2))
    for s_, tg in t_reads(0, 0):
        emit(s_, tg)
    if typ == 0 and not A3:
        for s_ in raw_loads(1, vm):
            a(s_)
    drain()
    stamp_n(5)
    a("s_barrier")
    for x in p_reads(0, 0):
        emit(*x)

    touched = set()
    pending = []
    for si, st in enumerate(steps):
        a.c("---- step %d ----" % si)
        stamp_n(6 + 2 * si)
        for p in pending:
            for c, s_ in enumerate(out_reads(p, YB(p))):
                emit(s_, ("Y", p, c))
        fill = []
        if typ == 0 and A3:
            if si == 0:
                fill += ["@S"] * 30
                fill += prologue_math(2, vm)
                fill += raw_loads(3, vm)
                fill.append(q_load(0, vm))
                fill.append(q_load(1, vm))
                fill += ["@S"] * 20
                fill += prologue_math(3, vm)
            elif si == 1:
                fill += epilogue_math(typ, 0, vm)
                fill.append(q_load(2, vm))
                fill += epilogue_math(typ, 1, vm)
                fill.append(q_load(3, vm))
            else:
                fill += epilogue_math(typ, 2, vm)
        elif typ == 0 and A242:
            if si == 0:
                fill.append(q_load(0, vm))
                fill += ["@S"] * DELAY[0]
                fill += prologue_math(1, vm)
                fill += raw_loads(2, vm)
                fill += p_writes(1, False)
                fill += ["@S"] * DELAY[1]
                fill += prologue_math(2, vm)
                fill += raw_loads(3, vm)
                fill += p_writes(2, False)
            elif si == 1:
                fill.append(q_load(1, vm))
                fill += epilogue_math(typ, 0, vm)
                fill.append(q_load(2, vm))
                fill += prologue_math(3, vm)
            else:
                fill += epilogue_math(typ, 1, vm)
                fill.append(q_load(3, vm))
                fill += epilogue_math(typ, 2, vm)
        elif typ == 0:
            if si == 0:
                fill.append(q_load(0, vm))
                fill += ["@S"] * DELAY[0]
                fill += prologue_math(1, vm)
                fill += raw_loads(2, vm)
                fill += p_writes(1, False)
                if P2EARLY:
                    fill += ["@S"] * DELAY[1]
                    fill += prologue_math(2, vm)
                    fill += raw_loads(3, vm)
                    fill += p_writes(2, False)
            elif si == 1:
                fill.append(q_load(1, vm))
                fill += epilogue_math(typ, 0, vm)
                if P2EARLY:
                    fill += prologue_math(3, vm)
                else:
                    fill += prologue_math(2, vm)
                    fill += raw_loads(3, vm)
                    fill += p_writes(2, False)
            elif si == 2:
                fill.append(q_load(2, vm))
                if not P2EARLY:
                    fill += prologue_math(3, vm)
                fill += p_writes(3, False)
                fill += p_writes(2, True)
                fill += epilogue_math(typ, 1, vm)
            else:
                fill.append(q_load(3, vm))
                fill += epilogue_math(typ, 2, vm)
        pending = sorted(set(c >> 1 for c in st)) if typ == 0 else []
        fi = 0
        ms = [(u + w, u, d) for u in range(8 - st[0]) for d, w in enumerate(st) if u + w <= 7]
        lastdep = max(i for i, m in enumerate(ms) if m[0] in st)
        early = lastdep + 5 < len(ms)
        rewrite = typ == 0 and A242 and si == 1
        vis = typ == 1 or (si == 1 and P2EARLY and not A242)
        last = si == len(steps) - 1
        for r in range(8):
            if r < 7:
                nxt = p_reads(si, r + 1) + t_reads(si, r + 1)
            elif last:
                nxt = []
            else:
                nxt = t_reads(si + 1, 0)
                if vis:
                    nxt = p_reads(si + 1, 0) + nxt
            for i, (c, u, d) in enumerate(ms):
                acc = V_ACC + 4 * c
                src = vr(acc, 4) if c in touched else "0"
                touched.add(c)
                need(("P", si, r, d), ("T", si, r, u, 1))
                a("v_mfma_f32_16x16x32_bf16 %s, %s, %s, %s" % (vr(acc, 4), vr(treg(r, u), 4), vr(preg(r, d), 4), src))
                lo = (i * len(nxt) + len(ms) - 1) // len(ms) if len(nxt) > len(ms) else i
                hi = len(nxt) if i == len(ms) - 1 else (((i + 1) * len(nxt) + len(ms) - 1) // len(ms) if len(nxt) > len(ms) else i + 1)
                for k in range(lo, min(hi, len(nxt))):
                    emit(*nxt[k])
                n = 0
                while fi < len(fill) and (n < FILL or fill[fi - 1].startswith("s_mov_b64 exec, 1") or (fill[fi - 1].startswith("buffer_load") and V_HA_STR in fill[fi - 1])):
                    if fill[fi] == "@S":
                        fi += 1
                        break
                    emit(fill[fi], "x"); fi += 1; n += 1
                if r == 7 and early and i == lastdep + 4:
                    a("s_nop 3")
                    deposit(si)
        while fi < len(fill):
            if fill[fi] != "@S":
                emit(fill[fi], "x")
            fi += 1
        stamp_n(7 + 2 * si)
        if not early:
            a("s_nop 7")
            a("s_nop 1")
            deposit(si)
        if vis:
            need("D")
        else:
            drain()
        a("s_barrier")
        if rewrite:
            for s_ in p_writes(3, False) + p_writes(2, True):
                emit(s_)
            drain()
            a("s_barrier")
        if not vis and not last:
            for x in p_reads(si + 1, 0):
                emit(*x)
    stamp_n(14)
    for p in pending:
        for c, s_ in enumerate(out_reads(p, YB(p))):
            emit(s_, ("Y", p, c))
    for p in pending:
        for s_ in epilogue_math(typ, p, vm):
            emit(s_, "x")
    stamp_dump()
    a("s_endpgm")


V_HA_STR = ", v%d, " % V_HA

header()
prologue_common()
path_A()
path_B()
helper()
footer()
out = sys.argv[1] if len(sys.argv) > 1 else "concat_heads__ssm_conv_h3__ssm_conv_s4__prompt.s"
open(out, "w").write(a.text())
print("wrote", out, len(a.l), "lines")
```

```python
import os
import sys

NAME = "concat_heads__ssm_conv_h3__ssm_conv_s4__prompt_kernel"
MODE = sys.argv[2] if len(sys.argv) > 2 else ""
STAMPS = MODE in ("stamps", "dbgt")
EXACT = int(os.environ.get("EXACT", "1"))
A242 = int(os.environ.get("A242", "0"))
P2EARLY = int(os.environ.get("P2EARLY", "1"))
SPRIO = int(os.environ.get("SPRIO", "0"))
START = int(os.environ.get("START", "0"))
A3 = int(os.environ.get("A3", "0"))
UAT = [int(x) for x in os.environ.get("UAT", "8,11,14,16").split(",")]
TORDER = int(os.environ.get("TORDER", "0"))
CODEPF = int(os.environ.get("CODEPF", "0"))
SPREAD = int(os.environ.get("SPREAD", "1"))
RPM = int(os.environ.get("RPM", "2"))
FILL = int(os.environ.get("FILL", "2"))

TCOPY = 4160
TSZ = 16896
P0 = 8 * TSZ
PCH = 3584
LDS_TOTAL = P0 + 8 * PCH
OUTOFF = 3136
LROW = 528
KBUF = 16 * LROW


class A:
    def __init__(self):
        self.l = []

    def __call__(self, s):
        self.l.append("    " + s)

    def lab(self, s):
        self.l.append(s + ":")

    def c(self, s):
        self.l.append("    ; " + s)

    def text(self):
        return "\n".join(self.l) + "\n"


def vr(b, n=1):
    return "v%d" % b if n == 1 else "v[%d:%d]" % (b, b + n - 1)


def sr(b, n=1):
    return "s%d" % b if n == 1 else "s[%d:%d]" % (b, b + n - 1)


a = A()

S_TYPE = 3
S_PTR = 4
def PTR(i): return S_PTR + 2 * i
S_WAVE = 40
S_COL = 41
S_I = 42
S_CH0 = 43
SRD_X = 44
SRD_V = 48
SRD_Q = 52
SRD_T = 56
SRD_O = 60
S_W = 64
S_D = 4
S_ONES = 96
S_HJ = 97
S_T0 = 99
S_T1 = 100
S_T2 = 101
S_EX = 20
S_SC = 22
S_IN1 = 23
S_OUT1 = 32
S_K0 = 26
S_K1 = 27

V_LANE = 1
V_T = 2
V_P = 3
V_O = 4
V_O2 = 5
V_ST = 6
V_ACC = 8
V_TMP = 32
V_TC = 40
V_TF = 104
V_PF = 152
NVGPR = 168


def stamp_n(n):
    if not STAMPS:
        return
    a("s_memrealtime s[36:37]")
    a("s_waitcnt lgkmcnt(0)")
    a("v_writelane_b32 %s, s36, %d" % (vr(V_ST), n))
    a("s_memtime s[36:37]")
    a("s_waitcnt lgkmcnt(0)")
    a("v_writelane_b32 %s, s36, %d" % (vr(V_ST), n + 16))


_dd = [0]
def stamp_dump():
    if not STAMPS:
        return
    a("s_waitcnt vmcnt(0)")
    stamp_n(15)
    if MODE == "dbgt":
        a("s_load_dwordx2 s[36:37], s[0:1], 128")
        a("s_cmp_lg_u32 %s, 0" % sr(S_WAVE))
        a("s_cbranch_scc1 L_end")
        a("s_cmp_lg_u32 s2, %d" % (0 if _dd[0] == 0 else 130))
        a("s_cbranch_scc1 L_end")
        for k, ln in enumerate((0, 1, 6, 15, 16, 17, 22, 31)):
            a("v_readlane_b32 s38, %s, %d" % (vr(V_ST), ln))
            a("s_nop 3")
            a("v_mov_b32 %s, s38" % vr(V_S + k))
        a("v_mov_b32 %s, %d" % (vr(V_ST + 1), 32 * _dd[0]))
        a("s_waitcnt lgkmcnt(0)")
        a("s_mov_b64 exec, 1")
        a("global_store_dwordx4 %s, %s, s[36:37]" % (vr(V_ST + 1), vr(V_S, 4)))
        a("global_store_dwordx4 %s, %s, s[36:37] offset:16" % (vr(V_ST + 1), vr(V_S + 4, 4)))
        _dd[0] += 1
        return
    a("s_load_dwordx2 s[36:37], s[0:1], 136")
    a("s_lshl_b32 s38, s2, 4")
    a("s_add_u32 s38, s38, %s" % sr(S_WAVE))
    a("s_lshl_b32 s38, s38, 8")
    a("v_lshl_add_u32 %s, %s, 2, s38" % (vr(V_ST + 1), vr(V_LANE)))
    a("s_waitcnt lgkmcnt(0)")
    a("global_store_dword %s, %s, s[36:37]" % (vr(V_ST + 1), vr(V_ST)))


def header():
    a.l.append("; fused H3 (shift-SSM * v -> long conv -> gate) and S4D (kernel generation + long conv), one launch")
    a.l.append("; @launch grid=(256,1,1) block=(768,1,1) lds=%d" % LDS_TOTAL)
    a.l.append('.amdgcn_target "amdgcn-amd-amdhsa--gfx950"')
    a.l.append(".text")
    a.l.append(".globl " + NAME)
    a.l.append(".p2align 8")
    a.l.append(".type %s,@function" % NAME)
    a.lab(NAME)


def footer():
    a.lab("L_end")
    a("s_endpgm")
    a.l.append('.section .rodata,"a"')
    a.l.append(".p2align 6")
    a.l.append(".amdhsa_kernel " + NAME)
    a.l.append("  .amdhsa_next_free_vgpr %d" % NVGPR)
    a.l.append("  .amdhsa_next_free_sgpr 102")
    a.l.append("  .amdhsa_accum_offset %d" % NVGPR)
    a.l.append("  .amdhsa_group_segment_fixed_size 0")
    a.l.append("  .amdhsa_kernarg_size 144")
    a.l.append("  .amdhsa_user_sgpr_count 2")
    a.l.append("  .amdhsa_user_sgpr_kernarg_segment_ptr 1")
    a.l.append("  .amdhsa_system_sgpr_workgroup_id_x 1")
    a.l.append(".end_amdhsa_kernel")


def srd(d, plo, nbytes):
    a("s_mov_b32 %s, %s" % (sr(d), sr(plo)))
    a("s_and_b32 %s, %s, 0xffff" % (sr(d + 1), sr(plo + 1)))
    a("s_mov_b32 %s, 0x%x" % (sr(d + 2), nbytes))
    a("s_mov_b32 %s, 0x00020000" % sr(d + 3))


SLOTS = [
    [0x00, 0x02, 0x04, 0x05, 0x06, 0x07, 0x08, 0x09],
    [0x01, 0x03, 0x22, 0x24, 0x26, 0x28, 0x2a, 0x2c],
    [0x20, 0x21, 0x23, 0x25, 0x27, 0x29, 0x2b, 0x2d],
    [0x40, 0x40, 0x30, 0x31, 0x32, 0x33, 0x2e, 0x2f],
]
HJOB = [
    [0, 0, 0, 0, 0, 0, 0, 0],
    [0, 0, 4 * 8 + 1, 5 * 8 + 1, 6 * 8 + 1, 7 * 8 + 1, 8 * 8 + 1, 9 * 8 + 1],
    [0 * 8 + 1, 2 * 8 + 1, 4 * 8 + 2, 5 * 8 + 2, 6 * 8 + 2, 7 * 8 + 2, 8 * 8 + 2, 9 * 8 + 2],
    [1 * 8 + 7, 3 * 8 + 7, 4 * 8 + 4, 5 * 8 + 4, 6 * 8 + 4, 7 * 8 + 4, 8 * 8 + 4, 9 * 8 + 4],
]


def prologue_common():
    a.c("---- decode workgroup -> (type, column, index) ----")
    if STAMPS:
        a("s_memrealtime s[94:95]")
    a("s_cmp_ge_u32 s2, 256")
    a("s_cbranch_scc1 L_end")
    a("s_load_dwordx16 %s, s[0:1], 0" % sr(S_PTR, 16))
    a("s_load_dwordx16 %s, s[0:1], 64" % sr(S_PTR + 16, 16))
    if os.environ.get("BADMAP"):
        a("s_lshr_b32 %s, s2, 5" % sr(S_T0))
        a("s_and_b32 %s, s2, 31" % sr(S_T1))
    else:
        a("s_and_b32 %s, s2, 7" % sr(S_T0))
        a("s_lshr_b32 %s, s2, 3" % sr(S_T1))
    a("s_and_b32 %s, %s, 7" % (sr(S_I), sr(S_T1)))
    a("s_lshr_b32 %s, %s, 3" % (sr(S_T1), sr(S_T1)))
    def pk(t, lo): return sum(t[lo + i] << (8 * i) for i in range(4))
    a("s_and_b32 %s, %s, 3" % (sr(S_TYPE), sr(S_T0)))
    a("s_lshl_b32 %s, %s, 3" % (sr(S_TYPE), sr(S_TYPE)))
    for dst, tab in ((S_COL, SLOTS), (S_HJ, HJOB)):
        a("s_mov_b32 %s, 0x%x" % (sr(dst), pk(tab[0], 0)))
        a("s_mov_b32 %s, 0x%x" % (sr(S_T2), pk(tab[0], 4)))
        for k in (1, 2, 3):
            a("s_cmp_eq_u32 %s, %d" % (sr(S_T1), k))
            a("s_cselect_b32 %s, 0x%x, %s" % (sr(dst), pk(tab[k], 0), sr(dst)))
            a("s_cselect_b32 %s, 0x%x, %s" % (sr(S_T2), pk(tab[k], 4), sr(S_T2)))
        a("s_cmp_ge_u32 %s, 4" % sr(S_T0))
        a("s_cselect_b32 %s, %s, %s" % (sr(dst), sr(S_T2), sr(dst)))
        a("s_lshr_b32 %s, %s, %s" % (sr(dst), sr(dst), sr(S_TYPE)))
        a("s_and_b32 %s, %s, 0xff" % (sr(dst), sr(dst)))
    a("s_lshr_b32 %s, %s, 5" % (sr(S_TYPE), sr(S_COL)))
    a("s_and_b32 %s, %s, 31" % (sr(S_COL), sr(S_COL)))
    a("s_lshl_b32 %s, %s, 3" % (sr(S_CH0), sr(S_COL)))
    a("s_add_u32 %s, %s, %s" % (sr(S_CH0), sr(S_CH0), sr(S_I)))
    a("s_cmp_eq_u32 %s, 1" % sr(S_TYPE))
    a("s_cselect_b32 %s, 2, 3" % sr(S_T0))
    a("s_lshl_b32 %s, %s, %s" % (sr(S_CH0), sr(S_CH0), sr(S_T0)))
    if CODEPF:
        a("s_cmp_lg_u32 %s, 0" % sr(S_I))
        a("s_cbranch_scc1 L_pcs")
        a("s_getpc_b64 s[36:37]")
        a.lab("L_pc")
        a("v_lshlrev_b32 %s, 7, v0" % vr(V_TMP + 1))
        a("v_mov_b32 %s, s37" % vr(V_TMP + 5))
        a("v_min_u32 %s, L_end-L_pc, %s" % (vr(V_TMP + 1), vr(V_TMP + 1)))
        a("v_add_co_u32 %s, vcc, s36, %s" % (vr(V_TMP + 4), vr(V_TMP + 1)))
        a("s_nop 1")
        a("v_addc_co_u32 %s, vcc, 0, %s, vcc" % (vr(V_TMP + 5), vr(V_TMP + 5)))
        a("v_cmp_gt_u32 vcc, 256, v0")
        a("s_and_saveexec_b64 s[38:39], vcc")
        a("s_cbranch_execz L_pcd")
        a("global_load_dword %s, %s, off" % (vr(V_TMP + 6), vr(V_TMP + 4, 2)))
        a.lab("L_pcd")
        a("s_mov_b64 exec, s[38:39]")
        a.lab("L_pcs")
    a("v_lshrrev_b32 %s, 6, v0" % vr(V_TMP))
    a("v_and_b32 %s, 63, v0" % vr(V_LANE))
    a("s_mov_b32 %s, 0x3f803f80" % sr(S_ONES))
    a("v_readfirstlane_b32 %s, %s" % (sr(S_WAVE), vr(V_TMP)))
    a("s_nop 3")
    a("s_cmp_eq_u32 %s, 0" % sr(S_TYPE))
    a("s_cbranch_scc0 L_nA")
    a("s_cmp_ge_u32 %s, 8" % sr(S_WAVE))
    a("s_cbranch_scc1 L_servA")
    a("s_branch L_addr")
    a.lab("L_nA")
    a("s_cmp_ge_u32 %s, 8" % sr(S_WAVE))
    a("s_cbranch_scc1 L_end")
    a("s_cmp_ge_u32 %s, 4" % sr(S_WAVE))
    a("s_cbranch_scc1 L_helper")
    a("s_cmp_lg_u32 %s, 2" % sr(S_TYPE))
    a("s_cbranch_scc1 L_addr")
    a("s_sub_u32 %s, %s, 9" % (sr(S_HJ), sr(S_HJ)))
    a("s_add_u32 %s, %s, 4" % (sr(S_WAVE), sr(S_WAVE)))
    a("v_add_u32 v0, 256, v0")
    a("s_branch L_helper")
    a.lab("L_addr")
    a.c("---- per-lane LDS addresses of a convolution wave ----")
    t0, t1, t2, t3 = V_TMP, V_TMP + 1, V_TMP + 2, V_TMP + 3
    a("v_and_b32 %s, 15, %s" % (vr(t0), vr(V_LANE)))
    a("v_lshrrev_b32 %s, 4, %s" % (vr(t1), vr(V_LANE)))
    a("v_add_u32 %s, 1, %s" % (vr(t2), vr(t0)))
    a("v_and_b32 %s, 3, %s" % (vr(t3), vr(t2)))
    a("v_sub_u32 %s, %s, %s" % (vr(t2), vr(t2), vr(t3)))
    a("v_lshlrev_b32 %s, 1, %s" % (vr(t2), vr(t2)))
    a("v_mul_u32_u24 %s, %d, %s" % (vr(t3), TCOPY, vr(t3)))
    a("v_add_u32 %s, %s, %s" % (vr(t2), vr(t2), vr(t3)))
    a("v_lshl_add_u32 %s, %s, 4, %s" % (vr(t2), vr(t1), vr(t2)))
    a("s_mul_i32 %s, %s, %d" % (sr(S_T1), sr(S_WAVE), TSZ))
    a("v_add_u32 %s, %s, %s" % (vr(V_T), sr(S_T1), vr(t2)))
    a("s_mul_i32 %s, %s, %d" % (sr(S_T0), sr(S_WAVE), PCH))
    a("s_add_u32 %s, %s, %d" % (sr(S_T0), sr(S_T0), P0))
    a("v_lshlrev_b32 %s, 5, %s" % (vr(t2), vr(t0)))
    a("v_lshl_add_u32 %s, %s, 3, %s" % (vr(t3), vr(t1), vr(t2)))
    a("v_add_u32 %s, %s, %s" % (vr(V_O), sr(S_T0), vr(t3)))
    a("s_add_u32 %s, %s, %d" % (sr(S_T1), sr(S_T1), OUTOFF))
    a("v_add_u32 %s, %s, %s" % (vr(V_O2), sr(S_T1), vr(t3)))
    a("v_lshlrev_b32 %s, 4, %s" % (vr(t3), vr(t1)))
    a("v_sub_u32 %s, %s, %s" % (vr(t3), vr(t3), vr(t2)))
    a("s_add_u32 %s, %s, 480" % (sr(S_T0), sr(S_T0)))
    a("v_add_u32 %s, %s, %s" % (vr(V_P), sr(S_T0), vr(t3)))
    a("s_waitcnt lgkmcnt(0)")
    stamp_n(0)
    a("s_cmp_eq_u32 %s, 1" % sr(S_TYPE))
    a("s_cbranch_scc1 L_pathB")


def step_offsets():
    for p in (1, 2, 3):
        a("s_mov_b32 %s, %d" % (sr(S_IN1 + p - 1), p * 512 * 1280))
        a("s_mov_b32 %s, %d" % (sr(S_OUT1 + p - 1), p * 512 * 2560))


def sin(p): return "0" if p == 0 else sr(S_IN1 + p - 1)
def sout(p): return "0" if p == 0 else sr(S_OUT1 + p - 1)


PFULL = 4576
PB0 = 4 * TSZ
OB0 = PB0 + 4 * PFULL


def helper():
    a.lab("L_helper")
    a.c("================= waves 4..7 of B / helper workgroups: warm the L2 for an A column =================")
    W4 = S_WAVE
    a("s_sub_u32 %s, %s, 4" % (sr(W4), sr(S_WAVE)))
    a("v_subrev_u32 v0, 256, v0")
    a("s_waitcnt lgkmcnt(0)")
    srd(SRD_X, PTR(1), 2048 * 1280)
    srd(SRD_V, PTR(2), 2048 * 1280)
    srd(SRD_Q, PTR(0), 2048 * 1280)
    srd(SRD_T, PTR(4), 640 * 4096)
    a("s_lshr_b32 %s, %s, 3" % (sr(S_W), sr(S_HJ)))
    a("s_lshl_b32 %s, %s, 7" % (sr(S_T1), sr(S_W)))
    a("v_mul_u32_u24 %s, 1280, v0" % vr(V_TMP))
    a("v_add_u32 %s, %s, %s" % (vr(V_TMP), sr(S_T1), vr(V_TMP)))
    a("s_cmp_eq_u32 %s, 2" % sr(S_TYPE))
    a("s_cbranch_scc1 L_h0")
    a("s_barrier")
    a.lab("L_h0")
    a("s_bitcmp1_b32 %s, 0" % sr(S_HJ))
    a("s_cbranch_scc0 L_h2")
    a("s_cmp_ge_u32 %s, 2" % sr(W4))
    a("s_cbranch_scc1 L_h1t")
    if START == 0:
        a("s_mul_i32 %s, %s, %d" % (sr(S_T0), sr(S_I), 128 * 1280))
    else:
        a("s_mul_i32 %s, %s, %d" % (sr(S_T0), sr(S_I), 64 * 1280))
        a("s_mul_i32 %s, %s, %d" % (sr(S_T2), sr(W4), 448 * 1280))
        a("s_add_u32 %s, %s, %s" % (sr(S_T0), sr(S_T0), sr(S_T2)))
    a("buffer_load_dword %s, %s, %s, %s offen" % (vr(V_TMP + 1), vr(V_TMP), sr(SRD_V, 4), sr(S_T0)))
    a("s_branch L_h1e")
    a.lab("L_h1t")
    a("v_and_b32 %s, 15, v0" % vr(V_TMP + 2))
    a("v_bfe_u32 %s, v0, 4, 3" % vr(V_TMP + 3))
    a("v_lshlrev_b32 %s, 7, %s" % (vr(V_TMP + 2), vr(V_TMP + 2)))
    a("v_lshl_add_u32 %s, %s, 12, %s" % (vr(V_TMP + 2), vr(V_TMP + 3), vr(V_TMP + 2)))
    a("s_lshl_b32 %s, %s, 3" % (sr(S_T0), sr(S_W)))
    a("s_add_u32 %s, %s, %s" % (sr(S_T0), sr(S_T0), sr(S_I)))
    a("s_lshl_b32 %s, %s, 15" % (sr(S_T0), sr(S_T0)))
    a("buffer_load_dword %s, %s, %s, %s offen offset:2048" % (vr(V_TMP + 1), vr(V_TMP + 2), sr(SRD_T, 4), sr(S_T0)))
    a.lab("L_h1e")
    a("s_waitcnt vmcnt(0)")
    a.lab("L_h2")
    a("s_cmp_lg_u32 %s, 2" % sr(S_TYPE))
    a("s_cbranch_scc1 L_h2a")
    a("s_barrier")
    a("s_branch L_h2b")
    a.lab("L_h2a")
    srd(SRD_O, PTR(6), 2048 * 1280)
    a("s_lshl_b32 %s, %s, 1" % (sr(S_T0), sr(S_CH0)))
    a("v_mul_u32_u24 %s, 1280, v0" % vr(V_TMP + 2))
    a("v_add_u32 %s, %s, %s" % (vr(V_TMP + 2), sr(S_T0), vr(V_TMP + 2)))
    a("s_mul_i32 %s, %s, %d" % (sr(S_T0), sr(S_I), 256 * 1280))
    a("buffer_load_dword %s, %s, %s, %s offen" % (vr(V_TMP + 1), vr(V_TMP + 2), sr(SRD_O, 4), sr(S_T0)))
    a("s_waitcnt vmcnt(0)")
    a.lab("L_h2b")
    a("s_bitcmp1_b32 %s, 1" % sr(S_HJ))
    a("s_cbranch_scc0 L_h3")
    a("s_lshr_b32 %s, %s, 1" % (sr(S_T0), sr(S_I)))
    a("s_add_u32 %s, %s, 4" % (sr(S_T0), sr(S_T0)))
    a("s_mul_i32 %s, %s, %d" % (sr(S_T0), sr(S_T0), 256 * 1280))
    a("s_bitcmp1_b32 %s, 0" % sr(S_I))
    a("s_cbranch_scc1 L_h2v")
    a("buffer_load_dword %s, %s, %s, %s offen" % (vr(V_TMP + 1), vr(V_TMP), sr(SRD_X, 4), sr(S_T0)))
    a("s_branch L_h2e")
    a.lab("L_h2v")
    a("buffer_load_dword %s, %s, %s, %s offen" % (vr(V_TMP + 1), vr(V_TMP), sr(SRD_V, 4), sr(S_T0)))
    a.lab("L_h2e")
    a("s_bitcmp1_b32 %s, 2" % sr(S_HJ))
    a("s_cbranch_scc0 L_h4")
    a("s_waitcnt vmcnt(0)")
    a.lab("L_h3")
    a("s_bitcmp1_b32 %s, 2" % sr(S_HJ))
    a("s_cbranch_scc0 L_h4")
    a("s_mul_i32 %s, %s, %d" % (sr(S_T0), sr(S_I), 256 * 1280))
    a("buffer_load_dword %s, %s, %s, %s offen" % (vr(V_TMP + 1), vr(V_TMP), sr(SRD_Q, 4), sr(S_T0)))
    a.lab("L_h4")
    a("s_cmp_eq_u32 %s, 2" % sr(S_TYPE))
    a("s_cbranch_scc1 L_end")
    service(1)


B_STEPS = eval(os.environ.get("BSTEPS", "[[0, 1, 2, 3], [4, 5], [6, 7]]"))


V_TA = V_TMP + 5
V_TA2 = V_TMP + 6


def write_copies(d, tmp, n):
    imm = 32 + 1024 * n
    a("ds_write_b128 %s, %s offset:%d" % (vr(V_TA), vr(d, 4), imm))
    for k in range(4):
        a("v_alignbit_b32 %s, %s, %s, 16" % (vr(tmp + k), vr(d + k + 1), vr(d + k)))
    a("ds_write_b128 %s, %s offset:%d" % (vr(V_TA), vr(tmp, 4), imm + TCOPY))
    for k in range(4):
        a("v_mov_b32 %s, %s" % (vr(tmp + 8 + k), vr(d + k + 1)))
    a("ds_write_b128 %s, %s offset:%d" % (vr(V_TA), vr(tmp + 8, 4), imm + 2 * TCOPY))
    for k in range(4):
        a("v_alignbit_b32 %s, %s, %s, 16" % (vr(tmp + 4 + k), vr(d + k + 2), vr(d + k + 1)))
    a("ds_write_b128 %s, %s offset:%d" % (vr(V_TA), vr(tmp + 4, 4), imm + 3 * TCOPY))


def write_head(d0, d1, tmp):
    for k in range(4):
        a("v_mov_b32 %s, 0" % vr(tmp + k))
    a("v_lshlrev_b32 %s, 16, %s" % (vr(tmp + 4), vr(d0)))
    a("v_alignbit_b32 %s, %s, %s, 16" % (vr(tmp + 5), vr(d1), vr(d0)))
    a("s_mov_b64 %s, exec" % sr(S_EX, 2))
    a("s_mov_b64 exec, 3")
    for s in range(4):
        a("ds_write_b128 %s, %s offset:%d" % (vr(V_TA), vr(tmp, 4), s * TCOPY))
    a("s_mov_b64 exec, 1")
    a("ds_write_b32 %s, %s offset:%d" % (vr(V_TA), vr(tmp + 4), TCOPY + 28))
    a("ds_write_b32 %s, %s offset:%d" % (vr(V_TA), vr(d0), 2 * TCOPY + 28))
    a("ds_write_b64 %s, %s offset:%d" % (vr(V_TA), vr(tmp + 4, 2), 3 * TCOPY + 24))
    a("s_mov_b64 exec, %s" % sr(S_EX, 2))


def tbase_addr():
    a("s_mul_i32 %s, %s, %d" % (sr(S_T0), sr(S_WAVE), TSZ))
    a("v_lshl_add_u32 %s, %s, 4, %s" % (vr(V_TA), vr(V_LANE), sr(S_T0)))


def d_load(ptr_idx, n):
    a("s_lshl_b32 %s, %s, 1" % (sr(S_T0), sr(S_CH0)))
    a("s_add_u32 %s, %s, %s" % (sr(S_T0 + 1), sr(PTR(ptr_idx)), sr(S_T0)))
    a("s_addc_u32 %s, %s, 0" % (sr(S_T0 + 2), sr(PTR(ptr_idx) + 1)))
    a("s_load_dwordx%d %s, %s, 0" % (n, sr(92, n), sr(S_T0 + 1, 2)))


def d_selectors():
    for c in range(8):
        src = 92 + (c >> 1)
        if c & 1:
            a("s_and_b32 %s, %s, 0xffff0000" % (sr(S_D + c), sr(src)))
        else:
            a("s_lshl_b32 %s, %s, 16" % (sr(S_D + c), sr(src)))


class VM:
    def __init__(self):
        self.q = []

    def issue(self, tag):
        self.q.append(tag)

    def wait(self, tag):
        idx = max(i for i, t in enumerate(self.q) if t == tag)
        return "s_waitcnt vmcnt(%d)" % (len(self.q) - 1 - idx)


def unpack(dst, src, c):
    if c & 1:
        return "v_and_b32 %s, 0xffff0000, %s" % (vr(dst), vr(src))
    return "v_lshlrev_b32 %s, 16, %s" % (vr(dst), vr(src))


def service(typ):
    T = "AB"[typ]
    NC = 8 if typ == 0 else 4
    ND = NC // 2
    vm = VM()
    V_IN, V_GO, V_WM, V_WP, V_OR, V_OR2, V_HA = 8, 9, 10, 11, 12, 13, 14
    X = 16
    Q = 48
    RAWB = [64, 92]
    U = 120
    PA = 128
    Y = 144
    O = 152
    a.c("================= service waves (%s): x in, y out =================" % T)
    if typ == 0:
        a.lab("L_servA")
        a("v_subrev_u32 v0, 512, v0")
        a("s_waitcnt lgkmcnt(0)")
        srd(SRD_X, PTR(1), 2048 * 1280)
        a("v_and_b32 %s, 15, v0" % vr(V_TMP))
        a("v_bfe_u32 %s, v0, 4, 1" % vr(V_TMP + 1))
        a("v_lshrrev_b32 %s, 6, v0" % vr(V_TMP + 2))
        a("v_lshl_add_u32 %s, %s, 4, %s" % (vr(V_TMP), vr(V_TMP + 2), vr(V_TMP)))
        a("v_lshl_add_u32 %s, %s, 9, %s" % (vr(V_TMP), vr(V_TMP + 1), vr(V_TMP)))
        a("s_lshl_b32 %s, %s, 6" % (sr(S_T0), sr(S_I)))
        a("v_add_u32 %s, %s, %s" % (vr(V_TMP), sr(S_T0), vr(V_TMP)))
        a("v_mul_u32_u24 %s, 1280, %s" % (vr(V_TMP), vr(V_TMP)))
        a("s_lshl_b32 %s, %s, 7" % (sr(S_T1), sr(S_COL)))
        a("buffer_load_dword %s, %s, %s, %s offen" % (vr(V_TMP + 1), vr(V_TMP), sr(SRD_X, 4), sr(S_T1)))
        srd(SRD_V, PTR(2), 2048 * 1280)
        srd(SRD_Q, PTR(0), 2048 * 1280)
        srd(SRD_O, PTR(15), 2048 * 2560)
        a("s_lshl_b32 %s, %s, 3" % (sr(S_T0), sr(S_CH0)))
        a("s_add_u32 %s, %s, %s" % (sr(S_T0 + 1), sr(PTR(3)), sr(S_T0)))
        a("s_addc_u32 %s, %s, 0" % (sr(S_T0 + 2), sr(PTR(3) + 1)))
        a("s_load_dwordx16 s[20:35], %s, 0" % sr(S_T0 + 1, 2))
        d_load(5, 4)
    else:
        srd(SRD_X, PTR(6), 2048 * 1280)
        srd(SRD_O, PTR(15), 2048 * 2560)
        d_load(14, 2)
    a("s_lshl_b32 %s, %s, 1" % (sr(S_T0), sr(S_CH0)))
    a("v_mul_u32_u24 %s, 2560, v0" % vr(V_TMP + 2))
    a("v_add_u32 %s, %s, %s" % (vr(V_IN), sr(S_T0), vr(V_TMP + 2)))
    a("s_add_u32 %s, %s, %d" % (sr(S_T0), sr(S_T0), 1280 * typ))
    a("v_lshl_add_u32 %s, %s, 1, %s" % (vr(V_GO), vr(V_TMP + 2), sr(S_T0)))
    a("v_lshlrev_b32 %s, 2, v0" % vr(V_TMP + 2))
    a("v_sub_u32 %s, %d, %s" % (vr(V_WM), P0 + 1020, vr(V_TMP + 2)))
    a("v_add_u32 %s, %d, %s" % (vr(V_OR), OUTOFF, vr(V_TMP + 2)))
    a("v_add_u32 %s, %d, %s" % (vr(V_OR2), OUTOFF + 4 * TSZ, vr(V_TMP + 2)))
    a("v_and_b32 %s, 28, %s" % (vr(V_TMP + 2), vr(V_TMP + 2)))
    a("v_add_u32 %s, %d, %s" % (vr(V_TMP + 2), P0 + 3552, vr(V_TMP + 2)))
    a("v_add_u32 %s, 3072, %s" % (vr(V_WP), vr(V_WM)))
    a("v_cmp_gt_u32 vcc, 128, v0")
    a("s_waitcnt lgkmcnt(0)")
    for c in range(NC):
        if c & 1:
            a("s_and_b32 %s, %s, 0xffff0000" % (sr(S_D + c), sr(92 + (c >> 1))))
        else:
            a("s_lshl_b32 %s, %s, 16" % (sr(S_D + c), sr(92 + (c >> 1))))
    a("v_cndmask_b32 %s, %s, %s, vcc" % (vr(V_WP), vr(V_WP), vr(V_TMP + 2)))
    if typ == 0:
        for c in range(8):
            for j in range(4):
                src = 20 + 2 * c + (j >> 1)
                dst = S_W + 4 * c + j
                if j & 1:
                    a("s_and_b32 %s, %s, 0xffff0000" % (sr(dst), sr(src)))
                else:
                    a("s_lshl_b32 %s, %s, 16" % (sr(dst), sr(src)))
    else:
        a("s_mov_b32 %s, 0x05040100" % sr(S_K0))
        a("s_mov_b32 %s, 0x07060302" % sr(S_K1))
    step_offsets()
    rnd = lambda x: a("v_cvt_pk_bf16_f32 %s, 0, %s" % (vr(x), vr(x)))

    def raw(p):
        R = RAWB[p & 1]
        a("v_add_u32 %s, %d, %s" % (vr(V_HA), p * 512 * 1280 - 3 * 1280, vr(V_IN)))
        a("s_mov_b64 exec, 1")
        for j in range(3):
            a("buffer_load_dwordx4 %s, %s, %s, 0 offen offset:%d" % (vr(R + 4 * j, 4), vr(V_HA), sr(SRD_X, 4), 1280 * j))
            vm.issue("raw%d" % p)
        a("s_mov_b64 exec, -1")
        for rr in range(2):
            a("buffer_load_dwordx4 %s, %s, %s, %s offen offset:%d" % (vr(R + 12 + 4 * rr, 4), vr(V_IN), sr(SRD_X, 4), sin(p), 1280 * rr))
            vm.issue("raw%d" % p)
        for rr in range(2):
            a("buffer_load_dwordx4 %s, %s, %s, %s offen offset:%d" % (vr(R + 20 + 4 * rr, 4), vr(V_IN), sr(SRD_V, 4), sin(p), 1280 * rr))
            vm.issue("raw%d" % p)

    def qload(p):
        for rr in range(2):
            a("buffer_load_dwordx4 %s, %s, %s, %s offen offset:%d" % (vr(Q + 8 * (p & 1) + 4 * rr, 4), vr(V_IN), sr(SRD_Q, 4), sin(p), 1280 * rr))
            vm.issue("q%d" % p)

    def pro(p):
        if typ == 1:
            a(vm.wait("u%d" % p))
            for c in range(4):
                a("v_perm_b32 %s, %s, %s, %s" % (vr(X + 4 * p + c), vr(Q + 4 * p + (c >> 1)), vr(Q + 4 * p + 2 + (c >> 1)), sr(S_K1 if c & 1 else S_K0)))
            return
        R = RAWB[p & 1]
        a(vm.wait("raw%d" % p))
        for dst, src in ((8, 16), (4, 12), (0, 8)):
            for d in range(4):
                a("v_mov_b32_dpp %s, %s wave_shr:1 row_mask:0xf bank_mask:0xf" % (vr(R + dst + d), vr(R + src + d)))
        for j in range(5):
            for c in range(8):
                a(unpack(U + c, R + 4 * j + (c >> 1), c))
            for rr in range(2):
                t = j - rr
                if t < 0 or t > 3:
                    continue
                w = lambda c: sr(S_W + 4 * c + 3 - t)
                acc = PA + 8 * rr
                if not EXACT:
                    for c in range(8):
                        a("%s %s, %s, %s" % ("v_mul_f32" if t == 0 else "v_fmac_f32", vr(acc + c), w(c), vr(U + c)))
                elif t == 0:
                    for c in range(8):
                        a("v_mul_f32 %s, %s, %s" % (vr(acc + c), w(c), vr(U + c)))
                    for c in range(8):
                        rnd(acc + c)
                else:
                    for c in range(8):
                        a("v_mul_f32 %s, %s, %s" % (vr(Y + c), w(c), vr(U + c)))
                    for c in range(8):
                        rnd(Y + c)
                    for c in range(8):
                        a("v_add_f32 %s, %s, %s" % (vr(acc + c), vr(acc + c), vr(Y + c)))
                    for c in range(8):
                        rnd(acc + c)
        for rr in range(2):
            for c in range(8):
                a(unpack(U + c, R + 20 + 4 * rr + (c >> 1), c))
            for c in range(8):
                a("v_mul_f32 %s, %s, %s" % (vr(PA + 8 * rr + c), vr(PA + 8 * rr + c), vr(U + c)))
        for c in range(8):
            a("v_cvt_pk_bf16_f32 %s, %s, %s" % (vr(X + 8 * p + c), vr(PA + 8 + c), vr(PA + c)))

    def pw(p, prev=False):
        for c in range(NC):
            off = c * PCH + (0 if prev else 1024 * (2 - p) if p < 3 else 2048)
            a("ds_write_b32 %s, %s offset:%d" % (vr(V_WP if prev else V_WM), vr(X + NC * p + c), off))

    def epi(p):
        for c in range(NC):
            a("ds_read_b32 %s, %s offset:%d" % (vr(Y + c), vr(V_OR if c < 4 else V_OR2), (c & 3) * TSZ + p * TCOPY))
        OO = O + 8 * (p & 1)
        first = True
        for rr in range(2):
            for c in range(NC):
                a(unpack(U + c, X + NC * p + c, 1 - rr))
            if first:
                a("s_waitcnt lgkmcnt(0)")
                first = False
            for c in range(NC):
                a(unpack(PA + c, Y + c, rr))
            if EXACT:
                for c in range(NC):
                    a("v_mul_f32 %s, %s, %s" % (vr(U + c), sr(S_D + c), vr(U + c)))
                for c in range(NC):
                    rnd(U + c)
                for c in range(NC):
                    a("v_add_f32 %s, %s, %s" % (vr(PA + c), vr(PA + c), vr(U + c)))
                if typ == 0:
                    for c in range(NC):
                        rnd(PA + c)
            else:
                for c in range(NC):
                    a("v_fmac_f32 %s, %s, %s" % (vr(PA + c), sr(S_D + c), vr(U + c)))
            if typ == 0:
                if rr == 0:
                    a(vm.wait("q%d" % p))
                for c in range(8):
                    a(unpack(U + c, Q + 8 * (p & 1) + 4 * rr + (c >> 1), c))
                for c in range(8):
                    a("v_mul_f32 %s, %s, %s" % (vr(PA + c), vr(PA + c), vr(U + c)))
            for d in range(ND):
                a("v_cvt_pk_bf16_f32 %s, %s, %s" % (vr(OO + 4 * rr + d), vr(PA + 2 * d), vr(PA + 2 * d + 1)))
            a("buffer_store_dwordx%d %s, %s, %s, %s offen offset:%d" % (ND, vr(OO + 4 * rr, ND), vr(V_GO), sr(SRD_O, 4), sout(p), 2560 * rr))
            vm.issue("st")

    def bar():
        a("s_waitcnt lgkmcnt(0)")
        a("s_barrier")

    if typ == 0:
        if SPRIO:
            a("s_setprio %d" % SPRIO)
        a("s_waitcnt vmcnt(0)")
        stamp_n(1)
        raw(0); raw(1)
        stamp_n(2)
        pro(0); pw(0)
        stamp_n(4)
        bar()
        raw(2); qload(0)
        pro(1); pw(1)
        raw(3)
        stamp_n(7)
        bar()
        qload(1)
        pro(2); pw(2)
        epi(0)
        stamp_n(9)
        bar()
        qload(2)
        pro(3); pw(3); pw(2, True)
        epi(1)
        stamp_n(11)
        bar()
        qload(3); epi(2)
        bar()
        epi(3)
    else:
        for p in range(4):
            for rr in range(2):
                a("buffer_load_dwordx2 %s, %s, %s, %s offen offset:%d" % (vr(Q + 4 * p + 2 * rr, 2), vr(V_IN), sr(SRD_X, 4), sin(p), 1280 * rr))
                vm.issue("u%d" % p)
        pro(0); pw(0)
        pro(1); pw(1)
        pro(2); pw(2)
        bar()
        pro(3)
        bar()
        epi(0)
        bar()
        pw(3); pw(2, True); epi(1)
        bar()
        epi(2)
        bar()
        epi(3)
        if STAMPS:
            a("s_add_u32 %s, %s, 4" % (sr(S_WAVE), sr(S_WAVE)))
    stamp_dump()
    a("s_endpgm")


def path_A():
    a.c("================= path A : convolution waves build T from ssm_k =================")
    a("s_add_u32 %s, %s, %s" % (sr(S_T0), sr(S_CH0), sr(S_WAVE)))
    a("s_lshl_b32 %s, %s, 12" % (sr(S_T0), sr(S_T0)))
    a("s_add_u32 %s, %s, %s" % (sr(SRD_T), sr(PTR(4)), sr(S_T0)))
    a("s_addc_u32 %s, %s, 0" % (sr(SRD_T + 1), sr(PTR(4) + 1)))
    a("s_and_b32 %s, %s, 0xffff" % (sr(SRD_T + 1), sr(SRD_T + 1)))
    a("s_mov_b32 %s, 4096" % sr(SRD_T + 2))
    a("s_mov_b32 %s, 0x00020000" % sr(SRD_T + 3))
    TD = V_TC
    a("v_lshlrev_b32 %s, 4, %s" % (vr(V_TMP), vr(V_LANE)))
    def t_load(n):
        a("buffer_load_dwordx4 %s, %s, %s, 0 offen offset:%d" % (vr(TD + 8 * n, 4), vr(V_TMP), sr(SRD_T, 4), 1024 * n))
        a("buffer_load_dwordx2 %s, %s, %s, 0 offen offset:%d" % (vr(TD + 8 * n + 4, 2), vr(V_TMP), sr(SRD_T, 4), 1024 * n + 16))
    t_load(0)
    t_load(1)
    tbase_addr()
    a("s_waitcnt vmcnt(0)")
    stamp_n(1)
    t_load(2)
    t_load(3)
    write_head(TD, TD + 1, V_TF)
    for n in range(2):
        write_copies(TD + 8 * n, V_TF + 8 + 12 * (n & 1), n)
    a("s_waitcnt vmcnt(0)")
    for n in range(2, 4):
        write_copies(TD + 8 * n, V_TF + 8 + 12 * (n & 1), n)
    stamp_n(4)
    a("s_branch L_conv")


def cmul(d, x, y):
    a("v_pk_mul_f32 %s, %s, %s op_sel_hi:[1,0]" % (vr(d, 2), vr(x, 2), vr(y, 2)))
    a("v_pk_fma_f32 %s, %s, %s, %s op_sel:[1,1,0] op_sel_hi:[0,1,1] neg_lo:[1,0,0]" % (vr(d, 2), vr(x, 2), vr(y, 2), vr(d, 2)))


def path_B():
    vm = VM()
    a.lab("L_pathB")
    a.c("================= path B : S4D =================")
    PRM = 80
    a("s_add_u32 %s, %s, %s" % (sr(S_T0), sr(S_CH0), sr(S_WAVE)))
    a("s_lshl_b32 %s, %s, 8" % (sr(S_T1), sr(S_T0)))
    a("v_lshl_add_u32 %s, %s, 2, %s" % (vr(V_TMP), vr(V_LANE), sr(S_T1)))
    for k in range(6):
        a("global_load_dword %s, %s, %s" % (vr(PRM + k), vr(V_TMP), sr(PTR(7 + k), 2)))
    a("s_barrier")
    a("s_lshl_b32 %s, %s, 1" % (sr(S_T1), sr(S_T0)))
    a("s_and_b32 %s, %s, -4" % (sr(S_T1), sr(S_T1)))
    a("s_add_u32 %s, %s, %s" % (sr(S_W), sr(PTR(13)), sr(S_T1)))
    a("s_addc_u32 %s, %s, 0" % (sr(S_W + 1), sr(PTR(13) + 1)))
    a("s_load_dword %s, %s, 0" % (sr(S_W + 2), sr(S_W, 2)))
    a("s_and_b32 %s, %s, 1" % (sr(S_W + 4), sr(S_T0)))
    a("s_waitcnt lgkmcnt(0)")
    a("s_lshl_b32 %s, %s, 16" % (sr(S_W + 3), sr(S_W + 2)))
    a("s_and_b32 %s, %s, 0xffff0000" % (sr(S_W + 2), sr(S_W + 2)))
    a("s_cmp_eq_u32 %s, 1" % sr(S_W + 4))
    a("s_cselect_b32 %s, %s, %s" % (sr(S_W + 2), sr(S_W + 2), sr(S_W + 3)))
    DT = 86
    a("v_mov_b32 %s, 0x3fb8aa3b" % vr(DT))
    a("v_mul_f32 %s, %s, %s" % (vr(DT), sr(S_W + 2), vr(DT)))
    a("v_exp_f32 %s, %s" % (vr(DT), vr(DT)))
    AW = V_TMP + 1
    AR = V_TMP + 2
    a("s_mul_i32 %s, %s, %d" % (sr(S_T0), sr(S_WAVE), TSZ))
    a("v_cvt_pk_bf16_f32 %s, 0, %s" % (vr(DT), vr(DT)))
    a("v_lshl_add_u32 %s, %s, 3, %s" % (vr(AW), vr(V_LANE), sr(S_T0)))
    a("v_and_b32 %s, 15, %s" % (vr(AR), vr(V_LANE)))
    a("v_mul_u32_u24 %s, %d, %s" % (vr(AR), LROW, vr(AR)))
    a("v_lshrrev_b32 %s, 4, %s" % (vr(V_TMP + 3), vr(V_LANE)))
    a("v_lshl_add_u32 %s, %s, 4, %s" % (vr(AR), vr(V_TMP + 3), vr(AR)))
    a("v_add_u32 %s, %s, %s" % (vr(AR), sr(S_T0), vr(AR)))
    M = [72, 118]
    def AR2(m): return M[m]
    def AI2(m): return M[m] + 1
    def Wv(m): return M[m] + 2
    def Ep(m, phi): return M[m] + 4 + 2 * (phi - 1)
    def Rr(m, j): return M[m] + 18 + 2 * (j - 1)
    def E128(m): return M[m] + 34
    def G(m, i): return M[m] + 36 + 2 * (i & 1)
    def TA(m, n): return M[m] + 40 + 2 * (n % 3)
    CV = V_ACC + 16
    FRB = V_TC
    def FRA(kp): return M[kp >> 2] + 18 + 4 * (kp & 3)
    def FRC(kp): return M[kp >> 2] + 2 + 4 * (kp & 3)
    KACC = V_ACC
    stamp_n(1)
    a("s_waitcnt vmcnt(0)")
    stamp_n(2)
    for m in range(2):
        def un(dst, src):
            if m == 0:
                a("v_lshlrev_b32 %s, 16, %s" % (vr(dst), vr(src)))
            else:
                a("v_and_b32 %s, 0xffff0000, %s" % (vr(dst), vr(src)))
        un(AR2(m), PRM + 0)
        un(AI2(m), PRM + 1)
        un(TA(m, 0), PRM + 2)
        un(TA(m, 0) + 1, PRM + 3)
        un(TA(m, 1), PRM + 4)
        un(TA(m, 1) + 1, PRM + 5)
    for m in range(2):
        a("v_mul_f32 %s, %s, %s" % (vr(AR2(m)), vr(DT), vr(AR2(m))))
        a("v_mul_f32 %s, %s, %s" % (vr(AI2(m)), vr(DT), vr(AI2(m))))
        a("v_mul_f32 %s, 0x3fb8aa3b, %s" % (vr(AR2(m)), vr(AR2(m))))
        a("v_mul_f32 %s, 0.15915494, %s" % (vr(AI2(m)), vr(AI2(m))))
        a("v_mul_f32 %s, %s, %s" % (vr(TA(m, 0)), vr(DT), vr(TA(m, 0))))
        a("v_mul_f32 %s, %s, %s" % (vr(TA(m, 0) + 1), vr(DT), vr(TA(m, 0) + 1)))
        cmul(Wv(m), TA(m, 1), TA(m, 0))
    mx = CV
    a("v_max_f32 %s, |%s|, |%s|" % (vr(mx), vr(Wv(0)), vr(Wv(0) + 1)))
    a("v_max3_f32 %s, |%s|, |%s|, %s" % (vr(mx), vr(Wv(1)), vr(Wv(1) + 1), vr(mx)))
    dpp = ["row_shr:1 row_mask:0xf", "row_shr:2 row_mask:0xf", "row_shr:4 row_mask:0xf", "row_shr:8 row_mask:0xf", "row_bcast:15 row_mask:0xa", "row_bcast:31 row_mask:0xc"]
    k = 0
    for x, lit in ((1, "1.0"), (8, "0x41000000"), (128, "0x43000000")):
        for m in range(2):
            dst = Ep(m, 1) if x == 1 else Rr(m, 1) if x == 8 else E128(m)
            t = TA(m, 0)
            a("v_mul_f32 %s, %s, %s" % (vr(t), lit, vr(AR2(m))))
            a("v_mul_f32 %s, %s, %s" % (vr(t + 1), lit, vr(AI2(m))))
            a("v_max_f32_dpp %s, %s, %s %s bank_mask:0xf" % (vr(mx), vr(mx), vr(mx), dpp[k])); k += 1
            a("v_exp_f32 %s, %s" % (vr(t), vr(t)))
            a("v_fract_f32 %s, %s" % (vr(t + 1), vr(t + 1)))
            a("v_cos_f32 %s, %s" % (vr(t + 2), vr(t + 1)))
            a("v_sin_f32 %s, %s" % (vr(t + 3), vr(t + 1)))
            a("s_nop 0")
            a("v_mul_f32 %s, %s, %s" % (vr(dst), vr(t), vr(t + 2)))
            a("v_mul_f32 %s, %s, %s" % (vr(dst + 1), vr(t), vr(t + 3)))
    a("v_readlane_b32 %s, %s, 63" % (sr(S_SC), vr(mx)))
    cvi = [0]
    def put(off, p0, p1, neg):
        c = CV + 2 * (cvi[0] & 3); cvi[0] += 1
        n = "-" if neg else ""
        a("v_cvt_pk_f16_f32 %s, %s, %s%s" % (vr(c), vr(p0), n, vr(p0 + 1)))
        a("v_cvt_pk_f16_f32 %s, %s, %s%s" % (vr(c + 1), vr(p1), n, vr(p1 + 1)))
        a("ds_write_b64 %s, %s offset:%d" % (vr(AW), vr(c, 2), off))
    a("v_mov_b32 %s, 0x3c00" % vr(CV + 6))
    a("v_mov_b32 %s, 0x3c00" % vr(CV + 7))
    a("ds_write_b64 %s, %s offset:0" % (vr(AW), vr(CV + 6, 2)))
    a("s_and_b32 %s, %s, 0x7f800000" % (sr(S_SC), sr(S_SC)))
    a("s_sub_u32 %s, 0x7f000000, %s" % (sr(S_T0), sr(S_SC)))
    for m in range(2):
        a("v_mul_f32 %s, %s, %s" % (vr(Wv(m)), sr(S_T0), vr(Wv(m))))
        a("v_mul_f32 %s, %s, %s" % (vr(Wv(m) + 1), sr(S_T0), vr(Wv(m) + 1)))
    put(LROW, Rr(0, 1), Rr(1, 1), True)
    for j in range(2, 9):
        for m in range(2):
            cmul(Rr(m, j), Rr(m, j // 2), Rr(m, j - j // 2))
        put(j * LROW, Rr(0, j), Rr(1, j), True)
    for j in range(9, 16):
        for m in range(2):
            cmul(TA(m, j), Rr(m, 8), Rr(m, j - 8))
        put(j * LROW, TA(0, j), TA(1, j), True)
    for kp in range(8):
        a("ds_read_b128 %s, %s offset:%d" % (vr(FRB + 4 * kp, 4), vr(AR), 64 * kp))
    for phi in range(2, 8):
        for m in range(2):
            cmul(Ep(m, phi), Ep(m, phi // 2), Ep(m, phi - phi // 2))
    def lrow_off(row):
        return (KBUF if (row >> 4) != 1 else 0) + (row & 15) * LROW
    cur = [Wv(0), Wv(1)]
    tn = [0]
    for i in range(17):
        if i < 2:
            rows = [(8 * i + phi, phi) for phi in range(8)]
        elif i < 4:
            rows = [(16 + 4 * (i - 2) + f, 2 * f) for f in range(4)]
        elif i < 8:
            rows = [(24 + 2 * (i - 4) + f, 4 * f) for f in range(2)]
        else:
            rows = [(32 + (i - 8), 0)]
        if i == 2:
            for kp in range(8):
                a("ds_read_b128 %s, %s offset:%d" % (vr(FRA(kp), 4), vr(AR), KBUF + 64 * kp))
        if i == 8:
            for kp in range(8):
                a("ds_read_b128 %s, %s offset:%d" % (vr(FRA(kp), 4), vr(AR), 64 * kp))
        nxt = [G(0, i), G(1, i)]
        if i < 16:
            for m in range(2):
                cmul(nxt[m], cur[m], E128(m))
        for n, (row, phi) in enumerate(rows):
            if phi == 0:
                put(lrow_off(row), cur[0], cur[1], False)
            else:
                for m in range(2):
                    cmul(TA(m, tn[0]), cur[m], Ep(m, phi))
                put(lrow_off(row), TA(0, tn[0]), TA(1, tn[0]), False)
                tn[0] += 1
            if 22 <= row < 30:
                kp = row - 22
                if kp == 0:
                    a("s_waitcnt lgkmcnt(7)")
                a("v_mfma_f32_16x16x32_f16 %s, %s, %s, %s" % (vr(KACC, 4), vr(FRA(kp), 4), vr(FRB + 4 * kp, 4), "0" if kp == 0 else vr(KACC, 4)))
        cur = nxt
    for kp in range(8):
        a("ds_read_b128 %s, %s offset:%d" % (vr(FRC(kp), 4), vr(AR), KBUF + 64 * kp))
    j, g = V_TMP, V_TMP + 3
    A0, A1, A1b, A2 = 164, 165, 166, 167
    a("v_and_b32 %s, 15, %s" % (vr(j), vr(V_LANE)))
    a("s_mul_i32 %s, %s, %d" % (sr(S_T1), sr(S_WAVE), TSZ))
    a("v_lshrrev_b32 %s, 1, %s" % (vr(A0), vr(g)))
    a("v_lshlrev_b32 %s, 7, %s" % (vr(A0), vr(A0)))
    a("v_and_b32 %s, 1, %s" % (vr(A1), vr(g)))
    a("v_lshl_add_u32 %s, %s, 2, %s" % (vr(A0), vr(A1), vr(A0)))
    a("v_lshl_add_u32 %s, %s, 3, %s" % (vr(A0), vr(j), vr(A0)))
    a("v_lshl_add_u32 %s, %s, 1, %s" % (vr(A0), vr(A0), sr(S_T1)))
    a("v_lshlrev_b32 %s, 6, %s" % (vr(A2), vr(g)))
    a("v_cmp_gt_u32 vcc, 2, %s" % vr(g))
    a("v_lshlrev_b32 %s, 2, %s" % (vr(A1), vr(j)))
    a("v_lshlrev_b32 %s, 1, %s" % (vr(A1b), vr(j)))
    a("v_cndmask_b32 %s, %s, %s, vcc" % (vr(A1), vr(A1b), vr(A1)))
    a("s_waitcnt lgkmcnt(8)")
    for kp in range(8):
        a("v_mfma_f32_16x16x32_f16 %s, %s, %s, %s" % (vr(KACC + 4, 4), vr(FRA(kp), 4), vr(FRB + 4 * kp, 4), "0" if kp == 0 else vr(KACC + 4, 4)))
    a("s_waitcnt lgkmcnt(0)")
    for kp in range(8):
        a("v_mfma_f32_16x16x32_f16 %s, %s, %s, %s" % (vr(KACC + 8, 4), vr(FRC(kp), 4), vr(FRB + 4 * kp, 4), "0" if kp == 0 else vr(KACC + 8, 4)))
    a("v_add_u32 %s, %s, %s" % (vr(A1), vr(A1), vr(A2)))
    a("v_add_u32 %s, 256, %s" % (vr(A1), vr(A1)))
    a("v_mov_b32 %s, 32" % vr(A1b))
    a("v_cndmask_b32 %s, %s, 2, vcc" % (vr(A1b), vr(A1b)))
    a("v_add_u32 %s, %s, %s" % (vr(A1b), vr(A1b), vr(A1)))
    a("v_lshl_add_u32 %s, %s, 1, %s" % (vr(A1), vr(A1), sr(S_T1)))
    a("v_lshl_add_u32 %s, %s, 1, %s" % (vr(A1b), vr(A1b), sr(S_T1)))
    a("v_add3_u32 %s, %s, %s, %s" % (vr(A2), vr(A2), vr(j), "64"))
    a("v_add_u32 %s, 448, %s" % (vr(A2), vr(A2)))
    a("v_lshl_add_u32 %s, %s, 1, %s" % (vr(A2), vr(A2), sr(S_T1)))
    stamp_n(3)
    for k in range(12):
        a("v_mul_f32 %s, %s, %s" % (vr(KACC + k), sr(S_SC), vr(KACC + k)))
    pk = KACC + 12
    for k in range(6):
        a("v_cvt_pk_bf16_f32 %s, %s, %s" % (vr(pk + k), vr(KACC + 2 * k), vr(KACC + 2 * k + 1)))
    a("ds_write_b64 %s, %s offset:0" % (vr(A0), vr(pk, 2)))
    a("ds_write_b32 %s, %s offset:0" % (vr(A1), vr(pk + 2)))
    a("ds_write_b32 %s, %s offset:0" % (vr(A1b), vr(pk + 3)))
    a("ds_write_b16 %s, %s offset:0" % (vr(A2), vr(pk + 4)))
    a("ds_write_b16_d16_hi %s, %s offset:32" % (vr(A2), vr(pk + 4)))
    a("ds_write_b16 %s, %s offset:64" % (vr(A2), vr(pk + 5)))
    a("ds_write_b16_d16_hi %s, %s offset:96" % (vr(A2), vr(pk + 5)))
    a.c("---- expand the staircase into the four shifted copies ----")
    tbase_addr()
    D = V_TC
    H = V_TC + 32
    a("v_lshl_add_u32 %s, %s, 4, %s" % (vr(V_TMP), vr(V_LANE), sr(S_T1)))
    a("v_lshl_add_u32 %s, %s, 3, %s" % (vr(V_TMP + 1), vr(V_LANE), sr(S_T1)))
    a("v_lshl_add_u32 %s, %s, 2, %s" % (vr(V_TMP + 2), vr(V_LANE), sr(S_T1)))
    a("v_lshl_add_u32 %s, %s, 1, %s" % (vr(V_TMP + 3), vr(V_LANE), sr(S_T1)))
    a("s_mov_b32 %s, 0x01000100" % sr(S_K0))
    a("s_mov_b32 %s, 0x03020302" % sr(S_K1))
    a("ds_read_b128 %s, %s" % (vr(D, 4), vr(V_TMP)))
    a("ds_read_b64 %s, %s offset:16" % (vr(D + 4, 2), vr(V_TMP)))
    a("ds_read_b64 %s, %s offset:256" % (vr(H, 2), vr(V_TMP + 1)))
    a("ds_read_b32 %s, %s offset:264" % (vr(H + 2), vr(V_TMP + 1)))
    a("ds_read_b32 %s, %s offset:%d" % (vr(H + 4), vr(V_TMP + 2), 2 * 384))
    a("ds_read_b32 %s, %s offset:%d" % (vr(H + 5), vr(V_TMP + 2), 2 * 384 + 4))
    for n in (2, 3):
        o = 2 * (512 + 64 * (n - 2))
        a("ds_read_u16 %s, %s offset:%d" % (vr(H + 6 + 2 * (n - 2)), vr(V_TMP + 3), o))
        a("ds_read_u16 %s, %s offset:%d" % (vr(H + 7 + 2 * (n - 2)), vr(V_TMP + 3), o + 2))
    a("v_and_b32 %s, 1, %s" % (vr(V_TMP), vr(V_LANE)))
    a("v_cmp_eq_u32 vcc, 0, %s" % vr(V_TMP))
    a("s_waitcnt lgkmcnt(0)")
    a("s_mov_b32 exec_hi, 0")
    a("s_mov_b32 exec_lo, 0x80000000")
    a("v_lshrrev_b32 %s, 16, %s" % (vr(D + 5), vr(D + 4)))
    a("v_perm_b32 %s, %s, %s, %s" % (vr(D + 4), vr(D + 4), vr(D + 4), sr(S_K0)))
    a("s_mov_b32 exec_lo, 0")
    a("s_mov_b32 exec_hi, -1")
    a("v_perm_b32 %s, %s, %s, %s" % (vr(D), vr(H), vr(H), sr(S_K0)))
    a("v_alignbit_b32 %s, %s, %s, 16" % (vr(D + 1), vr(H + 1), vr(H)))
    a("v_perm_b32 %s, %s, %s, %s" % (vr(D + 2), vr(H + 1), vr(H + 1), sr(S_K0)))
    a("v_alignbit_b32 %s, %s, %s, 16" % (vr(D + 3), vr(H + 2), vr(H + 1)))
    a("v_perm_b32 %s, %s, %s, %s" % (vr(D + 4), vr(H + 2), vr(H + 2), sr(S_K0)))
    a("v_lshrrev_b32 %s, 16, %s" % (vr(D + 5), vr(H + 2)))
    a("s_mov_b32 exec_hi, 0x80000000")
    a("v_mov_b32 %s, %s" % (vr(D + 5), vr(D + 4)))
    a("s_mov_b64 exec, -1")
    write_head(D, D + 1, 84)
    write_copies(D, 92, 0)
    D2 = D + 8
    a("v_perm_b32 %s, %s, %s, %s" % (vr(D2), vr(H + 4), vr(H + 4), sr(S_K0)))
    a("v_mov_b32 %s, %s" % (vr(D2 + 1), vr(H + 4)))
    a("v_perm_b32 %s, %s, %s, %s" % (vr(D2 + 2), vr(H + 4), vr(H + 4), sr(S_K1)))
    for k in (3, 4, 5):
        a("v_perm_b32 %s, %s, %s, %s" % (vr(D2 + k), vr(H + 5), vr(H + 5), sr(S_K0)))
    write_copies(D2, 104, 1)
    for n in (2, 3):
        D3 = D + 8 * n
        ra, rb_ = H + 6 + 2 * (n - 2), H + 7 + 2 * (n - 2)
        a("v_lshl_or_b32 %s, %s, 16, %s" % (vr(D3), vr(ra), vr(ra)))
        a("v_lshl_or_b32 %s, %s, 16, %s" % (vr(D3 + 1), vr(ra), vr(ra)))
        for k in (3, 4, 5):
            a("v_lshl_or_b32 %s, %s, 16, %s" % (vr(D3 + k), vr(rb_), vr(rb_)))
        a("v_cndmask_b32 %s, %s, %s, vcc" % (vr(ra), vr(rb_), vr(ra)))
        a("v_lshl_or_b32 %s, %s, 16, %s" % (vr(D3 + 2), vr(rb_), vr(ra)))
        write_copies(D3, 92 + 12 * (n & 1), n)
    stamp_n(4)


DELAY = [int(x) for x in os.environ.get("DELAY", "12,0").split(",")]
MBAR_R = int(os.environ.get("MBAR_R", "1"))


def conv():
    a.lab("L_conv")
    a.c("================= convolution (both parts) =================")
    steps = [[0, 1], [2, 3], [4, 5], [6, 7]]

    def preg(r, d): return V_PF + 8 * (r & 1) + 4 * d

    def p_reads(si, r):
        return [("ds_read_b128 %s, %s offset:%d" % (vr(preg(r, d), 4), vr(V_P), 2560 - 512 * (w % 6) + 64 * r), ("P", si, r, d)) for d, w in enumerate(steps[si])]

    def treg(r, u):
        return V_TC + 8 * r + 4 * u if u < 2 else V_TF + 24 * (r & 1) + 4 * (u - 2)

    def t_reads(si, r):
        out = []
        for u in range(0 if si == 0 else 2, 8 - steps[si][0]):
            for hh in range(2):
                out.append(("ds_read_b64 %s, %s offset:%d" % (vr(treg(r, u) + 2 * hh, 2), vr(V_T), 512 * u + 64 * r + 8 * hh), ("T", si, r, u, hh)))
        return out

    lq = []
    state = {"done": -1}

    def need(*tags):
        idx = -1
        for tag in tags:
            idxs = [i for i, t in enumerate(lq) if t == tag]
            if idxs:
                idx = max(idx, idxs[-1])
        if idx <= state["done"]:
            return
        n = len(lq) - 1 - idx
        a("s_waitcnt lgkmcnt(%d)" % min(n, 15))
        state["done"] = len(lq) - 1 - min(n, 15)

    def emit(s_, tag=None):
        a(s_)
        lq.append(tag)

    def deposit(si):
        for c in steps[si]:
            acc = V_ACC + 4 * c
            a("v_cvt_pk_bf16_f32 %s, %s, %s" % (vr(acc), vr(acc), vr(acc + 1)))
            a("v_cvt_pk_bf16_f32 %s, %s, %s" % (vr(acc + 1), vr(acc + 2), vr(acc + 3)))
            emit("ds_write_b64 %s, %s offset:%d" % (vr(V_O2), vr(acc, 2), (c >> 1) * TCOPY + 512 * (c & 1)), "D")

    a("v_mov_b32 %s, 0" % vr(V_ACC))
    a("v_mov_b32 %s, 0" % vr(V_ACC + 1))
    emit("ds_write_b64 %s, %s offset:3072" % (vr(V_O), vr(V_ACC, 2)))
    for x in t_reads(0, 0):
        emit(*x)
    stamp_n(5)
    a("s_barrier")
    for x in p_reads(0, 0):
        emit(*x)
    touched = set()
    for si, st in enumerate(steps):
        a.c("---- step %d ----" % si)
        stamp_n(6 + 2 * si)
        ms = [(u + w, u, d) for u in range(8 - st[0]) for d, w in enumerate(st) if u + w <= 7]
        lastdep = max(i for i, m in enumerate(ms) if m[0] in st)
        early = lastdep + 5 < len(ms)
        last = si == len(steps) - 1
        vis = False
        for r in range(8):
            if r < 7:
                nxt = p_reads(si, r + 1) + t_reads(si, r + 1)
            elif last:
                nxt = []
            else:
                nxt = (p_reads(si + 1, 0) if vis else []) + t_reads(si + 1, 0)
            for i, (c, u, d) in enumerate(ms):
                acc = V_ACC + 4 * c
                src = vr(acc, 4) if c in touched else "0"
                touched.add(c)
                need(("P", si, r, d), ("T", si, r, u, 1))
                a("v_mfma_f32_16x16x32_bf16 %s, %s, %s, %s" % (vr(acc, 4), vr(treg(r, u), 4), vr(preg(r, d), 4), src))
                lo = (i * len(nxt) + len(ms) - 1) // len(ms) if len(nxt) > len(ms) else i
                hi = len(nxt) if i == len(ms) - 1 else (((i + 1) * len(nxt) + len(ms) - 1) // len(ms) if len(nxt) > len(ms) else i + 1)
                for k in range(lo, min(hi, len(nxt))):
                    emit(*nxt[k])
                if r == 7 and early and i == lastdep + 4:
                    a("s_nop 3")
                    deposit(si)
        if not early:
            a("s_nop 7")
            a("s_nop 1")
            deposit(si)
        need("D")
        a("s_barrier")
        if not vis and not last:
            for x in p_reads(si + 1, 0):
                emit(*x)
    stamp_dump()
    a("s_endpgm")


header()
prologue_common()
path_A()
path_B()
conv()
service(0)
helper()
footer()
out = sys.argv[1] if len(sys.argv) > 1 else "concat_heads__ssm_conv_h3__ssm_conv_s4__prompt.s"
open(out, "w").write(a.text())
print("wrote", out, len(a.l), "lines")
```

```python
import os
import sys

NAME = "concat_heads__ssm_conv_h3__ssm_conv_s4__prompt_kernel"
MODE = sys.argv[2] if len(sys.argv) > 2 else ""
STAMPS = MODE in ("stamps", "dbgt")
EXACT = int(os.environ.get("EXACT", "1"))
A242 = int(os.environ.get("A242", "0"))
P2EARLY = int(os.environ.get("P2EARLY", "1"))
SCHED = int(os.environ.get("SCHED", "0"))
MIX0 = int(os.environ.get("MIX0", "1"))
SPRIO = int(os.environ.get("SPRIO", "0"))
START = int(os.environ.get("START", "0"))
A3 = int(os.environ.get("A3", "0"))
UAT = [int(x) for x in os.environ.get("UAT", "8,11,14,16").split(",")]
TORDER = int(os.environ.get("TORDER", "0"))
CODEPF = int(os.environ.get("CODEPF", "0"))
SPREAD = int(os.environ.get("SPREAD", "1"))
RPM = int(os.environ.get("RPM", "2"))
FILL = int(os.environ.get("FILL", "2"))

TCOPY = 4160
TSZ = 16896
P0 = 8 * TSZ
PCH = 3584
LDS_TOTAL = P0 + 8 * PCH
OUTOFF = 3136
LROW = 528
KBUF = 16 * LROW


class A:
    def __init__(self):
        self.l = []

    def __call__(self, s):
        self.l.append("    " + s)

    def lab(self, s):
        self.l.append(s + ":")

    def c(self, s):
        self.l.append("    ; " + s)

    def text(self):
        return "\n".join(self.l) + "\n"


def vr(b, n=1):
    return "v%d" % b if n == 1 else "v[%d:%d]" % (b, b + n - 1)


def sr(b, n=1):
    return "s%d" % b if n == 1 else "s[%d:%d]" % (b, b + n - 1)


a = A()

S_TYPE = 3
S_PTR = 4
def PTR(i): return S_PTR + 2 * i
S_WAVE = 40
S_COL = 41
S_I = 42
S_CH0 = 43
SRD_X = 44
SRD_V = 48
SRD_Q = 52
SRD_T = 56
SRD_O = 60
S_W = 64
S_D = 4
S_ONES = 96
S_HJ = 97
S_T0 = 99
S_T1 = 100
S_T2 = 101
S_EX = 20
S_SC = 22
S_IN1 = 23
S_OUT1 = 32
S_K0 = 26
S_K1 = 27

V_LANE = 1
V_T = 2
V_P = 3
V_O = 4
V_O2 = 5
V_ST = 6
V_ACC = 8
V_TMP = 32
V_TC = 40
V_TF = 104
V_PF = 152
NVGPR = 168


def stamp_n(n):
    if not STAMPS:
        return
    a("s_memrealtime s[36:37]")
    a("s_waitcnt lgkmcnt(0)")
    a("v_writelane_b32 %s, s36, %d" % (vr(V_ST), n))
    a("s_memtime s[36:37]")
    a("s_waitcnt lgkmcnt(0)")
    a("v_writelane_b32 %s, s36, %d" % (vr(V_ST), n + 16))


_dd = [0]
def stamp_dump():
    if not STAMPS:
        return
    a("s_waitcnt vmcnt(0)")
    stamp_n(15)
    if MODE == "dbgt":
        a("s_load_dwordx2 s[36:37], s[0:1], 128")
        a("s_cmp_lg_u32 %s, 0" % sr(S_WAVE))
        a("s_cbranch_scc1 L_end")
        a("s_cmp_lg_u32 s2, %d" % (0 if _dd[0] == 0 else 130))
        a("s_cbranch_scc1 L_end")
        for k, ln in enumerate((0, 1, 6, 15, 16, 17, 22, 31)):
            a("v_readlane_b32 s38, %s, %d" % (vr(V_ST), ln))
            a("s_nop 3")
            a("v_mov_b32 %s, s38" % vr(V_S + k))
        a("v_mov_b32 %s, %d" % (vr(V_ST + 1), 32 * _dd[0]))
        a("s_waitcnt lgkmcnt(0)")
        a("s_mov_b64 exec, 1")
        a("global_store_dwordx4 %s, %s, s[36:37]" % (vr(V_ST + 1), vr(V_S, 4)))
        a("global_store_dwordx4 %s, %s, s[36:37] offset:16" % (vr(V_ST + 1), vr(V_S + 4, 4)))
        _dd[0] += 1
        return
    a("s_load_dwordx2 s[36:37], s[0:1], 136")
    a("s_lshl_b32 s38, s2, 4")
    a("s_add_u32 s38, s38, %s" % sr(S_WAVE))
    a("s_lshl_b32 s38, s38, 8")
    a("v_lshl_add_u32 %s, %s, 2, s38" % (vr(V_ST + 1), vr(V_LANE)))
    a("s_waitcnt lgkmcnt(0)")
    a("global_store_dword %s, %s, s[36:37]" % (vr(V_ST + 1), vr(V_ST)))


def header():
    a.l.append("; fused H3 (shift-SSM * v -> long conv -> gate) and S4D (kernel generation + long conv), one launch")
    a.l.append("; @launch grid=(256,1,1) block=(768,1,1) lds=%d" % LDS_TOTAL)
    a.l.append('.amdgcn_target "amdgcn-amd-amdhsa--gfx950"')
    a.l.append(".text")
    a.l.append(".globl " + NAME)
    a.l.append(".p2align 8")
    a.l.append(".type %s,@function" % NAME)
    a.lab(NAME)


def footer():
    a.lab("L_end")
    a("s_endpgm")
    a.l.append('.section .rodata,"a"')
    a.l.append(".p2align 6")
    a.l.append(".amdhsa_kernel " + NAME)
    a.l.append("  .amdhsa_next_free_vgpr %d" % NVGPR)
    a.l.append("  .amdhsa_next_free_sgpr 102")
    a.l.append("  .amdhsa_accum_offset %d" % NVGPR)
    a.l.append("  .amdhsa_group_segment_fixed_size 0")
    a.l.append("  .amdhsa_kernarg_size 144")
    a.l.append("  .amdhsa_user_sgpr_count 2")
    a.l.append("  .amdhsa_user_sgpr_kernarg_segment_ptr 1")
    a.l.append("  .amdhsa_system_sgpr_workgroup_id_x 1")
    a.l.append(".end_amdhsa_kernel")


def srd(d, plo, nbytes):
    a("s_mov_b32 %s, %s" % (sr(d), sr(plo)))
    a("s_and_b32 %s, %s, 0xffff" % (sr(d + 1), sr(plo + 1)))
    a("s_mov_b32 %s, 0x%x" % (sr(d + 2), nbytes))
    a("s_mov_b32 %s, 0x00020000" % sr(d + 3))


SLOTS = [
    [0x00, 0x02, 0x04, 0x05, 0x06, 0x07, 0x08, 0x09],
    [0x01, 0x03, 0x22, 0x24, 0x26, 0x28, 0x2a, 0x2c],
    [0x20, 0x21, 0x23, 0x25, 0x27, 0x29, 0x2b, 0x2d],
    [0x40, 0x40, 0x30, 0x31, 0x32, 0x33, 0x2e, 0x2f],
]
HJOB = [
    [0, 0, 0, 0, 0, 0, 0, 0],
    [0, 0, 4 * 8 + 1, 5 * 8 + 1, 6 * 8 + 1, 7 * 8 + 1, 8 * 8 + 1, 9 * 8 + 1],
    [0 * 8 + 1, 2 * 8 + 1, 4 * 8 + 2, 5 * 8 + 2, 6 * 8 + 2, 7 * 8 + 2, 8 * 8 + 2, 9 * 8 + 2],
    [1 * 8 + 7, 3 * 8 + 7, 4 * 8 + 4, 5 * 8 + 4, 6 * 8 + 4, 7 * 8 + 4, 8 * 8 + 4, 9 * 8 + 4],
]


def prologue_common():
    a.c("---- decode workgroup -> (type, column, index) ----")
    if STAMPS:
        a("s_memrealtime s[94:95]")
    a("s_cmp_ge_u32 s2, 256")
    a("s_cbranch_scc1 L_end")
    a("s_load_dwordx16 %s, s[0:1], 0" % sr(S_PTR, 16))
    a("s_load_dwordx16 %s, s[0:1], 64" % sr(S_PTR + 16, 16))
    if os.environ.get("BADMAP"):
        a("s_lshr_b32 %s, s2, 5" % sr(S_T0))
        a("s_and_b32 %s, s2, 31" % sr(S_T1))
    else:
        a("s_and_b32 %s, s2, 7" % sr(S_T0))
        a("s_lshr_b32 %s, s2, 3" % sr(S_T1))
    a("s_and_b32 %s, %s, 7" % (sr(S_I), sr(S_T1)))
    a("s_lshr_b32 %s, %s, 3" % (sr(S_T1), sr(S_T1)))
    def pk(t, lo): return sum(t[lo + i] << (8 * i) for i in range(4))
    a("s_and_b32 %s, %s, 3" % (sr(S_TYPE), sr(S_T0)))
    a("s_lshl_b32 %s, %s, 3" % (sr(S_TYPE), sr(S_TYPE)))
    for dst, tab in ((S_COL, SLOTS), (S_HJ, HJOB)):
        a("s_mov_b32 %s, 0x%x" % (sr(dst), pk(tab[0], 0)))
        a("s_mov_b32 %s, 0x%x" % (sr(S_T2), pk(tab[0], 4)))
        for k in (1, 2, 3):
            a("s_cmp_eq_u32 %s, %d" % (sr(S_T1), k))
            a("s_cselect_b32 %s, 0x%x, %s" % (sr(dst), pk(tab[k], 0), sr(dst)))
            a("s_cselect_b32 %s, 0x%x, %s" % (sr(S_T2), pk(tab[k], 4), sr(S_T2)))
        a("s_cmp_ge_u32 %s, 4" % sr(S_T0))
        a("s_cselect_b32 %s, %s, %s" % (sr(dst), sr(S_T2), sr(dst)))
        a("s_lshr_b32 %s, %s, %s" % (sr(dst), sr(dst), sr(S_TYPE)))
        a("s_and_b32 %s, %s, 0xff" % (sr(dst), sr(dst)))
    a("s_lshr_b32 %s, %s, 5" % (sr(S_TYPE), sr(S_COL)))
    a("s_and_b32 %s, %s, 31" % (sr(S_COL), sr(S_COL)))
    a("s_lshl_b32 %s, %s, 3" % (sr(S_CH0), sr(S_COL)))
    a("s_add_u32 %s, %s, %s" % (sr(S_CH0), sr(S_CH0), sr(S_I)))
    a("s_cmp_eq_u32 %s, 1" % sr(S_TYPE))
    a("s_cselect_b32 %s, 2, 3" % sr(S_T0))
    a("s_lshl_b32 %s, %s, %s" % (sr(S_CH0), sr(S_CH0), sr(S_T0)))
    if CODEPF:
        a("s_cmp_lg_u32 %s, 0" % sr(S_I))
        a("s_cbranch_scc1 L_pcs")
        a("s_getpc_b64 s[36:37]")
        a.lab("L_pc")
        a("v_lshlrev_b32 %s, 7, v0" % vr(V_TMP + 1))
        a("v_mov_b32 %s, s37" % vr(V_TMP + 5))
        a("v_min_u32 %s, L_end-L_pc, %s" % (vr(V_TMP + 1), vr(V_TMP + 1)))
        a("v_add_co_u32 %s, vcc, s36, %s" % (vr(V_TMP + 4), vr(V_TMP + 1)))
        a("s_nop 1")
        a("v_addc_co_u32 %s, vcc, 0, %s, vcc" % (vr(V_TMP + 5), vr(V_TMP + 5)))
        a("v_cmp_gt_u32 vcc, 256, v0")
        a("s_and_saveexec_b64 s[38:39], vcc")
        a("s_cbranch_execz L_pcd")
        a("global_load_dword %s, %s, off" % (vr(V_TMP + 6), vr(V_TMP + 4, 2)))
        a.lab("L_pcd")
        a("s_mov_b64 exec, s[38:39]")
        a.lab("L_pcs")
    a("v_lshrrev_b32 %s, 6, v0" % vr(V_TMP))
    a("v_and_b32 %s, 63, v0" % vr(V_LANE))
    a("s_mov_b32 %s, 0x3f803f80" % sr(S_ONES))
    a("v_readfirstlane_b32 %s, %s" % (sr(S_WAVE), vr(V_TMP)))
    a("s_nop 3")
    a("s_cmp_eq_u32 %s, 0" % sr(S_TYPE))
    a("s_cbranch_scc0 L_nA")
    a("s_cmp_ge_u32 %s, 8" % sr(S_WAVE))
    a("s_cbranch_scc1 L_servA")
    a("s_branch L_addr")
    a.lab("L_nA")
    a("s_cmp_ge_u32 %s, 8" % sr(S_WAVE))
    a("s_cbranch_scc1 L_end")
    a("s_cmp_ge_u32 %s, 4" % sr(S_WAVE))
    a("s_cbranch_scc1 L_helper")
    a("s_cmp_lg_u32 %s, 2" % sr(S_TYPE))
    a("s_cbranch_scc1 L_addr")
    a("s_sub_u32 %s, %s, 9" % (sr(S_HJ), sr(S_HJ)))
    a("s_add_u32 %s, %s, 4" % (sr(S_WAVE), sr(S_WAVE)))
    a("v_add_u32 v0, 256, v0")
    a("s_branch L_helper")
    a.lab("L_addr")
    a.c("---- per-lane LDS addresses of a convolution wave ----")
    t0, t1, t2, t3 = V_TMP, V_TMP + 1, V_TMP + 2, V_TMP + 3
    a("v_and_b32 %s, 15, %s" % (vr(t0), vr(V_LANE)))
    a("v_lshrrev_b32 %s, 4, %s" % (vr(t1), vr(V_LANE)))
    a("v_add_u32 %s, 1, %s" % (vr(t2), vr(t0)))
    a("v_and_b32 %s, 3, %s" % (vr(t3), vr(t2)))
    a("v_sub_u32 %s, %s, %s" % (vr(t2), vr(t2), vr(t3)))
    a("v_lshlrev_b32 %s, 1, %s" % (vr(t2), vr(t2)))
    a("v_mul_u32_u24 %s, %d, %s" % (vr(t3), TCOPY, vr(t3)))
    a("v_add_u32 %s, %s, %s" % (vr(t2), vr(t2), vr(t3)))
    a("v_lshl_add_u32 %s, %s, 4, %s" % (vr(t2), vr(t1), vr(t2)))
    a("s_mul_i32 %s, %s, %d" % (sr(S_T1), sr(S_WAVE), TSZ))
    a("v_add_u32 %s, %s, %s" % (vr(V_T), sr(S_T1), vr(t2)))
    a("s_mul_i32 %s, %s, %d" % (sr(S_T0), sr(S_WAVE), PCH))
    a("s_add_u32 %s, %s, %d" % (sr(S_T0), sr(S_T0), P0))
    a("v_lshlrev_b32 %s, 5, %s" % (vr(t2), vr(t0)))
    a("v_lshl_add_u32 %s, %s, 3, %s" % (vr(t3), vr(t1), vr(t2)))
    a("v_add_u32 %s, %s, %s" % (vr(V_O), sr(S_T0), vr(t3)))
    a("s_add_u32 %s, %s, %d" % (sr(S_T1), sr(S_T1), OUTOFF))
    a("v_add_u32 %s, %s, %s" % (vr(V_O2), sr(S_T1), vr(t3)))
    a("v_lshlrev_b32 %s, 4, %s" % (vr(t3), vr(t1)))
    a("v_sub_u32 %s, %s, %s" % (vr(t3), vr(t3), vr(t2)))
    a("s_add_u32 %s, %s, 480" % (sr(S_T0), sr(S_T0)))
    a("v_add_u32 %s, %s, %s" % (vr(V_P), sr(S_T0), vr(t3)))
    a("s_waitcnt lgkmcnt(0)")
    stamp_n(0)
    a("s_cmp_eq_u32 %s, 1" % sr(S_TYPE))
    a("s_cbranch_scc1 L_pathB")


def step_offsets():
    for p in (1, 2, 3):
        a("s_mov_b32 %s, %d" % (sr(S_IN1 + p - 1), p * 512 * 1280))
        a("s_mov_b32 %s, %d" % (sr(S_OUT1 + p - 1), p * 512 * 2560))


def sin(p): return "0" if p == 0 else sr(S_IN1 + p - 1)
def sout(p): return "0" if p == 0 else sr(S_OUT1 + p - 1)


PFULL = 4576
PB0 = 4 * TSZ
OB0 = PB0 + 4 * PFULL


def helper():
    a.lab("L_helper")
    a.c("================= waves 4..7 of B / helper workgroups: warm the L2 for an A column =================")
    W4 = S_WAVE
    a("s_sub_u32 %s, %s, 4" % (sr(W4), sr(S_WAVE)))
    a("v_subrev_u32 v0, 256, v0")
    a("s_waitcnt lgkmcnt(0)")
    srd(SRD_X, PTR(1), 2048 * 1280)
    srd(SRD_V, PTR(2), 2048 * 1280)
    srd(SRD_Q, PTR(0), 2048 * 1280)
    srd(SRD_T, PTR(4), 640 * 4096)
    a("s_lshr_b32 %s, %s, 3" % (sr(S_W), sr(S_HJ)))
    a("s_lshl_b32 %s, %s, 7" % (sr(S_T1), sr(S_W)))
    a("v_mul_u32_u24 %s, 1280, v0" % vr(V_TMP))
    a("v_add_u32 %s, %s, %s" % (vr(V_TMP), sr(S_T1), vr(V_TMP)))
    a("s_cmp_eq_u32 %s, 2" % sr(S_TYPE))
    a("s_cbranch_scc1 L_h0")
    a("s_barrier")
    a.lab("L_h0")
    a("s_bitcmp1_b32 %s, 0" % sr(S_HJ))
    a("s_cbranch_scc0 L_h2")
    a("s_cmp_ge_u32 %s, 2" % sr(W4))
    a("s_cbranch_scc1 L_h1t")
    if START == 0:
        a("s_mul_i32 %s, %s, %d" % (sr(S_T0), sr(S_I), 128 * 1280))
    else:
        a("s_mul_i32 %s, %s, %d" % (sr(S_T0), sr(S_I), 64 * 1280))
        a("s_mul_i32 %s, %s, %d" % (sr(S_T2), sr(W4), 448 * 1280))
        a("s_add_u32 %s, %s, %s" % (sr(S_T0), sr(S_T0), sr(S_T2)))
    a("buffer_load_dword %s, %s, %s, %s offen" % (vr(V_TMP + 1), vr(V_TMP), sr(SRD_V, 4), sr(S_T0)))
    a("s_branch L_h1e")
    a.lab("L_h1t")
    a("v_and_b32 %s, 15, v0" % vr(V_TMP + 2))
    a("v_bfe_u32 %s, v0, 4, 3" % vr(V_TMP + 3))
    a("v_lshlrev_b32 %s, 7, %s" % (vr(V_TMP + 2), vr(V_TMP + 2)))
    a("v_lshl_add_u32 %s, %s, 12, %s" % (vr(V_TMP + 2), vr(V_TMP + 3), vr(V_TMP + 2)))
    a("s_lshl_b32 %s, %s, 3" % (sr(S_T0), sr(S_W)))
    a("s_add_u32 %s, %s, %s" % (sr(S_T0), sr(S_T0), sr(S_I)))
    a("s_lshl_b32 %s, %s, 15" % (sr(S_T0), sr(S_T0)))
    a("buffer_load_dword %s, %s, %s, %s offen offset:2048" % (vr(V_TMP + 1), vr(V_TMP + 2), sr(SRD_T, 4), sr(S_T0)))
    a.lab("L_h1e")
    a("s_waitcnt vmcnt(0)")
    a.lab("L_h2")
    a("s_cmp_lg_u32 %s, 2" % sr(S_TYPE))
    a("s_cbranch_scc1 L_h2a")
    a("s_barrier")
    a("s_branch L_h2b")
    a.lab("L_h2a")
    srd(SRD_O, PTR(6), 2048 * 1280)
    a("s_lshl_b32 %s, %s, 1" % (sr(S_T0), sr(S_CH0)))
    a("v_mul_u32_u24 %s, 1280, v0" % vr(V_TMP + 2))
    a("v_add_u32 %s, %s, %s" % (vr(V_TMP + 2), sr(S_T0), vr(V_TMP + 2)))
    a("s_mul_i32 %s, %s, %d" % (sr(S_T0), sr(S_I), 256 * 1280))
    a("buffer_load_dword %s, %s, %s, %s offen" % (vr(V_TMP + 1), vr(V_TMP + 2), sr(SRD_O, 4), sr(S_T0)))
    a("s_waitcnt vmcnt(0)")
    a.lab("L_h2b")
    a("s_bitcmp1_b32 %s, 1" % sr(S_HJ))
    a("s_cbranch_scc0 L_h3")
    a("s_lshr_b32 %s, %s, 1" % (sr(S_T0), sr(S_I)))
    a("s_add_u32 %s, %s, 4" % (sr(S_T0), sr(S_T0)))
    a("s_mul_i32 %s, %s, %d" % (sr(S_T0), sr(S_T0), 256 * 1280))
    a("s_bitcmp1_b32 %s, 0" % sr(S_I))
    a("s_cbranch_scc1 L_h2v")
    a("buffer_load_dword %s, %s, %s, %s offen" % (vr(V_TMP + 1), vr(V_TMP), sr(SRD_X, 4), sr(S_T0)))
    a("s_branch L_h2e")
    a.lab("L_h2v")
    a("buffer_load_dword %s, %s, %s, %s offen" % (vr(V_TMP + 1), vr(V_TMP), sr(SRD_V, 4), sr(S_T0)))
    a.lab("L_h2e")
    a("s_bitcmp1_b32 %s, 2" % sr(S_HJ))
    a("s_cbranch_scc0 L_h4")
    a("s_waitcnt vmcnt(0)")
    a.lab("L_h3")
    a("s_bitcmp1_b32 %s, 2" % sr(S_HJ))
    a("s_cbranch_scc0 L_h4")
    a("s_mul_i32 %s, %s, %d" % (sr(S_T0), sr(S_I), 256 * 1280))
    a("buffer_load_dword %s, %s, %s, %s offen" % (vr(V_TMP + 1), vr(V_TMP), sr(SRD_Q, 4), sr(S_T0)))
    a.lab("L_h4")
    a("s_cmp_eq_u32 %s, 2" % sr(S_TYPE))
    a("s_cbranch_scc1 L_end")
    service(1)


B_STEPS = eval(os.environ.get("BSTEPS", "[[0, 1, 2, 3], [4, 5], [6, 7]]"))


V_TA = V_TMP + 5
V_TA2 = V_TMP + 6


def write_copies(d, tmp, n):
    imm = 32 + 1024 * n
    a("ds_write_b128 %s, %s offset:%d" % (vr(V_TA), vr(d, 4), imm))
    for k in range(4):
        a("v_alignbit_b32 %s, %s, %s, 16" % (vr(tmp + k), vr(d + k + 1), vr(d + k)))
    a("ds_write_b128 %s, %s offset:%d" % (vr(V_TA), vr(tmp, 4), imm + TCOPY))
    for k in range(4):
        a("v_mov_b32 %s, %s" % (vr(tmp + 8 + k), vr(d + k + 1)))
    a("ds_write_b128 %s, %s offset:%d" % (vr(V_TA), vr(tmp + 8, 4), imm + 2 * TCOPY))
    for k in range(4):
        a("v_alignbit_b32 %s, %s, %s, 16" % (vr(tmp + 4 + k), vr(d + k + 2), vr(d + k + 1)))
    a("ds_write_b128 %s, %s offset:%d" % (vr(V_TA), vr(tmp + 4, 4), imm + 3 * TCOPY))


def write_head(d0, d1, tmp):
    for k in range(4):
        a("v_mov_b32 %s, 0" % vr(tmp + k))
    a("v_lshlrev_b32 %s, 16, %s" % (vr(tmp + 4), vr(d0)))
    a("v_alignbit_b32 %s, %s, %s, 16" % (vr(tmp + 5), vr(d1), vr(d0)))
    a("s_mov_b64 %s, exec" % sr(S_EX, 2))
    a("s_mov_b64 exec, 3")
    for s in range(4):
        a("ds_write_b128 %s, %s offset:%d" % (vr(V_TA), vr(tmp, 4), s * TCOPY))
    a("s_mov_b64 exec, 1")
    a("ds_write_b32 %s, %s offset:%d" % (vr(V_TA), vr(tmp + 4), TCOPY + 28))
    a("ds_write_b32 %s, %s offset:%d" % (vr(V_TA), vr(d0), 2 * TCOPY + 28))
    a("ds_write_b64 %s, %s offset:%d" % (vr(V_TA), vr(tmp + 4, 2), 3 * TCOPY + 24))
    a("s_mov_b64 exec, %s" % sr(S_EX, 2))


def tbase_addr():
    a("s_mul_i32 %s, %s, %d" % (sr(S_T0), sr(S_WAVE), TSZ))
    a("v_lshl_add_u32 %s, %s, 4, %s" % (vr(V_TA), vr(V_LANE), sr(S_T0)))


def d_load(ptr_idx, n):
    a("s_lshl_b32 %s, %s, 1" % (sr(S_T0), sr(S_CH0)))
    a("s_add_u32 %s, %s, %s" % (sr(S_T0 + 1), sr(PTR(ptr_idx)), sr(S_T0)))
    a("s_addc_u32 %s, %s, 0" % (sr(S_T0 + 2), sr(PTR(ptr_idx) + 1)))
    a("s_load_dwordx%d %s, %s, 0" % (n, sr(92, n), sr(S_T0 + 1, 2)))


def d_selectors():
    for c in range(8):
        src = 92 + (c >> 1)
        if c & 1:
            a("s_and_b32 %s, %s, 0xffff0000" % (sr(S_D + c), sr(src)))
        else:
            a("s_lshl_b32 %s, %s, 16" % (sr(S_D + c), sr(src)))


class VM:
    def __init__(self):
        self.q = []

    def issue(self, tag):
        self.q.append(tag)

    def wait(self, tag):
        idx = max(i for i, t in enumerate(self.q) if t == tag)
        return "s_waitcnt vmcnt(%d)" % (len(self.q) - 1 - idx)


def unpack(dst, src, c):
    if c & 1:
        return "v_and_b32 %s, 0xffff0000, %s" % (vr(dst), vr(src))
    return "v_lshlrev_b32 %s, 16, %s" % (vr(dst), vr(src))


def service(typ):
    T = "AB"[typ]
    NC = 8 if typ == 0 else 4
    ND = NC // 2
    vm = VM()
    V_IN, V_GO, V_WM, V_WP, V_OR, V_OR2, V_HA = 8, 9, 10, 11, 12, 13, 14
    X = 16
    Q = 48
    RAWB = [64, 92]
    U = 120
    PA = 128
    Y = 144
    O = 152
    a.c("================= service waves (%s): x in, y out =================" % T)
    if typ == 0:
        a.lab("L_servA")
        a("v_subrev_u32 v0, 512, v0")
        a("s_waitcnt lgkmcnt(0)")
        srd(SRD_X, PTR(1), 2048 * 1280)
        a("v_and_b32 %s, 15, v0" % vr(V_TMP))
        a("v_bfe_u32 %s, v0, 4, 1" % vr(V_TMP + 1))
        a("v_lshrrev_b32 %s, 6, v0" % vr(V_TMP + 2))
        a("v_lshl_add_u32 %s, %s, 4, %s" % (vr(V_TMP), vr(V_TMP + 2), vr(V_TMP)))
        a("v_lshl_add_u32 %s, %s, 9, %s" % (vr(V_TMP), vr(V_TMP + 1), vr(V_TMP)))
        a("s_lshl_b32 %s, %s, 6" % (sr(S_T0), sr(S_I)))
        a("v_add_u32 %s, %s, %s" % (vr(V_TMP), sr(S_T0), vr(V_TMP)))
        a("v_mul_u32_u24 %s, 1280, %s" % (vr(V_TMP), vr(V_TMP)))
        a("s_lshl_b32 %s, %s, 7" % (sr(S_T1), sr(S_COL)))
        a("buffer_load_dword %s, %s, %s, %s offen" % (vr(V_TMP + 1), vr(V_TMP), sr(SRD_X, 4), sr(S_T1)))
        srd(SRD_V, PTR(2), 2048 * 1280)
        srd(SRD_Q, PTR(0), 2048 * 1280)
        srd(SRD_O, PTR(15), 2048 * 2560)
        a("s_lshl_b32 %s, %s, 3" % (sr(S_T0), sr(S_CH0)))
        a("s_add_u32 %s, %s, %s" % (sr(S_T0 + 1), sr(PTR(3)), sr(S_T0)))
        a("s_addc_u32 %s, %s, 0" % (sr(S_T0 + 2), sr(PTR(3) + 1)))
        a("s_load_dwordx16 s[20:35], %s, 0" % sr(S_T0 + 1, 2))
        d_load(5, 4)
    else:
        srd(SRD_X, PTR(6), 2048 * 1280)
        srd(SRD_O, PTR(15), 2048 * 2560)
        d_load(14, 2)
    a("s_lshl_b32 %s, %s, 1" % (sr(S_T0), sr(S_CH0)))
    a("v_mul_u32_u24 %s, 2560, v0" % vr(V_TMP + 2))
    a("v_add_u32 %s, %s, %s" % (vr(V_IN), sr(S_T0), vr(V_TMP + 2)))
    a("s_add_u32 %s, %s, %d" % (sr(S_T0), sr(S_T0), 1280 * typ))
    a("v_lshl_add_u32 %s, %s, 1, %s" % (vr(V_GO), vr(V_TMP + 2), sr(S_T0)))
    a("v_lshlrev_b32 %s, 2, v0" % vr(V_TMP + 2))
    a("v_sub_u32 %s, %d, %s" % (vr(V_WM), P0 + 1020, vr(V_TMP + 2)))
    a("v_add_u32 %s, %d, %s" % (vr(V_OR), OUTOFF, vr(V_TMP + 2)))
    a("v_add_u32 %s, %d, %s" % (vr(V_OR2), OUTOFF + 4 * TSZ, vr(V_TMP + 2)))
    a("v_and_b32 %s, 28, %s" % (vr(V_TMP + 2), vr(V_TMP + 2)))
    a("v_add_u32 %s, %d, %s" % (vr(V_TMP + 2), P0 + 3552, vr(V_TMP + 2)))
    a("v_add_u32 %s, 3072, %s" % (vr(V_WP), vr(V_WM)))
    a("v_cmp_gt_u32 vcc, 128, v0")
    a("s_waitcnt lgkmcnt(0)")
    for c in range(NC):
        if c & 1:
            a("s_and_b32 %s, %s, 0xffff0000" % (sr(S_D + c), sr(92 + (c >> 1))))
        else:
            a("s_lshl_b32 %s, %s, 16" % (sr(S_D + c), sr(92 + (c >> 1))))
    a("v_cndmask_b32 %s, %s, %s, vcc" % (vr(V_WP), vr(V_WP), vr(V_TMP + 2)))
    if typ == 0:
        for c in range(8):
            for j in range(4):
                src = 20 + 2 * c + (j >> 1)
                dst = S_W + 4 * c + j
                if j & 1:
                    a("s_and_b32 %s, %s, 0xffff0000" % (sr(dst), sr(src)))
                else:
                    a("s_lshl_b32 %s, %s, 16" % (sr(dst), sr(src)))
    else:
        a("s_mov_b32 %s, 0x05040100" % sr(S_K0))
        a("s_mov_b32 %s, 0x07060302" % sr(S_K1))
    step_offsets()
    cur = []
    def e(t): cur.append(t)
    def grab(f, *args):
        del cur[:]
        f(*args)
        return list(cur)
    def run(lst):
        for t in lst:
            if isinstance(t, tuple):
                if t[0] == "w":
                    a(vm.wait(t[1]))
                else:
                    for x in t[1]:
                        a(x)
                    for tg in t[2]:
                        vm.issue(tg)
            else:
                a(t)
    def mix(math, mem, gap=None):
        if not mem:
            return math
        gap = gap or max(1, len(math) // (len(mem) + 1))
        out = []
        k = 0
        for n, t in enumerate(math):
            if n % gap == 0 and k < len(mem):
                out.append(mem[k]); k += 1
            out.append(t)
        return out + mem[k:]
    rnd = lambda x: e("v_cvt_pk_bf16_f32 %s, 0, %s" % (vr(x), vr(x)))

    def raw(p):
        R = RAWB[p & 1]
        h = ["v_add_u32 %s, %d, %s" % (vr(V_HA), p * 512 * 1280 - 3 * 1280, vr(V_IN)), "s_mov_b64 exec, 1"]
        for j in range(3):
            h.append("buffer_load_dwordx4 %s, %s, %s, 0 offen offset:%d" % (vr(R + 4 * j, 4), vr(V_HA), sr(SRD_X, 4), 1280 * j))
        h.append("s_mov_b64 exec, -1")
        e(("m", h, ["raw%d" % p] * 3))
        for rr in range(2):
            e(("m", ["buffer_load_dwordx4 %s, %s, %s, %s offen offset:%d" % (vr(R + 12 + 4 * rr, 4), vr(V_IN), sr(SRD_X, 4), sin(p), 1280 * rr)], ["raw%d" % p]))
        for rr in range(2):
            e(("m", ["buffer_load_dwordx4 %s, %s, %s, %s offen offset:%d" % (vr(R + 20 + 4 * rr, 4), vr(V_IN), sr(SRD_V, 4), sin(p), 1280 * rr)], ["raw%d" % p]))

    def qload(p):
        for rr in range(2):
            e(("m", ["buffer_load_dwordx4 %s, %s, %s, %s offen offset:%d" % (vr(Q + 8 * (p & 1) + 4 * rr, 4), vr(V_IN), sr(SRD_Q, 4), sin(p), 1280 * rr)], ["q%d" % p]))

    def pro(p):
        if typ == 1:
            e(("w", "u%d" % p))
            for c in range(4):
                e("v_perm_b32 %s, %s, %s, %s" % (vr(X + 4 * p + c), vr(Q + 4 * p + (c >> 1)), vr(Q + 4 * p + 2 + (c >> 1)), sr(S_K1 if c & 1 else S_K0)))
            return
        R = RAWB[p & 1]
        e(("w", "raw%d" % p))
        for dst, src in ((8, 16), (4, 12), (0, 8)):
            for d in range(4):
                e("v_mov_b32_dpp %s, %s wave_shr:1 row_mask:0xf bank_mask:0xf" % (vr(R + dst + d), vr(R + src + d)))
        for j in range(5):
            for c in range(8):
                e(unpack(U + c, R + 4 * j + (c >> 1), c))
            for rr in range(2):
                t = j - rr
                if t < 0 or t > 3:
                    continue
                w = lambda c: sr(S_W + 4 * c + 3 - t)
                acc = PA + 8 * rr
                if not EXACT:
                    for c in range(8):
                        e("%s %s, %s, %s" % ("v_mul_f32" if t == 0 else "v_fmac_f32", vr(acc + c), w(c), vr(U + c)))
                elif t == 0:
                    for c in range(8):
                        e("v_mul_f32 %s, %s, %s" % (vr(acc + c), w(c), vr(U + c)))
                    for c in range(8):
                        rnd(acc + c)
                else:
                    for c in range(8):
                        e("v_mul_f32 %s, %s, %s" % (vr(Y + c), w(c), vr(U + c)))
                    for c in range(8):
                        rnd(Y + c)
                    for c in range(8):
                        e("v_add_f32 %s, %s, %s" % (vr(acc + c), vr(acc + c), vr(Y + c)))
                    for c in range(8):
                        rnd(acc + c)
        for rr in range(2):
            for c in range(8):
                e(unpack(U + c, R + 20 + 4 * rr + (c >> 1), c))
            for c in range(8):
                e("v_mul_f32 %s, %s, %s" % (vr(PA + 8 * rr + c), vr(PA + 8 * rr + c), vr(U + c)))
        for c in range(8):
            e("v_cvt_pk_bf16_f32 %s, %s, %s" % (vr(X + 8 * p + c), vr(PA + 8 + c), vr(PA + c)))

    def pw(p, prev=False):
        for c in range(NC):
            off = c * PCH + (0 if prev else 1024 * (2 - p) if p < 3 else 2048)
            e("ds_write_b32 %s, %s offset:%d" % (vr(V_WP if prev else V_WM), vr(X + NC * p + c), off))

    def epi(p):
        for c in range(NC):
            e("ds_read_b32 %s, %s offset:%d" % (vr(Y + c), vr(V_OR if c < 4 else V_OR2), (c & 3) * TSZ + p * TCOPY))
        OO = O + 8 * (p & 1)
        first = True
        for rr in range(2):
            for c in range(NC):
                e(unpack(U + c, X + NC * p + c, 1 - rr))
            if first:
                e("s_waitcnt lgkmcnt(0)")
                first = False
            for c in range(NC):
                e(unpack(PA + c, Y + c, rr))
            if EXACT:
                for c in range(NC):
                    e("v_mul_f32 %s, %s, %s" % (vr(U + c), sr(S_D + c), vr(U + c)))
                for c in range(NC):
                    rnd(U + c)
                for c in range(NC):
                    e("v_add_f32 %s, %s, %s" % (vr(PA + c), vr(PA + c), vr(U + c)))
                if typ == 0:
                    for c in range(NC):
                        rnd(PA + c)
            else:
                for c in range(NC):
                    e("v_fmac_f32 %s, %s, %s" % (vr(PA + c), sr(S_D + c), vr(U + c)))
            if typ == 0:
                if rr == 0:
                    e(("w", "q%d" % p))
                for c in range(8):
                    e(unpack(U + c, Q + 8 * (p & 1) + 4 * rr + (c >> 1), c))
                for c in range(8):
                    e("v_mul_f32 %s, %s, %s" % (vr(PA + c), vr(PA + c), vr(U + c)))
            for d in range(ND):
                e("v_cvt_pk_bf16_f32 %s, %s, %s" % (vr(OO + 4 * rr + d), vr(PA + 2 * d), vr(PA + 2 * d + 1)))
            e(("m", ["buffer_store_dwordx%d %s, %s, %s, %s offen offset:%d" % (ND, vr(OO + 4 * rr, ND), vr(V_GO), sr(SRD_O, 4), sout(p), 2560 * rr)], ["st"]))

    def bar():
        a("s_waitcnt lgkmcnt(0)")
        a("s_barrier")

    G = grab
    if typ == 0:
        if SPRIO:
            a("s_setprio %d" % SPRIO)
        a("s_waitcnt vmcnt(0)")
        stamp_n(1)
        run(G(raw, 0))
        stamp_n(2)
        run(G(pro, 0) if MIX0 == 2 else mix(G(pro, 0), G(raw, 1)) if MIX0 else G(raw, 1) + G(pro, 0))
        run(G(pw, 0))
        stamp_n(4)
        bar()
        if MIX0 == 2:
            run(G(raw, 1))
        if SCHED == 0:
            run(mix(G(pro, 1) + G(pw, 1), G(raw, 2) + G(qload, 0)))
            stamp_n(7)
            bar()
            run(mix(G(epi, 0) + G(pro, 2) + G(pw, 2), G(raw, 3) + G(qload, 1)))
            stamp_n(9)
            bar()
            run(mix(G(pro, 3) + G(pw, 3) + G(pw, 2, True) + G(epi, 1), G(qload, 2)))
        elif SCHED == 1:
            run(mix(G(pro, 1) + G(pw, 1), G(raw, 2) + G(qload, 0)))
            run(mix(G(pro, 2) + G(pw, 2), G(raw, 3)))
            stamp_n(7)
            bar()
            run(mix(G(epi, 0) + G(pro, 3), G(qload, 1)))
            stamp_n(9)
            bar()
            run(G(pw, 3) + G(pw, 2, True) + mix(G(epi, 1), G(qload, 2)))
        else:
            run(mix(G(pro, 1) + G(pw, 1), G(raw, 2) + G(qload, 0)))
            run(G(raw, 3) + G(qload, 1))
            stamp_n(7)
            bar()
            run(G(pro, 2) + G(pw, 2) + G(epi, 0) + G(pro, 3))
            stamp_n(9)
            bar()
            run(G(pw, 3) + G(pw, 2, True) + mix(G(epi, 1), G(qload, 2)))
        stamp_n(11)
        bar()
        run(G(qload, 3) + G(epi, 2))
        bar()
        run(G(epi, 3))
    else:
        def uload(p):
            for rr in range(2):
                a("buffer_load_dwordx2 %s, %s, %s, %s offen offset:%d" % (vr(Q + 4 * p + 2 * rr, 2), vr(V_IN), sr(SRD_X, 4), sin(p), 1280 * rr))
                vm.issue("u%d" % p)
        uload(0); uload(1)
        run(G(pro, 0) + G(pw, 0))
        bar()
        uload(2); uload(3)
        run(G(pro, 1) + G(pw, 1))
        bar()
        run(G(pro, 2) + G(pw, 2) + G(epi, 0))
        bar()
        run(G(pro, 3) + G(pw, 3) + G(pw, 2, True) + G(epi, 1))
        bar()
        run(G(epi, 2))
        bar()
        run(G(epi, 3))
        if STAMPS:
            a("s_add_u32 %s, %s, 4" % (sr(S_WAVE), sr(S_WAVE)))
    stamp_dump()
    a("s_endpgm")


def path_A():
    a.c("================= path A : convolution waves build T from ssm_k =================")
    a("s_add_u32 %s, %s, %s" % (sr(S_T0), sr(S_CH0), sr(S_WAVE)))
    a("s_lshl_b32 %s, %s, 12" % (sr(S_T0), sr(S_T0)))
    a("s_add_u32 %s, %s, %s" % (sr(SRD_T), sr(PTR(4)), sr(S_T0)))
    a("s_addc_u32 %s, %s, 0" % (sr(SRD_T + 1), sr(PTR(4) + 1)))
    a("s_and_b32 %s, %s, 0xffff" % (sr(SRD_T + 1), sr(SRD_T + 1)))
    a("s_mov_b32 %s, 4096" % sr(SRD_T + 2))
    a("s_mov_b32 %s, 0x00020000" % sr(SRD_T + 3))
    TD = V_TC
    a("v_lshlrev_b32 %s, 4, %s" % (vr(V_TMP), vr(V_LANE)))
    def t_load(n):
        a("buffer_load_dwordx4 %s, %s, %s, 0 offen offset:%d" % (vr(TD + 8 * n, 4), vr(V_TMP), sr(SRD_T, 4), 1024 * n))
        a("buffer_load_dwordx2 %s, %s, %s, 0 offen offset:%d" % (vr(TD + 8 * n + 4, 2), vr(V_TMP), sr(SRD_T, 4), 1024 * n + 16))
    t_load(0)
    t_load(1)
    tbase_addr()
    a("s_waitcnt vmcnt(0)")
    stamp_n(1)
    t_load(2)
    t_load(3)
    write_head(TD, TD + 1, V_TF)
    for n in range(2):
        write_copies(TD + 8 * n, V_TF + 8 + 12 * (n & 1), n)
    a("s_waitcnt vmcnt(0)")
    for n in range(2, 4):
        write_copies(TD + 8 * n, V_TF + 8 + 12 * (n & 1), n)
    stamp_n(4)
    a("s_branch L_conv")


def cmul(d, x, y):
    a("v_pk_mul_f32 %s, %s, %s op_sel_hi:[1,0]" % (vr(d, 2), vr(x, 2), vr(y, 2)))
    a("v_pk_fma_f32 %s, %s, %s, %s op_sel:[1,1,0] op_sel_hi:[0,1,1] neg_lo:[1,0,0]" % (vr(d, 2), vr(x, 2), vr(y, 2), vr(d, 2)))


def path_B():
    vm = VM()
    a.lab("L_pathB")
    a.c("================= path B : S4D =================")
    PRM = 80
    a("s_add_u32 %s, %s, %s" % (sr(S_T0), sr(S_CH0), sr(S_WAVE)))
    a("s_lshl_b32 %s, %s, 8" % (sr(S_T1), sr(S_T0)))
    a("v_lshl_add_u32 %s, %s, 2, %s" % (vr(V_TMP), vr(V_LANE), sr(S_T1)))
    for k in range(6):
        a("global_load_dword %s, %s, %s" % (vr(PRM + k), vr(V_TMP), sr(PTR(7 + k), 2)))
    a("s_barrier")
    a("s_lshl_b32 %s, %s, 1" % (sr(S_T1), sr(S_T0)))
    a("s_and_b32 %s, %s, -4" % (sr(S_T1), sr(S_T1)))
    a("s_add_u32 %s, %s, %s" % (sr(S_W), sr(PTR(13)), sr(S_T1)))
    a("s_addc_u32 %s, %s, 0" % (sr(S_W + 1), sr(PTR(13) + 1)))
    a("s_load_dword %s, %s, 0" % (sr(S_W + 2), sr(S_W, 2)))
    a("s_and_b32 %s, %s, 1" % (sr(S_W + 4), sr(S_T0)))
    a("s_waitcnt lgkmcnt(0)")
    a("s_lshl_b32 %s, %s, 16" % (sr(S_W + 3), sr(S_W + 2)))
    a("s_and_b32 %s, %s, 0xffff0000" % (sr(S_W + 2), sr(S_W + 2)))
    a("s_cmp_eq_u32 %s, 1" % sr(S_W + 4))
    a("s_cselect_b32 %s, %s, %s" % (sr(S_W + 2), sr(S_W + 2), sr(S_W + 3)))
    DT = 86
    a("v_mov_b32 %s, 0x3fb8aa3b" % vr(DT))
    a("v_mul_f32 %s, %s, %s" % (vr(DT), sr(S_W + 2), vr(DT)))
    a("v_exp_f32 %s, %s" % (vr(DT), vr(DT)))
    AW = V_TMP + 1
    AR = V_TMP + 2
    a("s_mul_i32 %s, %s, %d" % (sr(S_T0), sr(S_WAVE), TSZ))
    a("v_cvt_pk_bf16_f32 %s, 0, %s" % (vr(DT), vr(DT)))
    a("v_lshl_add_u32 %s, %s, 3, %s" % (vr(AW), vr(V_LANE), sr(S_T0)))
    a("v_and_b32 %s, 15, %s" % (vr(AR), vr(V_LANE)))
    a("v_mul_u32_u24 %s, %d, %s" % (vr(AR), LROW, vr(AR)))
    a("v_lshrrev_b32 %s, 4, %s" % (vr(V_TMP + 3), vr(V_LANE)))
    a("v_lshl_add_u32 %s, %s, 4, %s" % (vr(AR), vr(V_TMP + 3), vr(AR)))
    a("v_add_u32 %s, %s, %s" % (vr(AR), sr(S_T0), vr(AR)))
    M = [72, 118]
    def AR2(m): return M[m]
    def AI2(m): return M[m] + 1
    def Wv(m): return M[m] + 2
    def Ep(m, phi): return M[m] + 4 + 2 * (phi - 1)
    def Rr(m, j): return M[m] + 18 + 2 * (j - 1)
    def E128(m): return M[m] + 34
    def G(m, i): return M[m] + 36 + 2 * (i & 1)
    def TA(m, n): return M[m] + 40 + 2 * (n % 3)
    CV = V_ACC + 16
    FRB = V_TC
    def FRA(kp): return M[kp >> 2] + 18 + 4 * (kp & 3)
    def FRC(kp): return M[kp >> 2] + 2 + 4 * (kp & 3)
    KACC = V_ACC
    stamp_n(1)
    a("s_waitcnt vmcnt(0)")
    stamp_n(2)
    for m in range(2):
        def un(dst, src):
            if m == 0:
                a("v_lshlrev_b32 %s, 16, %s" % (vr(dst), vr(src)))
            else:
                a("v_and_b32 %s, 0xffff0000, %s" % (vr(dst), vr(src)))
        un(AR2(m), PRM + 0)
        un(AI2(m), PRM + 1)
        un(TA(m, 0), PRM + 2)
        un(TA(m, 0) + 1, PRM + 3)
        un(TA(m, 1), PRM + 4)
        un(TA(m, 1) + 1, PRM + 5)
    for m in range(2):
        a("v_mul_f32 %s, %s, %s" % (vr(AR2(m)), vr(DT), vr(AR2(m))))
        a("v_mul_f32 %s, %s, %s" % (vr(AI2(m)), vr(DT), vr(AI2(m))))
        a("v_mul_f32 %s, 0x3fb8aa3b, %s" % (vr(AR2(m)), vr(AR2(m))))
        a("v_mul_f32 %s, 0.15915494, %s" % (vr(AI2(m)), vr(AI2(m))))
        a("v_mul_f32 %s, %s, %s" % (vr(TA(m, 0)), vr(DT), vr(TA(m, 0))))
        a("v_mul_f32 %s, %s, %s" % (vr(TA(m, 0) + 1), vr(DT), vr(TA(m, 0) + 1)))
        cmul(Wv(m), TA(m, 1), TA(m, 0))
    mx = CV
    a("v_max_f32 %s, |%s|, |%s|" % (vr(mx), vr(Wv(0)), vr(Wv(0) + 1)))
    a("v_max3_f32 %s, |%s|, |%s|, %s" % (vr(mx), vr(Wv(1)), vr(Wv(1) + 1), vr(mx)))
    dpp = ["row_shr:1 row_mask:0xf", "row_shr:2 row_mask:0xf", "row_shr:4 row_mask:0xf", "row_shr:8 row_mask:0xf", "row_bcast:15 row_mask:0xa", "row_bcast:31 row_mask:0xc"]
    k = 0
    for x, lit in ((1, "1.0"), (8, "0x41000000"), (128, "0x43000000")):
        for m in range(2):
            dst = Ep(m, 1) if x == 1 else Rr(m, 1) if x == 8 else E128(m)
            t = TA(m, 0)
            a("v_mul_f32 %s, %s, %s" % (vr(t), lit, vr(AR2(m))))
            a("v_mul_f32 %s, %s, %s" % (vr(t + 1), lit, vr(AI2(m))))
            a("v_max_f32_dpp %s, %s, %s %s bank_mask:0xf" % (vr(mx), vr(mx), vr(mx), dpp[k])); k += 1
            a("v_exp_f32 %s, %s" % (vr(t), vr(t)))
            a("v_fract_f32 %s, %s" % (vr(t + 1), vr(t + 1)))
            a("v_cos_f32 %s, %s" % (vr(t + 2), vr(t + 1)))
            a("v_sin_f32 %s, %s" % (vr(t + 3), vr(t + 1)))
            a("s_nop 0")
            a("v_mul_f32 %s, %s, %s" % (vr(dst), vr(t), vr(t + 2)))
            a("v_mul_f32 %s, %s, %s" % (vr(dst + 1), vr(t), vr(t + 3)))
    a("v_readlane_b32 %s, %s, 63" % (sr(S_SC), vr(mx)))
    cvi = [0]
    def put(off, p0, p1, neg):
        c = CV + 2 * (cvi[0] & 3); cvi[0] += 1
        n = "-" if neg else ""
        a("v_cvt_pk_f16_f32 %s, %s, %s%s" % (vr(c), vr(p0), n, vr(p0 + 1)))
        a("v_cvt_pk_f16_f32 %s, %s, %s%s" % (vr(c + 1), vr(p1), n, vr(p1 + 1)))
        a("ds_write_b64 %s, %s offset:%d" % (vr(AW), vr(c, 2), off))
    a("v_mov_b32 %s, 0x3c00" % vr(CV + 6))
    a("v_mov_b32 %s, 0x3c00" % vr(CV + 7))
    a("ds_write_b64 %s, %s offset:0" % (vr(AW), vr(CV + 6, 2)))
    a("s_and_b32 %s, %s, 0x7f800000" % (sr(S_SC), sr(S_SC)))
    a("s_sub_u32 %s, 0x7f000000, %s" % (sr(S_T0), sr(S_SC)))
    for m in range(2):
        a("v_mul_f32 %s, %s, %s" % (vr(Wv(m)), sr(S_T0), vr(Wv(m))))
        a("v_mul_f32 %s, %s, %s" % (vr(Wv(m) + 1), sr(S_T0), vr(Wv(m) + 1)))
    put(LROW, Rr(0, 1), Rr(1, 1), True)
    for j in range(2, 9):
        for m in range(2):
            cmul(Rr(m, j), Rr(m, j // 2), Rr(m, j - j // 2))
        put(j * LROW, Rr(0, j), Rr(1, j), True)
    for j in range(9, 16):
        for m in range(2):
            cmul(TA(m, j), Rr(m, 8), Rr(m, j - 8))
        put(j * LROW, TA(0, j), TA(1, j), True)
    for kp in range(8):
        a("ds_read_b128 %s, %s offset:%d" % (vr(FRB + 4 * kp, 4), vr(AR), 64 * kp))
    for phi in range(2, 8):
        for m in range(2):
            cmul(Ep(m, phi), Ep(m, phi // 2), Ep(m, phi - phi // 2))
    def lrow_off(row):
        return (KBUF if (row >> 4) != 1 else 0) + (row & 15) * LROW
    cur = [Wv(0), Wv(1)]
    tn = [0]
    for i in range(17):
        if i < 2:
            rows = [(8 * i + phi, phi) for phi in range(8)]
        elif i < 4:
            rows = [(16 + 4 * (i - 2) + f, 2 * f) for f in range(4)]
        elif i < 8:
            rows = [(24 + 2 * (i - 4) + f, 4 * f) for f in range(2)]
        else:
            rows = [(32 + (i - 8), 0)]
        if i == 2:
            for kp in range(8):
                a("ds_read_b128 %s, %s offset:%d" % (vr(FRA(kp), 4), vr(AR), KBUF + 64 * kp))
        if i == 8:
            for kp in range(8):
                a("ds_read_b128 %s, %s offset:%d" % (vr(FRA(kp), 4), vr(AR), 64 * kp))
        nxt = [G(0, i), G(1, i)]
        if i < 16:
            for m in range(2):
                cmul(nxt[m], cur[m], E128(m))
        for n, (row, phi) in enumerate(rows):
            if phi == 0:
                put(lrow_off(row), cur[0], cur[1], False)
            else:
                for m in range(2):
                    cmul(TA(m, tn[0]), cur[m], Ep(m, phi))
                put(lrow_off(row), TA(0, tn[0]), TA(1, tn[0]), False)
                tn[0] += 1
            if 22 <= row < 30:
                kp = row - 22
                if kp == 0:
                    a("s_waitcnt lgkmcnt(7)")
                a("v_mfma_f32_16x16x32_f16 %s, %s, %s, %s" % (vr(KACC, 4), vr(FRA(kp), 4), vr(FRB + 4 * kp, 4), "0" if kp == 0 else vr(KACC, 4)))
        cur = nxt
    for kp in range(8):
        a("ds_read_b128 %s, %s offset:%d" % (vr(FRC(kp), 4), vr(AR), KBUF + 64 * kp))
    j, g = V_TMP, V_TMP + 3
    A0, A1, A1b, A2 = 164, 165, 166, 167
    a("v_and_b32 %s, 15, %s" % (vr(j), vr(V_LANE)))
    a("s_mul_i32 %s, %s, %d" % (sr(S_T1), sr(S_WAVE), TSZ))
    a("v_lshrrev_b32 %s, 1, %s" % (vr(A0), vr(g)))
    a("v_lshlrev_b32 %s, 7, %s" % (vr(A0), vr(A0)))
    a("v_and_b32 %s, 1, %s" % (vr(A1), vr(g)))
    a("v_lshl_add_u32 %s, %s, 2, %s" % (vr(A0), vr(A1), vr(A0)))
    a("v_lshl_add_u32 %s, %s, 3, %s" % (vr(A0), vr(j), vr(A0)))
    a("v_lshl_add_u32 %s, %s, 1, %s" % (vr(A0), vr(A0), sr(S_T1)))
    a("v_lshlrev_b32 %s, 6, %s" % (vr(A2), vr(g)))
    a("v_cmp_gt_u32 vcc, 2, %s" % vr(g))
    a("v_lshlrev_b32 %s, 2, %s" % (vr(A1), vr(j)))
    a("v_lshlrev_b32 %s, 1, %s" % (vr(A1b), vr(j)))
    a("v_cndmask_b32 %s, %s, %s, vcc" % (vr(A1), vr(A1b), vr(A1)))
    a("s_waitcnt lgkmcnt(8)")
    for kp in range(8):
        a("v_mfma_f32_16x16x32_f16 %s, %s, %s, %s" % (vr(KACC + 4, 4), vr(FRA(kp), 4), vr(FRB + 4 * kp, 4), "0" if kp == 0 else vr(KACC + 4, 4)))
    a("s_waitcnt lgkmcnt(0)")
    for kp in range(8):
        a("v_mfma_f32_16x16x32_f16 %s, %s, %s, %s" % (vr(KACC + 8, 4), vr(FRC(kp), 4), vr(FRB + 4 * kp, 4), "0" if kp == 0 else vr(KACC + 8, 4)))
    a("v_add_u32 %s, %s, %s" % (vr(A1), vr(A1), vr(A2)))
    a("v_add_u32 %s, 256, %s" % (vr(A1), vr(A1)))
    a("v_mov_b32 %s, 32" % vr(A1b))
    a("v_cndmask_b32 %s, %s, 2, vcc" % (vr(A1b), vr(A1b)))
    a("v_add_u32 %s, %s, %s" % (vr(A1b), vr(A1b), vr(A1)))
    a("v_lshl_add_u32 %s, %s, 1, %s" % (vr(A1), vr(A1), sr(S_T1)))
    a("v_lshl_add_u32 %s, %s, 1, %s" % (vr(A1b), vr(A1b), sr(S_T1)))
    a("v_add3_u32 %s, %s, %s, %s" % (vr(A2), vr(A2), vr(j), "64"))
    a("v_add_u32 %s, 448, %s" % (vr(A2), vr(A2)))
    a("v_lshl_add_u32 %s, %s, 1, %s" % (vr(A2), vr(A2), sr(S_T1)))
    stamp_n(3)
    for k in range(12):
        a("v_mul_f32 %s, %s, %s" % (vr(KACC + k), sr(S_SC), vr(KACC + k)))
    pk = KACC + 12
    for k in range(6):
        a("v_cvt_pk_bf16_f32 %s, %s, %s" % (vr(pk + k), vr(KACC + 2 * k), vr(KACC + 2 * k + 1)))
    a("ds_write_b64 %s, %s offset:0" % (vr(A0), vr(pk, 2)))
    a("ds_write_b32 %s, %s offset:0" % (vr(A1), vr(pk + 2)))
    a("ds_write_b32 %s, %s offset:0" % (vr(A1b), vr(pk + 3)))
    a("ds_write_b16 %s, %s offset:0" % (vr(A2), vr(pk + 4)))
    a("ds_write_b16_d16_hi %s, %s offset:32" % (vr(A2), vr(pk + 4)))
    a("ds_write_b16 %s, %s offset:64" % (vr(A2), vr(pk + 5)))
    a("ds_write_b16_d16_hi %s, %s offset:96" % (vr(A2), vr(pk + 5)))
    a.c("---- expand the staircase into the four shifted copies ----")
    tbase_addr()
    D = V_TC
    H = V_TC + 32
    a("v_lshl_add_u32 %s, %s, 4, %s" % (vr(V_TMP), vr(V_LANE), sr(S_T1)))
    a("v_lshl_add_u32 %s, %s, 3, %s" % (vr(V_TMP + 1), vr(V_LANE), sr(S_T1)))
    a("v_lshl_add_u32 %s, %s, 2, %s" % (vr(V_TMP + 2), vr(V_LANE), sr(S_T1)))
    a("v_lshl_add_u32 %s, %s, 1, %s" % (vr(V_TMP + 3), vr(V_LANE), sr(S_T1)))
    a("s_mov_b32 %s, 0x01000100" % sr(S_K0))
    a("s_mov_b32 %s, 0x03020302" % sr(S_K1))
    a("ds_read_b128 %s, %s" % (vr(D, 4), vr(V_TMP)))
    a("ds_read_b64 %s, %s offset:16" % (vr(D + 4, 2), vr(V_TMP)))
    a("ds_read_b64 %s, %s offset:256" % (vr(H, 2), vr(V_TMP + 1)))
    a("ds_read_b32 %s, %s offset:264" % (vr(H + 2), vr(V_TMP + 1)))
    a("ds_read_b32 %s, %s offset:%d" % (vr(H + 4), vr(V_TMP + 2), 2 * 384))
    a("ds_read_b32 %s, %s offset:%d" % (vr(H + 5), vr(V_TMP + 2), 2 * 384 + 4))
    for n in (2, 3):
        o = 2 * (512 + 64 * (n - 2))
        a("ds_read_u16 %s, %s offset:%d" % (vr(H + 6 + 2 * (n - 2)), vr(V_TMP + 3), o))
        a("ds_read_u16 %s, %s offset:%d" % (vr(H + 7 + 2 * (n - 2)), vr(V_TMP + 3), o + 2))
    a("v_and_b32 %s, 1, %s" % (vr(V_TMP), vr(V_LANE)))
    a("v_cmp_eq_u32 vcc, 0, %s" % vr(V_TMP))
    a("s_waitcnt lgkmcnt(0)")
    a("s_mov_b32 exec_hi, 0")
    a("s_mov_b32 exec_lo, 0x80000000")
    a("v_lshrrev_b32 %s, 16, %s" % (vr(D + 5), vr(D + 4)))
    a("v_perm_b32 %s, %s, %s, %s" % (vr(D + 4), vr(D + 4), vr(D + 4), sr(S_K0)))
    a("s_mov_b32 exec_lo, 0")
    a("s_mov_b32 exec_hi, -1")
    a("v_perm_b32 %s, %s, %s, %s" % (vr(D), vr(H), vr(H), sr(S_K0)))
    a("v_alignbit_b32 %s, %s, %s, 16" % (vr(D + 1), vr(H + 1), vr(H)))
    a("v_perm_b32 %s, %s, %s, %s" % (vr(D + 2), vr(H + 1), vr(H + 1), sr(S_K0)))
    a("v_alignbit_b32 %s, %s, %s, 16" % (vr(D + 3), vr(H + 2), vr(H + 1)))
    a("v_perm_b32 %s, %s, %s, %s" % (vr(D + 4), vr(H + 2), vr(H + 2), sr(S_K0)))
    a("v_lshrrev_b32 %s, 16, %s" % (vr(D + 5), vr(H + 2)))
    a("s_mov_b32 exec_hi, 0x80000000")
    a("v_mov_b32 %s, %s" % (vr(D + 5), vr(D + 4)))
    a("s_mov_b64 exec, -1")
    write_head(D, D + 1, 84)
    write_copies(D, 92, 0)
    D2 = D + 8
    a("v_perm_b32 %s, %s, %s, %s" % (vr(D2), vr(H + 4), vr(H + 4), sr(S_K0)))
    a("v_mov_b32 %s, %s" % (vr(D2 + 1), vr(H + 4)))
    a("v_perm_b32 %s, %s, %s, %s" % (vr(D2 + 2), vr(H + 4), vr(H + 4), sr(S_K1)))
    for k in (3, 4, 5):
        a("v_perm_b32 %s, %s, %s, %s" % (vr(D2 + k), vr(H + 5), vr(H + 5), sr(S_K0)))
    write_copies(D2, 104, 1)
    for n in (2, 3):
        D3 = D + 8 * n
        ra, rb_ = H + 6 + 2 * (n - 2), H + 7 + 2 * (n - 2)
        a("v_lshl_or_b32 %s, %s, 16, %s" % (vr(D3), vr(ra), vr(ra)))
        a("v_lshl_or_b32 %s, %s, 16, %s" % (vr(D3 + 1), vr(ra), vr(ra)))
        for k in (3, 4, 5):
            a("v_lshl_or_b32 %s, %s, 16, %s" % (vr(D3 + k), vr(rb_), vr(rb_)))
        a("v_cndmask_b32 %s, %s, %s, vcc" % (vr(ra), vr(rb_), vr(ra)))
        a("v_lshl_or_b32 %s, %s, 16, %s" % (vr(D3 + 2), vr(rb_), vr(ra)))
        write_copies(D3, 92 + 12 * (n & 1), n)
    stamp_n(4)


DELAY = [int(x) for x in os.environ.get("DELAY", "12,0").split(",")]
MBAR_R = int(os.environ.get("MBAR_R", "1"))


def conv():
    a.lab("L_conv")
    a.c("================= convolution (both parts) =================")
    steps = [[0, 1], [2, 3], [4, 5], [6, 7]]

    def preg(r, d): return V_PF + 8 * (r & 1) + 4 * d

    def p_reads(si, r):
        return [("ds_read_b128 %s, %s offset:%d" % (vr(preg(r, d), 4), vr(V_P), 2560 - 512 * (w % 6) + 64 * r), ("P", si, r, d)) for d, w in enumerate(steps[si])]

    def treg(r, u):
        return V_TC + 8 * r + 4 * u if u < 2 else V_TF + 24 * (r & 1) + 4 * (u - 2)

    def t_reads(si, r):
        out = []
        for u in range(0 if si == 0 else 2, 8 - steps[si][0]):
            for hh in range(2):
                out.append(("ds_read_b64 %s, %s offset:%d" % (vr(treg(r, u) + 2 * hh, 2), vr(V_T), 512 * u + 64 * r + 8 * hh), ("T", si, r, u, hh)))
        return out

    lq = []
    state = {"done": -1}

    def need(*tags):
        idx = -1
        for tag in tags:
            idxs = [i for i, t in enumerate(lq) if t == tag]
            if idxs:
                idx = max(idx, idxs[-1])
        if idx <= state["done"]:
            return
        n = len(lq) - 1 - idx
        a("s_waitcnt lgkmcnt(%d)" % min(n, 15))
        state["done"] = len(lq) - 1 - min(n, 15)

    def emit(s_, tag=None):
        a(s_)
        lq.append(tag)

    def deposit(si):
        for c in steps[si]:
            acc = V_ACC + 4 * c
            a("v_cvt_pk_bf16_f32 %s, %s, %s" % (vr(acc), vr(acc), vr(acc + 1)))
            a("v_cvt_pk_bf16_f32 %s, %s, %s" % (vr(acc + 1), vr(acc + 2), vr(acc + 3)))
            emit("ds_write_b64 %s, %s offset:%d" % (vr(V_O2), vr(acc, 2), (c >> 1) * TCOPY + 512 * (c & 1)), "D")

    a("v_mov_b32 %s, 0" % vr(V_ACC))
    a("v_mov_b32 %s, 0" % vr(V_ACC + 1))
    emit("ds_write_b64 %s, %s offset:3072" % (vr(V_O), vr(V_ACC, 2)))
    for x in t_reads(0, 0):
        emit(*x)
    stamp_n(5)
    a("s_barrier")
    for x in p_reads(0, 0):
        emit(*x)
    touched = set()
    for si, st in enumerate(steps):
        a.c("---- step %d ----" % si)
        stamp_n(6 + 2 * si)
        ms = [(u + w, u, d) for u in range(8 - st[0]) for d, w in enumerate(st) if u + w <= 7]
        lastdep = max(i for i, m in enumerate(ms) if m[0] in st)
        early = lastdep + 5 < len(ms)
        last = si == len(steps) - 1
        vis = False
        for r in range(8):
            if r < 7:
                nxt = p_reads(si, r + 1) + t_reads(si, r + 1)
            elif last:
                nxt = []
            else:
                nxt = (p_reads(si + 1, 0) if vis else []) + t_reads(si + 1, 0)
            for i, (c, u, d) in enumerate(ms):
                acc = V_ACC + 4 * c
                src = vr(acc, 4) if c in touched else "0"
                touched.add(c)
                need(("P", si, r, d), ("T", si, r, u, 1))
                a("v_mfma_f32_16x16x32_bf16 %s, %s, %s, %s" % (vr(acc, 4), vr(treg(r, u), 4), vr(preg(r, d), 4), src))
                lo = (i * len(nxt) + len(ms) - 1) // len(ms) if len(nxt) > len(ms) else i
                hi = len(nxt) if i == len(ms) - 1 else (((i + 1) * len(nxt) + len(ms) - 1) // len(ms) if len(nxt) > len(ms) else i + 1)
                for k in range(lo, min(hi, len(nxt))):
                    emit(*nxt[k])
                if r == 7 and early and i == lastdep + 4:
                    a("s_nop 3")
                    deposit(si)
        if not early:
            a("s_nop 7")
            a("s_nop 1")
            deposit(si)
        need("D")
        a("s_barrier")
        if not vis and not last:
            for x in p_reads(si + 1, 0):
                emit(*x)
    stamp_dump()
    a("s_endpgm")


header()
prologue_common()
path_A()
path_B()
conv()
service(0)
helper()
footer()
out = sys.argv[1] if len(sys.argv) > 1 else "concat_heads__ssm_conv_h3__ssm_conv_s4__prompt.s"
open(out, "w").write(a.text())
print("wrote", out, len(a.l), "lines")
```

```python
import os
import sys

NAME = "concat_heads__ssm_conv_h3__ssm_conv_s4__prompt_kernel"
MODE = sys.argv[2] if len(sys.argv) > 2 else ""
STAMPS = MODE in ("stamps", "dbgt")
EXACT = int(os.environ.get("EXACT", "0"))
A242 = int(os.environ.get("A242", "0"))
P2EARLY = int(os.environ.get("P2EARLY", "1"))
WBL2 = int(os.environ.get("WBL2", "0"))
SCHED = int(os.environ.get("SCHED", "0"))
MIX0 = int(os.environ.get("MIX0", "2"))
SPRIO = int(os.environ.get("SPRIO", "3"))
START = int(os.environ.get("START", "1"))
A3 = int(os.environ.get("A3", "0"))
UAT = [int(x) for x in os.environ.get("UAT", "8,11,14,16").split(",")]
TORDER = int(os.environ.get("TORDER", "0"))
CODEPF = int(os.environ.get("CODEPF", "1"))
SPREAD = int(os.environ.get("SPREAD", "1"))
RPM = int(os.environ.get("RPM", "2"))
FILL = int(os.environ.get("FILL", "2"))

TCOPY = 4160
TSZ = 16896
P0 = 8 * TSZ
PCH = 3584
LDS_TOTAL = P0 + 8 * PCH
OUTOFF = 3136
LROW = 528
KBUF = 16 * LROW


class A:
    def __init__(self):
        self.l = []

    def __call__(self, s):
        self.l.append("    " + s)

    def lab(self, s):
        self.l.append(s + ":")

    def c(self, s):
        self.l.append("    ; " + s)

    def text(self):
        return "\n".join(self.l) + "\n"


def vr(b, n=1):
    return "v%d" % b if n == 1 else "v[%d:%d]" % (b, b + n - 1)


def sr(b, n=1):
    return "s%d" % b if n == 1 else "s[%d:%d]" % (b, b + n - 1)


a = A()

S_TYPE = 3
S_PTR = 4
def PTR(i): return S_PTR + 2 * i
S_WAVE = 40
S_COL = 41
S_I = 42
S_CH0 = 43
SRD_X = 44
SRD_V = 48
SRD_Q = 52
SRD_T = 56
SRD_O = 60
S_W = 64
S_D = 4
S_ONES = 96
S_HJ = 97
S_T0 = 99
S_T1 = 100
S_T2 = 101
S_EX = 20
S_SC = 22
S_IN1 = 23
S_OUT1 = 32
S_K0 = 26
S_K1 = 27

V_LANE = 1
V_T = 2
V_P = 3
V_O = 4
V_O2 = 5
V_ST = 6
V_ACC = 8
V_TMP = 32
V_TC = 40
V_TF = 104
V_PF = 152
NVGPR = 168


def stamp_n(n):
    if not STAMPS:
        return
    a("s_memrealtime s[36:37]")
    a("s_waitcnt lgkmcnt(0)")
    a("v_writelane_b32 %s, s36, %d" % (vr(V_ST), n))
    a("s_memtime s[36:37]")
    a("s_waitcnt lgkmcnt(0)")
    a("v_writelane_b32 %s, s36, %d" % (vr(V_ST), n + 16))


_dd = [0]
def stamp_dump():
    if not STAMPS:
        return
    a("s_waitcnt vmcnt(0)")
    stamp_n(15)
    if MODE == "dbgt":
        a("s_load_dwordx2 s[36:37], s[0:1], 128")
        a("s_cmp_lg_u32 %s, 0" % sr(S_WAVE))
        a("s_cbranch_scc1 L_end")
        a("s_cmp_lg_u32 s2, %d" % (0 if _dd[0] == 0 else 130))
        a("s_cbranch_scc1 L_end")
        for k, ln in enumerate((0, 1, 6, 15, 16, 17, 22, 31)):
            a("v_readlane_b32 s38, %s, %d" % (vr(V_ST), ln))
            a("s_nop 3")
            a("v_mov_b32 %s, s38" % vr(V_S + k))
        a("v_mov_b32 %s, %d" % (vr(V_ST + 1), 32 * _dd[0]))
        a("s_waitcnt lgkmcnt(0)")
        a("s_mov_b64 exec, 1")
        a("global_store_dwordx4 %s, %s, s[36:37]" % (vr(V_ST + 1), vr(V_S, 4)))
        a("global_store_dwordx4 %s, %s, s[36:37] offset:16" % (vr(V_ST + 1), vr(V_S + 4, 4)))
        _dd[0] += 1
        return
    a("s_load_dwordx2 s[36:37], s[0:1], 136")
    a("s_lshl_b32 s38, s2, 4")
    a("s_add_u32 s38, s38, %s" % sr(S_WAVE))
    a("s_lshl_b32 s38, s38, 8")
    a("v_lshl_add_u32 %s, %s, 2, s38" % (vr(V_ST + 1), vr(V_LANE)))
    a("s_waitcnt lgkmcnt(0)")
    a("global_store_dword %s, %s, s[36:37]" % (vr(V_ST + 1), vr(V_ST)))


def header():
    for line in (
        "; Fused H3 (shift-SSM * v -> long causal conv -> gate) and S4D (kernel generation + long causal conv), one launch.",
        "; Each long convolution is a block-Toeplitz product on v_mfma_f32_16x16x32_bf16: a wave owns one channel, the",
        "; kernel sits in LDS as four element-shifted copies (A operand), the reversed input as the B operand.",
        "; Workgroup roles (decoded from the id): 8 H3 channels (8 conv waves + 4 service waves), 4 S4D channels",
        "; (4 kernel-generation/conv waves + 4 service waves), or L2 warm-up of rows a neighbouring H3 column needs.",
        "; Generated by a script (work/gen7.py)."):
        a.l.append(line)
    a.l.append("; @launch grid=(256,1,1) block=(768,1,1) lds=%d" % LDS_TOTAL)
    a.l.append('.amdgcn_target "amdgcn-amd-amdhsa--gfx950"')
    a.l.append(".text")
    a.l.append(".globl " + NAME)
    a.l.append(".p2align 8")
    a.l.append(".type %s,@function" % NAME)
    a.lab(NAME)


def footer():
    a.lab("L_end")
    a("s_endpgm")
    a.l.append('.section .rodata,"a"')
    a.l.append(".p2align 6")
    a.l.append(".amdhsa_kernel " + NAME)
    a.l.append("  .amdhsa_next_free_vgpr %d" % NVGPR)
    a.l.append("  .amdhsa_next_free_sgpr 102")
    a.l.append("  .amdhsa_accum_offset %d" % NVGPR)
    a.l.append("  .amdhsa_group_segment_fixed_size 0")
    a.l.append("  .amdhsa_kernarg_size 144")
    a.l.append("  .amdhsa_user_sgpr_count 2")
    a.l.append("  .amdhsa_user_sgpr_kernarg_segment_ptr 1")
    a.l.append("  .amdhsa_system_sgpr_workgroup_id_x 1")
    a.l.append(".end_amdhsa_kernel")


def srd(d, plo, nbytes):
    a("s_mov_b32 %s, %s" % (sr(d), sr(plo)))
    a("s_and_b32 %s, %s, 0xffff" % (sr(d + 1), sr(plo + 1)))
    a("s_mov_b32 %s, 0x%x" % (sr(d + 2), nbytes))
    a("s_mov_b32 %s, 0x00020000" % sr(d + 3))


SLOTS = [
    [0x00, 0x02, 0x04, 0x05, 0x06, 0x07, 0x08, 0x09],
    [0x01, 0x03, 0x22, 0x24, 0x26, 0x28, 0x2a, 0x2c],
    [0x20, 0x21, 0x23, 0x25, 0x27, 0x29, 0x2b, 0x2d],
    [0x40, 0x40, 0x30, 0x31, 0x32, 0x33, 0x2e, 0x2f],
]
HJOB = [
    [0, 0, 0, 0, 0, 0, 0, 0],
    [0, 0, 4 * 8 + 1, 5 * 8 + 1, 6 * 8 + 1, 7 * 8 + 1, 8 * 8 + 1, 9 * 8 + 1],
    [0 * 8 + 1, 2 * 8 + 1, 4 * 8 + 2, 5 * 8 + 2, 6 * 8 + 2, 7 * 8 + 2, 8 * 8 + 2, 9 * 8 + 2],
    [1 * 8 + 7, 3 * 8 + 7, 4 * 8 + 4, 5 * 8 + 4, 6 * 8 + 4, 7 * 8 + 4, 8 * 8 + 4, 9 * 8 + 4],
]


def prologue_common():
    a.c("---- decode workgroup -> (type, column, index) ----")
    if STAMPS:
        a("s_memrealtime s[94:95]")
    a("s_cmp_ge_u32 s2, 256")
    a("s_cbranch_scc1 L_end")
    a("s_load_dwordx16 %s, s[0:1], 0" % sr(S_PTR, 16))
    a("s_load_dwordx16 %s, s[0:1], 64" % sr(S_PTR + 16, 16))
    if os.environ.get("BADMAP"):
        a("s_lshr_b32 %s, s2, 5" % sr(S_T0))
        a("s_and_b32 %s, s2, 31" % sr(S_T1))
    else:
        a("s_and_b32 %s, s2, 7" % sr(S_T0))
        a("s_lshr_b32 %s, s2, 3" % sr(S_T1))
    a("s_and_b32 %s, %s, 7" % (sr(S_I), sr(S_T1)))
    a("s_lshr_b32 %s, %s, 3" % (sr(S_T1), sr(S_T1)))
    def pk(t, lo): return sum(t[lo + i] << (8 * i) for i in range(4))
    a("s_and_b32 %s, %s, 3" % (sr(S_TYPE), sr(S_T0)))
    a("s_lshl_b32 %s, %s, 3" % (sr(S_TYPE), sr(S_TYPE)))
    for dst, tab in ((S_COL, SLOTS), (S_HJ, HJOB)):
        a("s_mov_b32 %s, 0x%x" % (sr(dst), pk(tab[0], 0)))
        a("s_mov_b32 %s, 0x%x" % (sr(S_T2), pk(tab[0], 4)))
        for k in (1, 2, 3):
            a("s_cmp_eq_u32 %s, %d" % (sr(S_T1), k))
            a("s_cselect_b32 %s, 0x%x, %s" % (sr(dst), pk(tab[k], 0), sr(dst)))
            a("s_cselect_b32 %s, 0x%x, %s" % (sr(S_T2), pk(tab[k], 4), sr(S_T2)))
        a("s_cmp_ge_u32 %s, 4" % sr(S_T0))
        a("s_cselect_b32 %s, %s, %s" % (sr(dst), sr(S_T2), sr(dst)))
        a("s_lshr_b32 %s, %s, %s" % (sr(dst), sr(dst), sr(S_TYPE)))
        a("s_and_b32 %s, %s, 0xff" % (sr(dst), sr(dst)))
    a("s_lshr_b32 %s, %s, 5" % (sr(S_TYPE), sr(S_COL)))
    a("s_and_b32 %s, %s, 31" % (sr(S_COL), sr(S_COL)))
    a("s_lshl_b32 %s, %s, 3" % (sr(S_CH0), sr(S_COL)))
    a("s_add_u32 %s, %s, %s" % (sr(S_CH0), sr(S_CH0), sr(S_I)))
    a("s_cmp_eq_u32 %s, 1" % sr(S_TYPE))
    a("s_cselect_b32 %s, 2, 3" % sr(S_T0))
    a("s_lshl_b32 %s, %s, %s" % (sr(S_CH0), sr(S_CH0), sr(S_T0)))
    if CODEPF:
        a("s_cmp_lg_u32 %s, 0" % sr(S_I))
        a("s_cbranch_scc1 L_pcs")
        a("s_getpc_b64 s[36:37]")
        a.lab("L_pc")
        a("v_lshlrev_b32 %s, 7, v0" % vr(V_TMP + 1))
        a("v_mov_b32 %s, s37" % vr(V_TMP + 5))
        a("v_min_u32 %s, L_end-L_pc, %s" % (vr(V_TMP + 1), vr(V_TMP + 1)))
        a("v_add_co_u32 %s, vcc, s36, %s" % (vr(V_TMP + 4), vr(V_TMP + 1)))
        a("s_nop 1")
        a("v_addc_co_u32 %s, vcc, 0, %s, vcc" % (vr(V_TMP + 5), vr(V_TMP + 5)))
        a("v_cmp_gt_u32 vcc, 256, v0")
        a("s_and_saveexec_b64 s[38:39], vcc")
        a("s_cbranch_execz L_pcd")
        a("global_load_dword %s, %s, off" % (vr(V_TMP + 6), vr(V_TMP + 4, 2)))
        a.lab("L_pcd")
        a("s_mov_b64 exec, s[38:39]")
        a.lab("L_pcs")
    a("v_lshrrev_b32 %s, 6, v0" % vr(V_TMP))
    a("v_and_b32 %s, 63, v0" % vr(V_LANE))
    a("s_mov_b32 %s, 0x3f803f80" % sr(S_ONES))
    a("v_readfirstlane_b32 %s, %s" % (sr(S_WAVE), vr(V_TMP)))
    a("s_nop 3")
    a("s_cmp_eq_u32 %s, 0" % sr(S_TYPE))
    a("s_cbranch_scc0 L_nA")
    a("s_cmp_ge_u32 %s, 8" % sr(S_WAVE))
    a("s_cbranch_scc1 L_servA")
    a("s_branch L_addr")
    a.lab("L_nA")
    a("s_cmp_ge_u32 %s, 8" % sr(S_WAVE))
    a("s_cbranch_scc1 L_end")
    a("s_cmp_ge_u32 %s, 4" % sr(S_WAVE))
    a("s_cbranch_scc1 L_helper")
    a("s_cmp_lg_u32 %s, 2" % sr(S_TYPE))
    a("s_cbranch_scc1 L_addr")
    a("s_sub_u32 %s, %s, 9" % (sr(S_HJ), sr(S_HJ)))
    a("s_add_u32 %s, %s, 4" % (sr(S_WAVE), sr(S_WAVE)))
    a("v_add_u32 v0, 256, v0")
    a("s_branch L_helper")
    a.lab("L_addr")
    a.c("---- per-lane LDS addresses of a convolution wave ----")
    t0, t1, t2, t3 = V_TMP, V_TMP + 1, V_TMP + 2, V_TMP + 3
    a("v_and_b32 %s, 15, %s" % (vr(t0), vr(V_LANE)))
    a("v_lshrrev_b32 %s, 4, %s" % (vr(t1), vr(V_LANE)))
    a("v_add_u32 %s, 1, %s" % (vr(t2), vr(t0)))
    a("v_and_b32 %s, 3, %s" % (vr(t3), vr(t2)))
    a("v_sub_u32 %s, %s, %s" % (vr(t2), vr(t2), vr(t3)))
    a("v_lshlrev_b32 %s, 1, %s" % (vr(t2), vr(t2)))
    a("v_mul_u32_u24 %s, %d, %s" % (vr(t3), TCOPY, vr(t3)))
    a("v_add_u32 %s, %s, %s" % (vr(t2), vr(t2), vr(t3)))
    a("v_lshl_add_u32 %s, %s, 4, %s" % (vr(t2), vr(t1), vr(t2)))
    a("s_mul_i32 %s, %s, %d" % (sr(S_T1), sr(S_WAVE), TSZ))
    a("v_add_u32 %s, %s, %s" % (vr(V_T), sr(S_T1), vr(t2)))
    a("s_mul_i32 %s, %s, %d" % (sr(S_T0), sr(S_WAVE), PCH))
    a("s_add_u32 %s, %s, %d" % (sr(S_T0), sr(S_T0), P0))
    a("v_lshlrev_b32 %s, 5, %s" % (vr(t2), vr(t0)))
    a("v_lshl_add_u32 %s, %s, 3, %s" % (vr(t3), vr(t1), vr(t2)))
    a("v_add_u32 %s, %s, %s" % (vr(V_O), sr(S_T0), vr(t3)))
    a("s_add_u32 %s, %s, %d" % (sr(S_T1), sr(S_T1), OUTOFF))
    a("v_add_u32 %s, %s, %s" % (vr(V_O2), sr(S_T1), vr(t3)))
    a("v_lshlrev_b32 %s, 4, %s" % (vr(t3), vr(t1)))
    a("v_sub_u32 %s, %s, %s" % (vr(t3), vr(t3), vr(t2)))
    a("s_add_u32 %s, %s, 480" % (sr(S_T0), sr(S_T0)))
    a("v_add_u32 %s, %s, %s" % (vr(V_P), sr(S_T0), vr(t3)))
    a("s_waitcnt lgkmcnt(0)")
    stamp_n(0)
    a("s_cmp_eq_u32 %s, 1" % sr(S_TYPE))
    a("s_cbranch_scc1 L_pathB")


def step_offsets():
    for p in (1, 2, 3):
        a("s_mov_b32 %s, %d" % (sr(S_IN1 + p - 1), p * 512 * 1280))
        a("s_mov_b32 %s, %d" % (sr(S_OUT1 + p - 1), p * 512 * 2560))


def sin(p): return "0" if p == 0 else sr(S_IN1 + p - 1)
def sout(p): return "0" if p == 0 else sr(S_OUT1 + p - 1)


PFULL = 4576
PB0 = 4 * TSZ
OB0 = PB0 + 4 * PFULL


def helper():
    a.lab("L_helper")
    a.c("================= waves 4..7 of B / helper workgroups: warm the L2 for an A column =================")
    W4 = S_WAVE
    a("s_sub_u32 %s, %s, 4" % (sr(W4), sr(S_WAVE)))
    a("v_subrev_u32 v0, 256, v0")
    a("s_waitcnt lgkmcnt(0)")
    srd(SRD_X, PTR(1), 2048 * 1280)
    srd(SRD_V, PTR(2), 2048 * 1280)
    srd(SRD_Q, PTR(0), 2048 * 1280)
    srd(SRD_T, PTR(4), 640 * 4096)
    a("s_lshr_b32 %s, %s, 3" % (sr(S_W), sr(S_HJ)))
    a("s_lshl_b32 %s, %s, 7" % (sr(S_T1), sr(S_W)))
    a("v_mul_u32_u24 %s, 1280, v0" % vr(V_TMP))
    a("v_add_u32 %s, %s, %s" % (vr(V_TMP), sr(S_T1), vr(V_TMP)))
    a("s_cmp_eq_u32 %s, 2" % sr(S_TYPE))
    a("s_cbranch_scc1 L_h0")
    a("s_barrier")
    a.lab("L_h0")
    a("s_bitcmp1_b32 %s, 0" % sr(S_HJ))
    a("s_cbranch_scc0 L_h2")
    a("s_cmp_ge_u32 %s, 2" % sr(W4))
    a("s_cbranch_scc1 L_h1t")
    if START == 0:
        a("s_mul_i32 %s, %s, %d" % (sr(S_T0), sr(S_I), 128 * 1280))
    else:
        a("s_mul_i32 %s, %s, %d" % (sr(S_T0), sr(S_I), 64 * 1280))
        a("s_mul_i32 %s, %s, %d" % (sr(S_T2), sr(W4), 448 * 1280))
        a("s_add_u32 %s, %s, %s" % (sr(S_T0), sr(S_T0), sr(S_T2)))
    a("buffer_load_dword %s, %s, %s, %s offen" % (vr(V_TMP + 1), vr(V_TMP), sr(SRD_V, 4), sr(S_T0)))
    a("s_branch L_h1e")
    a.lab("L_h1t")
    a("v_and_b32 %s, 15, v0" % vr(V_TMP + 2))
    a("v_bfe_u32 %s, v0, 4, 3" % vr(V_TMP + 3))
    a("v_lshlrev_b32 %s, 7, %s" % (vr(V_TMP + 2), vr(V_TMP + 2)))
    a("v_lshl_add_u32 %s, %s, 12, %s" % (vr(V_TMP + 2), vr(V_TMP + 3), vr(V_TMP + 2)))
    a("s_lshl_b32 %s, %s, 3" % (sr(S_T0), sr(S_W)))
    a("s_add_u32 %s, %s, %s" % (sr(S_T0), sr(S_T0), sr(S_I)))
    a("s_lshl_b32 %s, %s, 15" % (sr(S_T0), sr(S_T0)))
    a("buffer_load_dword %s, %s, %s, %s offen offset:2048" % (vr(V_TMP + 1), vr(V_TMP + 2), sr(SRD_T, 4), sr(S_T0)))
    a.lab("L_h1e")
    a("s_waitcnt vmcnt(0)")
    a.lab("L_h2")
    a("s_cmp_lg_u32 %s, 2" % sr(S_TYPE))
    a("s_cbranch_scc1 L_h2a")
    a("s_barrier")
    a("s_branch L_h2b")
    a.lab("L_h2a")
    srd(SRD_O, PTR(6), 2048 * 1280)
    a("s_lshl_b32 %s, %s, 1" % (sr(S_T0), sr(S_CH0)))
    a("v_mul_u32_u24 %s, 1280, v0" % vr(V_TMP + 2))
    a("v_add_u32 %s, %s, %s" % (vr(V_TMP + 2), sr(S_T0), vr(V_TMP + 2)))
    a("s_mul_i32 %s, %s, %d" % (sr(S_T0), sr(S_I), 256 * 1280))
    a("buffer_load_dword %s, %s, %s, %s offen" % (vr(V_TMP + 1), vr(V_TMP + 2), sr(SRD_O, 4), sr(S_T0)))
    a("s_waitcnt vmcnt(0)")
    a.lab("L_h2b")
    a("s_bitcmp1_b32 %s, 1" % sr(S_HJ))
    a("s_cbranch_scc0 L_h3")
    a("s_lshr_b32 %s, %s, 1" % (sr(S_T0), sr(S_I)))
    a("s_add_u32 %s, %s, 4" % (sr(S_T0), sr(S_T0)))
    a("s_mul_i32 %s, %s, %d" % (sr(S_T0), sr(S_T0), 256 * 1280))
    a("s_bitcmp1_b32 %s, 0" % sr(S_I))
    a("s_cbranch_scc1 L_h2v")
    a("buffer_load_dword %s, %s, %s, %s offen" % (vr(V_TMP + 1), vr(V_TMP), sr(SRD_X, 4), sr(S_T0)))
    a("s_branch L_h2e")
    a.lab("L_h2v")
    a("buffer_load_dword %s, %s, %s, %s offen" % (vr(V_TMP + 1), vr(V_TMP), sr(SRD_V, 4), sr(S_T0)))
    a.lab("L_h2e")
    a("s_bitcmp1_b32 %s, 2" % sr(S_HJ))
    a("s_cbranch_scc0 L_h4")
    a("s_waitcnt vmcnt(0)")
    a.lab("L_h3")
    a("s_bitcmp1_b32 %s, 2" % sr(S_HJ))
    a("s_cbranch_scc0 L_h4")
    a("s_mul_i32 %s, %s, %d" % (sr(S_T0), sr(S_I), 256 * 1280))
    a("buffer_load_dword %s, %s, %s, %s offen" % (vr(V_TMP + 1), vr(V_TMP), sr(SRD_Q, 4), sr(S_T0)))
    a.lab("L_h4")
    a("s_cmp_eq_u32 %s, 2" % sr(S_TYPE))
    a("s_cbranch_scc1 L_end")
    service(1)


B_STEPS = eval(os.environ.get("BSTEPS", "[[0, 1, 2, 3], [4, 5], [6, 7]]"))


V_TA = V_TMP + 5
V_TA2 = V_TMP + 6


def write_copies(d, tmp, n):
    imm = 32 + 1024 * n
    a("ds_write_b128 %s, %s offset:%d" % (vr(V_TA), vr(d, 4), imm))
    for k in range(4):
        a("v_alignbit_b32 %s, %s, %s, 16" % (vr(tmp + k), vr(d + k + 1), vr(d + k)))
    a("ds_write_b128 %s, %s offset:%d" % (vr(V_TA), vr(tmp, 4), imm + TCOPY))
    for k in range(4):
        a("v_mov_b32 %s, %s" % (vr(tmp + 8 + k), vr(d + k + 1)))
    a("ds_write_b128 %s, %s offset:%d" % (vr(V_TA), vr(tmp + 8, 4), imm + 2 * TCOPY))
    for k in range(4):
        a("v_alignbit_b32 %s, %s, %s, 16" % (vr(tmp + 4 + k), vr(d + k + 2), vr(d + k + 1)))
    a("ds_write_b128 %s, %s offset:%d" % (vr(V_TA), vr(tmp + 4, 4), imm + 3 * TCOPY))


def write_head(d0, d1, tmp):
    for k in range(4):
        a("v_mov_b32 %s, 0" % vr(tmp + k))
    a("v_lshlrev_b32 %s, 16, %s" % (vr(tmp + 4), vr(d0)))
    a("v_alignbit_b32 %s, %s, %s, 16" % (vr(tmp + 5), vr(d1), vr(d0)))
    a("s_mov_b64 %s, exec" % sr(S_EX, 2))
    a("s_mov_b64 exec, 3")
    for s in range(4):
        a("ds_write_b128 %s, %s offset:%d" % (vr(V_TA), vr(tmp, 4), s * TCOPY))
    a("s_mov_b64 exec, 1")
    a("ds_write_b32 %s, %s offset:%d" % (vr(V_TA), vr(tmp + 4), TCOPY + 28))
    a("ds_write_b32 %s, %s offset:%d" % (vr(V_TA), vr(d0), 2 * TCOPY + 28))
    a("ds_write_b64 %s, %s offset:%d" % (vr(V_TA), vr(tmp + 4, 2), 3 * TCOPY + 24))
    a("s_mov_b64 exec, %s" % sr(S_EX, 2))


def tbase_addr():
    a("s_mul_i32 %s, %s, %d" % (sr(S_T0), sr(S_WAVE), TSZ))
    a("v_lshl_add_u32 %s, %s, 4, %s" % (vr(V_TA), vr(V_LANE), sr(S_T0)))


def d_load(ptr_idx, n):
    a("s_lshl_b32 %s, %s, 1" % (sr(S_T0), sr(S_CH0)))
    a("s_add_u32 %s, %s, %s" % (sr(S_T0 + 1), sr(PTR(ptr_idx)), sr(S_T0)))
    a("s_addc_u32 %s, %s, 0" % (sr(S_T0 + 2), sr(PTR(ptr_idx) + 1)))
    a("s_load_dwordx%d %s, %s, 0" % (n, sr(92, n), sr(S_T0 + 1, 2)))


def d_selectors():
    for c in range(8):
        src = 92 + (c >> 1)
        if c & 1:
            a("s_and_b32 %s, %s, 0xffff0000" % (sr(S_D + c), sr(src)))
        else:
            a("s_lshl_b32 %s, %s, 16" % (sr(S_D + c), sr(src)))


class VM:
    def __init__(self):
        self.q = []

    def issue(self, tag):
        self.q.append(tag)

    def wait(self, tag):
        idx = max(i for i, t in enumerate(self.q) if t == tag)
        return "s_waitcnt vmcnt(%d)" % (len(self.q) - 1 - idx)


def unpack(dst, src, c):
    if c & 1:
        return "v_and_b32 %s, 0xffff0000, %s" % (vr(dst), vr(src))
    return "v_lshlrev_b32 %s, 16, %s" % (vr(dst), vr(src))


def service(typ):
    T = "AB"[typ]
    NC = 8 if typ == 0 else 4
    ND = NC // 2
    vm = VM()
    V_IN, V_GO, V_WM, V_WP, V_OR, V_OR2, V_HA = 8, 9, 10, 11, 12, 13, 14
    X = 16
    Q = 48
    RAWB = [64, 92]
    U = 120
    PA = 128
    Y = 144
    O = 152
    a.c("================= service waves (%s): x in, y out =================" % T)
    if typ == 0:
        a.lab("L_servA")
        a("v_subrev_u32 v0, 512, v0")
        a("s_waitcnt lgkmcnt(0)")
        srd(SRD_X, PTR(1), 2048 * 1280)
        a("v_and_b32 %s, 15, v0" % vr(V_TMP))
        a("v_bfe_u32 %s, v0, 4, 1" % vr(V_TMP + 1))
        a("v_lshrrev_b32 %s, 6, v0" % vr(V_TMP + 2))
        a("v_lshl_add_u32 %s, %s, 4, %s" % (vr(V_TMP), vr(V_TMP + 2), vr(V_TMP)))
        a("v_lshl_add_u32 %s, %s, 9, %s" % (vr(V_TMP), vr(V_TMP + 1), vr(V_TMP)))
        a("s_lshl_b32 %s, %s, 6" % (sr(S_T0), sr(S_I)))
        a("v_add_u32 %s, %s, %s" % (vr(V_TMP), sr(S_T0), vr(V_TMP)))
        a("v_mul_u32_u24 %s, 1280, %s" % (vr(V_TMP), vr(V_TMP)))
        a("s_lshl_b32 %s, %s, 7" % (sr(S_T1), sr(S_COL)))
        a("buffer_load_dword %s, %s, %s, %s offen" % (vr(V_TMP + 1), vr(V_TMP), sr(SRD_X, 4), sr(S_T1)))
        srd(SRD_V, PTR(2), 2048 * 1280)
        srd(SRD_Q, PTR(0), 2048 * 1280)
        srd(SRD_O, PTR(15), 2048 * 2560)
        a("s_lshl_b32 %s, %s, 3" % (sr(S_T0), sr(S_CH0)))
        a("s_add_u32 %s, %s, %s" % (sr(S_T0 + 1), sr(PTR(3)), sr(S_T0)))
        a("s_addc_u32 %s, %s, 0" % (sr(S_T0 + 2), sr(PTR(3) + 1)))
        a("s_load_dwordx16 s[20:35], %s, 0" % sr(S_T0 + 1, 2))
        d_load(5, 4)
    else:
        srd(SRD_X, PTR(6), 2048 * 1280)
        srd(SRD_O, PTR(15), 2048 * 2560)
        d_load(14, 2)
    a("s_lshl_b32 %s, %s, 1" % (sr(S_T0), sr(S_CH0)))
    a("v_mul_u32_u24 %s, 2560, v0" % vr(V_TMP + 2))
    a("v_add_u32 %s, %s, %s" % (vr(V_IN), sr(S_T0), vr(V_TMP + 2)))
    a("s_add_u32 %s, %s, %d" % (sr(S_T0), sr(S_T0), 1280 * typ))
    a("v_lshl_add_u32 %s, %s, 1, %s" % (vr(V_GO), vr(V_TMP + 2), sr(S_T0)))
    a("v_lshlrev_b32 %s, 2, v0" % vr(V_TMP + 2))
    a("v_sub_u32 %s, %d, %s" % (vr(V_WM), P0 + 1020, vr(V_TMP + 2)))
    a("v_add_u32 %s, %d, %s" % (vr(V_OR), OUTOFF, vr(V_TMP + 2)))
    a("v_add_u32 %s, %d, %s" % (vr(V_OR2), OUTOFF + 4 * TSZ, vr(V_TMP + 2)))
    a("v_and_b32 %s, 28, %s" % (vr(V_TMP + 2), vr(V_TMP + 2)))
    a("v_add_u32 %s, %d, %s" % (vr(V_TMP + 2), P0 + 3552, vr(V_TMP + 2)))
    a("v_add_u32 %s, 3072, %s" % (vr(V_WP), vr(V_WM)))
    a("v_cmp_gt_u32 vcc, 128, v0")
    a("s_waitcnt lgkmcnt(0)")
    for c in range(NC):
        if c & 1:
            a("s_and_b32 %s, %s, 0xffff0000" % (sr(S_D + c), sr(92 + (c >> 1))))
        else:
            a("s_lshl_b32 %s, %s, 16" % (sr(S_D + c), sr(92 + (c >> 1))))
    a("v_cndmask_b32 %s, %s, %s, vcc" % (vr(V_WP), vr(V_WP), vr(V_TMP + 2)))
    if typ == 0:
        for c in range(8):
            for j in range(4):
                src = 20 + 2 * c + (j >> 1)
                dst = S_W + 4 * c + j
                if j & 1:
                    a("s_and_b32 %s, %s, 0xffff0000" % (sr(dst), sr(src)))
                else:
                    a("s_lshl_b32 %s, %s, 16" % (sr(dst), sr(src)))
    else:
        a("s_mov_b32 %s, 0x05040100" % sr(S_K0))
        a("s_mov_b32 %s, 0x07060302" % sr(S_K1))
    step_offsets()
    cur = []
    def e(t): cur.append(t)
    def grab(f, *args):
        del cur[:]
        f(*args)
        return list(cur)
    def run(lst):
        for t in lst:
            if isinstance(t, tuple):
                if t[0] == "w":
                    a(vm.wait(t[1]))
                else:
                    for x in t[1]:
                        a(x)
                    for tg in t[2]:
                        vm.issue(tg)
            else:
                a(t)
    def mix(math, mem, gap=None):
        if not mem:
            return math
        gap = gap or max(1, len(math) // (len(mem) + 1))
        out = []
        k = 0
        for n, t in enumerate(math):
            if n % gap == 0 and k < len(mem):
                out.append(mem[k]); k += 1
            out.append(t)
        return out + mem[k:]
    rnd = lambda x: e("v_cvt_pk_bf16_f32 %s, 0, %s" % (vr(x), vr(x)))

    def raw(p):
        R = RAWB[p & 1]
        h = ["v_add_u32 %s, %d, %s" % (vr(V_HA), p * 512 * 1280 - 3 * 1280, vr(V_IN)), "s_mov_b64 exec, 1"]
        for j in range(3):
            h.append("buffer_load_dwordx4 %s, %s, %s, 0 offen offset:%d" % (vr(R + 4 * j, 4), vr(V_HA), sr(SRD_X, 4), 1280 * j))
        h.append("s_mov_b64 exec, -1")
        e(("m", h, ["raw%d" % p] * 3))
        for rr in range(2):
            e(("m", ["buffer_load_dwordx4 %s, %s, %s, %s offen offset:%d" % (vr(R + 12 + 4 * rr, 4), vr(V_IN), sr(SRD_X, 4), sin(p), 1280 * rr)], ["raw%d" % p]))
        for rr in range(2):
            e(("m", ["buffer_load_dwordx4 %s, %s, %s, %s offen offset:%d" % (vr(R + 20 + 4 * rr, 4), vr(V_IN), sr(SRD_V, 4), sin(p), 1280 * rr)], ["raw%d" % p]))

    def qload(p):
        for rr in range(2):
            e(("m", ["buffer_load_dwordx4 %s, %s, %s, %s offen offset:%d" % (vr(Q + 8 * (p & 1) + 4 * rr, 4), vr(V_IN), sr(SRD_Q, 4), sin(p), 1280 * rr)], ["q%d" % p]))

    def pro(p):
        if typ == 1:
            e(("w", "u%d" % p))
            for c in range(4):
                e("v_perm_b32 %s, %s, %s, %s" % (vr(X + 4 * p + c), vr(Q + 4 * p + (c >> 1)), vr(Q + 4 * p + 2 + (c >> 1)), sr(S_K1 if c & 1 else S_K0)))
            return
        R = RAWB[p & 1]
        e(("w", "raw%d" % p))
        for dst, src in ((8, 16), (4, 12), (0, 8)):
            for d in range(4):
                e("v_mov_b32_dpp %s, %s wave_shr:1 row_mask:0xf bank_mask:0xf" % (vr(R + dst + d), vr(R + src + d)))
        for j in range(5):
            for c in range(8):
                e(unpack(U + c, R + 4 * j + (c >> 1), c))
            for rr in range(2):
                t = j - rr
                if t < 0 or t > 3:
                    continue
                w = lambda c: sr(S_W + 4 * c + 3 - t)
                acc = PA + 8 * rr
                if not EXACT:
                    for c in range(8):
                        e("%s %s, %s, %s" % ("v_mul_f32" if t == 0 else "v_fmac_f32", vr(acc + c), w(c), vr(U + c)))
                elif t == 0:
                    for c in range(8):
                        e("v_mul_f32 %s, %s, %s" % (vr(acc + c), w(c), vr(U + c)))
                    for c in range(8):
                        rnd(acc + c)
                else:
                    for c in range(8):
                        e("v_mul_f32 %s, %s, %s" % (vr(Y + c), w(c), vr(U + c)))
                    for c in range(8):
                        rnd(Y + c)
                    for c in range(8):
                        e("v_add_f32 %s, %s, %s" % (vr(acc + c), vr(acc + c), vr(Y + c)))
                    for c in range(8):
                        rnd(acc + c)
        for rr in range(2):
            for c in range(8):
                e(unpack(U + c, R + 20 + 4 * rr + (c >> 1), c))
            for c in range(8):
                e("v_mul_f32 %s, %s, %s" % (vr(PA + 8 * rr + c), vr(PA + 8 * rr + c), vr(U + c)))
        for c in range(8):
            e("v_cvt_pk_bf16_f32 %s, %s, %s" % (vr(X + 8 * p + c), vr(PA + 8 + c), vr(PA + c)))

    def pw(p, prev=False):
        for c in range(NC):
            off = c * PCH + (0 if prev else 1024 * (2 - p) if p < 3 else 2048)
            e("ds_write_b32 %s, %s offset:%d" % (vr(V_WP if prev else V_WM), vr(X + NC * p + c), off))

    def epi(p):
        for c in range(NC):
            e("ds_read_b32 %s, %s offset:%d" % (vr(Y + c), vr(V_OR if c < 4 else V_OR2), (c & 3) * TSZ + p * TCOPY))
        OO = O + 8 * (p & 1)
        first = True
        for rr in range(2):
            for c in range(NC):
                e(unpack(U + c, X + NC * p + c, 1 - rr))
            if first:
                e("s_waitcnt lgkmcnt(0)")
                first = False
            for c in range(NC):
                e(unpack(PA + c, Y + c, rr))
            if EXACT:
                for c in range(NC):
                    e("v_mul_f32 %s, %s, %s" % (vr(U + c), sr(S_D + c), vr(U + c)))
                for c in range(NC):
                    rnd(U + c)
                for c in range(NC):
                    e("v_add_f32 %s, %s, %s" % (vr(PA + c), vr(PA + c), vr(U + c)))
                if typ == 0:
                    for c in range(NC):
                        rnd(PA + c)
            else:
                for c in range(NC):
                    e("v_fmac_f32 %s, %s, %s" % (vr(PA + c), sr(S_D + c), vr(U + c)))
            if typ == 0:
                if rr == 0:
                    e(("w", "q%d" % p))
                for c in range(8):
                    e(unpack(U + c, Q + 8 * (p & 1) + 4 * rr + (c >> 1), c))
                for c in range(8):
                    e("v_mul_f32 %s, %s, %s" % (vr(PA + c), vr(PA + c), vr(U + c)))
            for d in range(ND):
                e("v_cvt_pk_bf16_f32 %s, %s, %s" % (vr(OO + 4 * rr + d), vr(PA + 2 * d), vr(PA + 2 * d + 1)))
            e(("m", ["buffer_store_dwordx%d %s, %s, %s, %s offen offset:%d" % (ND, vr(OO + 4 * rr, ND), vr(V_GO), sr(SRD_O, 4), sout(p), 2560 * rr)], ["st"]))

    def bar():
        a("s_waitcnt lgkmcnt(0)")
        a("s_barrier")

    G = grab
    def wb(tag):
        if WBL2 and (WBL2 == 2 or tag == "a"):
            a("s_add_u32 %s, %s, %s" % (sr(S_T0), sr(S_I), sr(S_WAVE)))
            a("s_cmp_lg_u32 %s, 8" % sr(S_T0))
            a("s_cbranch_scc1 L_wb%s" % tag)
            a("buffer_wbl2 sc1")
            a.lab("L_wb%s" % tag)
    if typ == 0:
        if SPRIO:
            a("s_setprio %d" % SPRIO)
        a("s_waitcnt vmcnt(0)")
        stamp_n(1)
        run(G(raw, 0))
        stamp_n(2)
        run(G(pro, 0) if MIX0 == 2 else mix(G(pro, 0), G(raw, 1)) if MIX0 else G(raw, 1) + G(pro, 0))
        run(G(pw, 0))
        stamp_n(4)
        bar()
        if MIX0 == 2:
            run(G(raw, 1))
        if SCHED == 0:
            run(mix(G(pro, 1) + G(pw, 1), G(raw, 2) + G(qload, 0)))
            stamp_n(7)
            bar()
            run(mix(G(epi, 0) + G(pro, 2) + G(pw, 2), G(raw, 3) + G(qload, 1)))
            stamp_n(9)
            bar()
            run(mix(G(pro, 3) + G(pw, 3) + G(pw, 2, True) + G(epi, 1), G(qload, 2)))
        elif SCHED == 1:
            run(mix(G(pro, 1) + G(pw, 1), G(raw, 2) + G(qload, 0)))
            run(mix(G(pro, 2) + G(pw, 2), G(raw, 3)))
            stamp_n(7)
            bar()
            run(mix(G(epi, 0) + G(pro, 3), G(qload, 1)))
            stamp_n(9)
            bar()
            run(G(pw, 3) + G(pw, 2, True) + mix(G(epi, 1), G(qload, 2)))
        else:
            run(mix(G(pro, 1) + G(pw, 1), G(raw, 2) + G(qload, 0)))
            run(G(raw, 3) + G(qload, 1))
            stamp_n(7)
            bar()
            run(G(pro, 2) + G(pw, 2) + G(epi, 0) + G(pro, 3))
            stamp_n(9)
            bar()
            run(G(pw, 3) + G(pw, 2, True) + mix(G(epi, 1), G(qload, 2)))
        stamp_n(11)
        bar()
        run(G(qload, 3) + G(epi, 2))
        bar()
        run(G(epi, 3))
    else:
        def uload(p):
            for rr in range(2):
                a("buffer_load_dwordx2 %s, %s, %s, %s offen offset:%d" % (vr(Q + 4 * p + 2 * rr, 2), vr(V_IN), sr(SRD_X, 4), sin(p), 1280 * rr))
                vm.issue("u%d" % p)
        uload(0); uload(1)
        run(G(pro, 0) + G(pw, 0))
        bar()
        uload(2); uload(3)
        run(G(pro, 1) + G(pw, 1))
        bar()
        run(G(pro, 2) + G(pw, 2) + G(epi, 0))
        bar()
        run(G(pro, 3) + G(pw, 3) + G(pw, 2, True) + G(epi, 1))
        bar()
        run(G(epi, 2))
        bar()
        run(G(epi, 3))
        if STAMPS:
            a("s_add_u32 %s, %s, 4" % (sr(S_WAVE), sr(S_WAVE)))
    stamp_dump()
    a("s_endpgm")


def path_A():
    a.c("================= path A : convolution waves build T from ssm_k =================")
    a("s_add_u32 %s, %s, %s" % (sr(S_T0), sr(S_CH0), sr(S_WAVE)))
    a("s_lshl_b32 %s, %s, 12" % (sr(S_T0), sr(S_T0)))
    a("s_add_u32 %s, %s, %s" % (sr(SRD_T), sr(PTR(4)), sr(S_T0)))
    a("s_addc_u32 %s, %s, 0" % (sr(SRD_T + 1), sr(PTR(4) + 1)))
    a("s_and_b32 %s, %s, 0xffff" % (sr(SRD_T + 1), sr(SRD_T + 1)))
    a("s_mov_b32 %s, 4096" % sr(SRD_T + 2))
    a("s_mov_b32 %s, 0x00020000" % sr(SRD_T + 3))
    TD = V_TC
    a("v_lshlrev_b32 %s, 4, %s" % (vr(V_TMP), vr(V_LANE)))
    def t_load(n):
        a("buffer_load_dwordx4 %s, %s, %s, 0 offen offset:%d" % (vr(TD + 8 * n, 4), vr(V_TMP), sr(SRD_T, 4), 1024 * n))
        a("buffer_load_dwordx2 %s, %s, %s, 0 offen offset:%d" % (vr(TD + 8 * n + 4, 2), vr(V_TMP), sr(SRD_T, 4), 1024 * n + 16))
    t_load(0)
    t_load(1)
    tbase_addr()
    a("s_waitcnt vmcnt(0)")
    stamp_n(1)
    t_load(2)
    t_load(3)
    write_head(TD, TD + 1, V_TF)
    for n in range(2):
        write_copies(TD + 8 * n, V_TF + 8 + 12 * (n & 1), n)
    a("s_waitcnt vmcnt(0)")
    for n in range(2, 4):
        write_copies(TD + 8 * n, V_TF + 8 + 12 * (n & 1), n)
    stamp_n(4)
    a("s_branch L_conv")


def cmul(d, x, y):
    a("v_pk_mul_f32 %s, %s, %s op_sel_hi:[1,0]" % (vr(d, 2), vr(x, 2), vr(y, 2)))
    a("v_pk_fma_f32 %s, %s, %s, %s op_sel:[1,1,0] op_sel_hi:[0,1,1] neg_lo:[1,0,0]" % (vr(d, 2), vr(x, 2), vr(y, 2), vr(d, 2)))


def path_B():
    vm = VM()
    a.lab("L_pathB")
    a.c("================= path B : S4D =================")
    PRM = 80
    a("s_add_u32 %s, %s, %s" % (sr(S_T0), sr(S_CH0), sr(S_WAVE)))
    a("s_lshl_b32 %s, %s, 8" % (sr(S_T1), sr(S_T0)))
    a("v_lshl_add_u32 %s, %s, 2, %s" % (vr(V_TMP), vr(V_LANE), sr(S_T1)))
    for k in range(6):
        a("global_load_dword %s, %s, %s" % (vr(PRM + k), vr(V_TMP), sr(PTR(7 + k), 2)))
    a("s_barrier")
    a("s_lshl_b32 %s, %s, 1" % (sr(S_T1), sr(S_T0)))
    a("s_and_b32 %s, %s, -4" % (sr(S_T1), sr(S_T1)))
    a("s_add_u32 %s, %s, %s" % (sr(S_W), sr(PTR(13)), sr(S_T1)))
    a("s_addc_u32 %s, %s, 0" % (sr(S_W + 1), sr(PTR(13) + 1)))
    a("s_load_dword %s, %s, 0" % (sr(S_W + 2), sr(S_W, 2)))
    a("s_and_b32 %s, %s, 1" % (sr(S_W + 4), sr(S_T0)))
    a("s_waitcnt lgkmcnt(0)")
    a("s_lshl_b32 %s, %s, 16" % (sr(S_W + 3), sr(S_W + 2)))
    a("s_and_b32 %s, %s, 0xffff0000" % (sr(S_W + 2), sr(S_W + 2)))
    a("s_cmp_eq_u32 %s, 1" % sr(S_W + 4))
    a("s_cselect_b32 %s, %s, %s" % (sr(S_W + 2), sr(S_W + 2), sr(S_W + 3)))
    DT = 86
    a("v_mov_b32 %s, 0x3fb8aa3b" % vr(DT))
    a("v_mul_f32 %s, %s, %s" % (vr(DT), sr(S_W + 2), vr(DT)))
    a("v_exp_f32 %s, %s" % (vr(DT), vr(DT)))
    AW = V_TMP + 1
    AR = V_TMP + 2
    a("s_mul_i32 %s, %s, %d" % (sr(S_T0), sr(S_WAVE), TSZ))
    a("v_cvt_pk_bf16_f32 %s, 0, %s" % (vr(DT), vr(DT)))
    a("v_lshl_add_u32 %s, %s, 3, %s" % (vr(AW), vr(V_LANE), sr(S_T0)))
    a("v_and_b32 %s, 15, %s" % (vr(AR), vr(V_LANE)))
    a("v_mul_u32_u24 %s, %d, %s" % (vr(AR), LROW, vr(AR)))
    a("v_lshrrev_b32 %s, 4, %s" % (vr(V_TMP + 3), vr(V_LANE)))
    a("v_lshl_add_u32 %s, %s, 4, %s" % (vr(AR), vr(V_TMP + 3), vr(AR)))
    a("v_add_u32 %s, %s, %s" % (vr(AR), sr(S_T0), vr(AR)))
    M = [72, 118]
    def AR2(m): return M[m]
    def AI2(m): return M[m] + 1
    def Wv(m): return M[m] + 2
    def Ep(m, phi): return M[m] + 4 + 2 * (phi - 1)
    def Rr(m, j): return M[m] + 18 + 2 * (j - 1)
    def E128(m): return M[m] + 34
    def G(m, i): return M[m] + 36 + 2 * (i & 1)
    def TA(m, n): return M[m] + 40 + 2 * (n % 3)
    CV = V_ACC + 16
    FRB = V_TC
    def FRA(kp): return M[kp >> 2] + 18 + 4 * (kp & 3)
    def FRC(kp): return M[kp >> 2] + 2 + 4 * (kp & 3)
    KACC = V_ACC
    stamp_n(1)
    a("s_waitcnt vmcnt(0)")
    stamp_n(2)
    for m in range(2):
        def un(dst, src):
            if m == 0:
                a("v_lshlrev_b32 %s, 16, %s" % (vr(dst), vr(src)))
            else:
                a("v_and_b32 %s, 0xffff0000, %s" % (vr(dst), vr(src)))
        un(AR2(m), PRM + 0)
        un(AI2(m), PRM + 1)
        un(TA(m, 0), PRM + 2)
        un(TA(m, 0) + 1, PRM + 3)
        un(TA(m, 1), PRM + 4)
        un(TA(m, 1) + 1, PRM + 5)
    for m in range(2):
        a("v_mul_f32 %s, %s, %s" % (vr(AR2(m)), vr(DT), vr(AR2(m))))
        a("v_mul_f32 %s, %s, %s" % (vr(AI2(m)), vr(DT), vr(AI2(m))))
        a("v_mul_f32 %s, 0x3fb8aa3b, %s" % (vr(AR2(m)), vr(AR2(m))))
        a("v_mul_f32 %s, 0.15915494, %s" % (vr(AI2(m)), vr(AI2(m))))
        a("v_mul_f32 %s, %s, %s" % (vr(TA(m, 0)), vr(DT), vr(TA(m, 0))))
        a("v_mul_f32 %s, %s, %s" % (vr(TA(m, 0) + 1), vr(DT), vr(TA(m, 0) + 1)))
        cmul(Wv(m), TA(m, 1), TA(m, 0))
    mx = CV
    a("v_max_f32 %s, |%s|, |%s|" % (vr(mx), vr(Wv(0)), vr(Wv(0) + 1)))
    a("v_max3_f32 %s, |%s|, |%s|, %s" % (vr(mx), vr(Wv(1)), vr(Wv(1) + 1), vr(mx)))
    dpp = ["row_shr:1 row_mask:0xf", "row_shr:2 row_mask:0xf", "row_shr:4 row_mask:0xf", "row_shr:8 row_mask:0xf", "row_bcast:15 row_mask:0xa", "row_bcast:31 row_mask:0xc"]
    k = 0
    for x, lit in ((1, "1.0"), (8, "0x41000000"), (128, "0x43000000")):
        for m in range(2):
            dst = Ep(m, 1) if x == 1 else Rr(m, 1) if x == 8 else E128(m)
            t = TA(m, 0)
            a("v_mul_f32 %s, %s, %s" % (vr(t), lit, vr(AR2(m))))
            a("v_mul_f32 %s, %s, %s" % (vr(t + 1), lit, vr(AI2(m))))
            a("v_max_f32_dpp %s, %s, %s %s bank_mask:0xf" % (vr(mx), vr(mx), vr(mx), dpp[k])); k += 1
            a("v_exp_f32 %s, %s" % (vr(t), vr(t)))
            a("v_fract_f32 %s, %s" % (vr(t + 1), vr(t + 1)))
            a("v_cos_f32 %s, %s" % (vr(t + 2), vr(t + 1)))
            a("v_sin_f32 %s, %s" % (vr(t + 3), vr(t + 1)))
            a("s_nop 0")
            a("v_mul_f32 %s, %s, %s" % (vr(dst), vr(t), vr(t + 2)))
            a("v_mul_f32 %s, %s, %s" % (vr(dst + 1), vr(t), vr(t + 3)))
    a("v_readlane_b32 %s, %s, 63" % (sr(S_SC), vr(mx)))
    cvi = [0]
    def put(off, p0, p1, neg):
        c = CV + 2 * (cvi[0] & 3); cvi[0] += 1
        n = "-" if neg else ""
        a("v_cvt_pk_f16_f32 %s, %s, %s%s" % (vr(c), vr(p0), n, vr(p0 + 1)))
        a("v_cvt_pk_f16_f32 %s, %s, %s%s" % (vr(c + 1), vr(p1), n, vr(p1 + 1)))
        a("ds_write_b64 %s, %s offset:%d" % (vr(AW), vr(c, 2), off))
    a("v_mov_b32 %s, 0x3c00" % vr(CV + 6))
    a("v_mov_b32 %s, 0x3c00" % vr(CV + 7))
    a("ds_write_b64 %s, %s offset:0" % (vr(AW), vr(CV + 6, 2)))
    a("s_and_b32 %s, %s, 0x7f800000" % (sr(S_SC), sr(S_SC)))
    a("s_sub_u32 %s, 0x7f000000, %s" % (sr(S_T0), sr(S_SC)))
    for m in range(2):
        a("v_mul_f32 %s, %s, %s" % (vr(Wv(m)), sr(S_T0), vr(Wv(m))))
        a("v_mul_f32 %s, %s, %s" % (vr(Wv(m) + 1), sr(S_T0), vr(Wv(m) + 1)))
    put(LROW, Rr(0, 1), Rr(1, 1), True)
    for j in range(2, 9):
        for m in range(2):
            cmul(Rr(m, j), Rr(m, j // 2), Rr(m, j - j // 2))
        put(j * LROW, Rr(0, j), Rr(1, j), True)
    for j in range(9, 16):
        for m in range(2):
            cmul(TA(m, j), Rr(m, 8), Rr(m, j - 8))
        put(j * LROW, TA(0, j), TA(1, j), True)
    for kp in range(8):
        a("ds_read_b128 %s, %s offset:%d" % (vr(FRB + 4 * kp, 4), vr(AR), 64 * kp))
    for phi in range(2, 8):
        for m in range(2):
            cmul(Ep(m, phi), Ep(m, phi // 2), Ep(m, phi - phi // 2))
    def lrow_off(row):
        return (KBUF if (row >> 4) != 1 else 0) + (row & 15) * LROW
    cur = [Wv(0), Wv(1)]
    tn = [0]
    for i in range(17):
        if i < 2:
            rows = [(8 * i + phi, phi) for phi in range(8)]
        elif i < 4:
            rows = [(16 + 4 * (i - 2) + f, 2 * f) for f in range(4)]
        elif i < 8:
            rows = [(24 + 2 * (i - 4) + f, 4 * f) for f in range(2)]
        else:
            rows = [(32 + (i - 8), 0)]
        if i == 2:
            for kp in range(8):
                a("ds_read_b128 %s, %s offset:%d" % (vr(FRA(kp), 4), vr(AR), KBUF + 64 * kp))
        if i == 8:
            for kp in range(8):
                a("ds_read_b128 %s, %s offset:%d" % (vr(FRA(kp), 4), vr(AR), 64 * kp))
        nxt = [G(0, i), G(1, i)]
        if i < 16:
            for m in range(2):
                cmul(nxt[m], cur[m], E128(m))
        for n, (row, phi) in enumerate(rows):
            if phi == 0:
                put(lrow_off(row), cur[0], cur[1], False)
            else:
                for m in range(2):
                    cmul(TA(m, tn[0]), cur[m], Ep(m, phi))
                put(lrow_off(row), TA(0, tn[0]), TA(1, tn[0]), False)
                tn[0] += 1
            if 22 <= row < 30:
                kp = row - 22
                if kp == 0:
                    a("s_waitcnt lgkmcnt(7)")
                a("v_mfma_f32_16x16x32_f16 %s, %s, %s, %s" % (vr(KACC, 4), vr(FRA(kp), 4), vr(FRB + 4 * kp, 4), "0" if kp == 0 else vr(KACC, 4)))
        cur = nxt
    for kp in range(8):
        a("ds_read_b128 %s, %s offset:%d" % (vr(FRC(kp), 4), vr(AR), KBUF + 64 * kp))
    j, g = V_TMP, V_TMP + 3
    A0, A1, A1b, A2 = 164, 165, 166, 167
    a("v_and_b32 %s, 15, %s" % (vr(j), vr(V_LANE)))
    a("s_mul_i32 %s, %s, %d" % (sr(S_T1), sr(S_WAVE), TSZ))
    a("v_lshrrev_b32 %s, 1, %s" % (vr(A0), vr(g)))
    a("v_lshlrev_b32 %s, 7, %s" % (vr(A0), vr(A0)))
    a("v_and_b32 %s, 1, %s" % (vr(A1), vr(g)))
    a("v_lshl_add_u32 %s, %s, 2, %s" % (vr(A0), vr(A1), vr(A0)))
    a("v_lshl_add_u32 %s, %s, 3, %s" % (vr(A0), vr(j), vr(A0)))
    a("v_lshl_add_u32 %s, %s, 1, %s" % (vr(A0), vr(A0), sr(S_T1)))
    a("v_lshlrev_b32 %s, 6, %s" % (vr(A2), vr(g)))
    a("v_cmp_gt_u32 vcc, 2, %s" % vr(g))
    a("v_lshlrev_b32 %s, 2, %s" % (vr(A1), vr(j)))
    a("v_lshlrev_b32 %s, 1, %s" % (vr(A1b), vr(j)))
    a("v_cndmask_b32 %s, %s, %s, vcc" % (vr(A1), vr(A1b), vr(A1)))
    a("s_waitcnt lgkmcnt(8)")
    for kp in range(8):
        a("v_mfma_f32_16x16x32_f16 %s, %s, %s, %s" % (vr(KACC + 4, 4), vr(FRA(kp), 4), vr(FRB + 4 * kp, 4), "0" if kp == 0 else vr(KACC + 4, 4)))
    a("s_waitcnt lgkmcnt(0)")
    for kp in range(8):
        a("v_mfma_f32_16x16x32_f16 %s, %s, %s, %s" % (vr(KACC + 8, 4), vr(FRC(kp), 4), vr(FRB + 4 * kp, 4), "0" if kp == 0 else vr(KACC + 8, 4)))
    a("v_add_u32 %s, %s, %s" % (vr(A1), vr(A1), vr(A2)))
    a("v_add_u32 %s, 256, %s" % (vr(A1), vr(A1)))
    a("v_mov_b32 %s, 32" % vr(A1b))
    a("v_cndmask_b32 %s, %s, 2, vcc" % (vr(A1b), vr(A1b)))
    a("v_add_u32 %s, %s, %s" % (vr(A1b), vr(A1b), vr(A1)))
    a("v_lshl_add_u32 %s, %s, 1, %s" % (vr(A1), vr(A1), sr(S_T1)))
    a("v_lshl_add_u32 %s, %s, 1, %s" % (vr(A1b), vr(A1b), sr(S_T1)))
    a("v_add3_u32 %s, %s, %s, %s" % (vr(A2), vr(A2), vr(j), "64"))
    a("v_add_u32 %s, 448, %s" % (vr(A2), vr(A2)))
    a("v_lshl_add_u32 %s, %s, 1, %s" % (vr(A2), vr(A2), sr(S_T1)))
    stamp_n(3)
    for k in range(12):
        a("v_mul_f32 %s, %s, %s" % (vr(KACC + k), sr(S_SC), vr(KACC + k)))
    pk = KACC + 12
    for k in range(6):
        a("v_cvt_pk_bf16_f32 %s, %s, %s" % (vr(pk + k), vr(KACC + 2 * k), vr(KACC + 2 * k + 1)))
    a("ds_write_b64 %s, %s offset:0" % (vr(A0), vr(pk, 2)))
    a("ds_write_b32 %s, %s offset:0" % (vr(A1), vr(pk + 2)))
    a("ds_write_b32 %s, %s offset:0" % (vr(A1b), vr(pk + 3)))
    a("ds_write_b16 %s, %s offset:0" % (vr(A2), vr(pk + 4)))
    a("ds_write_b16_d16_hi %s, %s offset:32" % (vr(A2), vr(pk + 4)))
    a("ds_write_b16 %s, %s offset:64" % (vr(A2), vr(pk + 5)))
    a("ds_write_b16_d16_hi %s, %s offset:96" % (vr(A2), vr(pk + 5)))
    a.c("---- expand the staircase into the four shifted copies ----")
    tbase_addr()
    D = V_TC
    H = V_TC + 32
    a("v_lshl_add_u32 %s, %s, 4, %s" % (vr(V_TMP), vr(V_LANE), sr(S_T1)))
    a("v_lshl_add_u32 %s, %s, 3, %s" % (vr(V_TMP + 1), vr(V_LANE), sr(S_T1)))
    a("v_lshl_add_u32 %s, %s, 2, %s" % (vr(V_TMP + 2), vr(V_LANE), sr(S_T1)))
    a("v_lshl_add_u32 %s, %s, 1, %s" % (vr(V_TMP + 3), vr(V_LANE), sr(S_T1)))
    a("s_mov_b32 %s, 0x01000100" % sr(S_K0))
    a("s_mov_b32 %s, 0x03020302" % sr(S_K1))
    a("ds_read_b128 %s, %s" % (vr(D, 4), vr(V_TMP)))
    a("ds_read_b64 %s, %s offset:16" % (vr(D + 4, 2), vr(V_TMP)))
    a("ds_read_b64 %s, %s offset:256" % (vr(H, 2), vr(V_TMP + 1)))
    a("ds_read_b32 %s, %s offset:264" % (vr(H + 2), vr(V_TMP + 1)))
    a("ds_read_b32 %s, %s offset:%d" % (vr(H + 4), vr(V_TMP + 2), 2 * 384))
    a("ds_read_b32 %s, %s offset:%d" % (vr(H + 5), vr(V_TMP + 2), 2 * 384 + 4))
    for n in (2, 3):
        o = 2 * (512 + 64 * (n - 2))
        a("ds_read_u16 %s, %s offset:%d" % (vr(H + 6 + 2 * (n - 2)), vr(V_TMP + 3), o))
        a("ds_read_u16 %s, %s offset:%d" % (vr(H + 7 + 2 * (n - 2)), vr(V_TMP + 3), o + 2))
    a("v_and_b32 %s, 1, %s" % (vr(V_TMP), vr(V_LANE)))
    a("v_cmp_eq_u32 vcc, 0, %s" % vr(V_TMP))
    a("s_waitcnt lgkmcnt(0)")
    a("s_mov_b32 exec_hi, 0")
    a("s_mov_b32 exec_lo, 0x80000000")
    a("v_lshrrev_b32 %s, 16, %s" % (vr(D + 5), vr(D + 4)))
    a("v_perm_b32 %s, %s, %s, %s" % (vr(D + 4), vr(D + 4), vr(D + 4), sr(S_K0)))
    a("s_mov_b32 exec_lo, 0")
    a("s_mov_b32 exec_hi, -1")
    a("v_perm_b32 %s, %s, %s, %s" % (vr(D), vr(H), vr(H), sr(S_K0)))
    a("v_alignbit_b32 %s, %s, %s, 16" % (vr(D + 1), vr(H + 1), vr(H)))
    a("v_perm_b32 %s, %s, %s, %s" % (vr(D + 2), vr(H + 1), vr(H + 1), sr(S_K0)))
    a("v_alignbit_b32 %s, %s, %s, 16" % (vr(D + 3), vr(H + 2), vr(H + 1)))
    a("v_perm_b32 %s, %s, %s, %s" % (vr(D + 4), vr(H + 2), vr(H + 2), sr(S_K0)))
    a("v_lshrrev_b32 %s, 16, %s" % (vr(D + 5), vr(H + 2)))
    a("s_mov_b32 exec_hi, 0x80000000")
    a("v_mov_b32 %s, %s" % (vr(D + 5), vr(D + 4)))
    a("s_mov_b64 exec, -1")
    write_head(D, D + 1, 84)
    write_copies(D, 92, 0)
    D2 = D + 8
    a("v_perm_b32 %s, %s, %s, %s" % (vr(D2), vr(H + 4), vr(H + 4), sr(S_K0)))
    a("v_mov_b32 %s, %s" % (vr(D2 + 1), vr(H + 4)))
    a("v_perm_b32 %s, %s, %s, %s" % (vr(D2 + 2), vr(H + 4), vr(H + 4), sr(S_K1)))
    for k in (3, 4, 5):
        a("v_perm_b32 %s, %s, %s, %s" % (vr(D2 + k), vr(H + 5), vr(H + 5), sr(S_K0)))
    write_copies(D2, 104, 1)
    for n in (2, 3):
        D3 = D + 8 * n
        ra, rb_ = H + 6 + 2 * (n - 2), H + 7 + 2 * (n - 2)
        a("v_lshl_or_b32 %s, %s, 16, %s" % (vr(D3), vr(ra), vr(ra)))
        a("v_lshl_or_b32 %s, %s, 16, %s" % (vr(D3 + 1), vr(ra), vr(ra)))
        for k in (3, 4, 5):
            a("v_lshl_or_b32 %s, %s, 16, %s" % (vr(D3 + k), vr(rb_), vr(rb_)))
        a("v_cndmask_b32 %s, %s, %s, vcc" % (vr(ra), vr(rb_), vr(ra)))
        a("v_lshl_or_b32 %s, %s, 16, %s" % (vr(D3 + 2), vr(rb_), vr(ra)))
        write_copies(D3, 92 + 12 * (n & 1), n)
    stamp_n(4)


DELAY = [int(x) for x in os.environ.get("DELAY", "12,0").split(",")]
MBAR_R = int(os.environ.get("MBAR_R", "1"))


def conv():
    a.lab("L_conv")
    a.c("================= convolution (both parts) =================")
    steps = [[0, 1], [2, 3], [4, 5], [6, 7]]

    def preg(r, d): return V_PF + 8 * (r & 1) + 4 * d

    def p_reads(si, r):
        return [("ds_read_b128 %s, %s offset:%d" % (vr(preg(r, d), 4), vr(V_P), 2560 - 512 * (w % 6) + 64 * r), ("P", si, r, d)) for d, w in enumerate(steps[si])]

    def treg(r, u):
        return V_TC + 8 * r + 4 * u if u < 2 else V_TF + 24 * (r & 1) + 4 * (u - 2)

    def t_reads(si, r):
        out = []
        for u in range(0 if si == 0 else 2, 8 - steps[si][0]):
            for hh in range(2):
                out.append(("ds_read_b64 %s, %s offset:%d" % (vr(treg(r, u) + 2 * hh, 2), vr(V_T), 512 * u + 64 * r + 8 * hh), ("T", si, r, u, hh)))
        return out

    lq = []
    state = {"done": -1}

    def need(*tags):
        idx = -1
        for tag in tags:
            idxs = [i for i, t in enumerate(lq) if t == tag]
            if idxs:
                idx = max(idx, idxs[-1])
        if idx <= state["done"]:
            return
        n = len(lq) - 1 - idx
        a("s_waitcnt lgkmcnt(%d)" % min(n, 15))
        state["done"] = len(lq) - 1 - min(n, 15)

    def emit(s_, tag=None):
        a(s_)
        lq.append(tag)

    def deposit(si):
        for c in steps[si]:
            acc = V_ACC + 4 * c
            a("v_cvt_pk_bf16_f32 %s, %s, %s" % (vr(acc), vr(acc), vr(acc + 1)))
            a("v_cvt_pk_bf16_f32 %s, %s, %s" % (vr(acc + 1), vr(acc + 2), vr(acc + 3)))
            emit("ds_write_b64 %s, %s offset:%d" % (vr(V_O2), vr(acc, 2), (c >> 1) * TCOPY + 512 * (c & 1)), "D")

    a("v_mov_b32 %s, 0" % vr(V_ACC))
    a("v_mov_b32 %s, 0" % vr(V_ACC + 1))
    emit("ds_write_b64 %s, %s offset:3072" % (vr(V_O), vr(V_ACC, 2)))
    for x in t_reads(0, 0):
        emit(*x)
    stamp_n(5)
    a("s_barrier")
    for x in p_reads(0, 0):
        emit(*x)
    touched = set()
    for si, st in enumerate(steps):
        a.c("---- step %d ----" % si)
        stamp_n(6 + 2 * si)
        ms = [(u + w, u, d) for u in range(8 - st[0]) for d, w in enumerate(st) if u + w <= 7]
        lastdep = max(i for i, m in enumerate(ms) if m[0] in st)
        early = lastdep + 5 < len(ms)
        last = si == len(steps) - 1
        vis = False
        for r in range(8):
            if r < 7:
                nxt = p_reads(si, r + 1) + t_reads(si, r + 1)
            elif last:
                nxt = []
            else:
                nxt = (p_reads(si + 1, 0) if vis else []) + t_reads(si + 1, 0)
            for i, (c, u, d) in enumerate(ms):
                acc = V_ACC + 4 * c
                src = vr(acc, 4) if c in touched else "0"
                touched.add(c)
                need(("P", si, r, d), ("T", si, r, u, 1))
                a("v_mfma_f32_16x16x32_bf16 %s, %s, %s, %s" % (vr(acc, 4), vr(treg(r, u), 4), vr(preg(r, d), 4), src))
                lo = (i * len(nxt) + len(ms) - 1) // len(ms) if len(nxt) > len(ms) else i
                hi = len(nxt) if i == len(ms) - 1 else (((i + 1) * len(nxt) + len(ms) - 1) // len(ms) if len(nxt) > len(ms) else i + 1)
                for k in range(lo, min(hi, len(nxt))):
                    emit(*nxt[k])
                if r == 7 and early and i == lastdep + 4:
                    a("s_nop 3")
                    deposit(si)
        if not early:
            a("s_nop 7")
            a("s_nop 1")
            deposit(si)
        need("D")
        a("s_barrier")
        if WBL2 and si in ((2,) if WBL2 == 1 else (1, 2)):
            a("s_add_u32 %s, %s, %s" % (sr(S_T0), sr(S_I), sr(S_WAVE)))
            a("s_add_u32 %s, %s, %s" % (sr(S_T0), sr(S_T0), sr(S_TYPE)))
            a("s_cmp_lg_u32 %s, 0" % sr(S_T0))
            a("s_cbranch_scc1 L_wb%d" % si)
            a("buffer_wbl2 sc1")
            a.lab("L_wb%d" % si)
        if not vis and not last:
            for x in p_reads(si + 1, 0):
                emit(*x)
    stamp_dump()
    a("s_endpgm")


header()
prologue_common()
path_A()
path_B()
conv()
service(0)
helper()
footer()
out = sys.argv[1] if len(sys.argv) > 1 else "concat_heads__ssm_conv_h3__ssm_conv_s4__prompt.s"
open(out, "w").write(a.text())
print("wrote", out, len(a.l), "lines")
```
